```python
import torch

def _softmax(x, axis=-1):
    return torch.softmax(x, dim=axis)
def _gelu(x):
    return torch.nn.functional.gelu(x, approximate="tanh")
def _silu(x):
    return torch.nn.functional.silu(x)
def _sigmoid(x):
    return torch.sigmoid(x)
def _layernorm(x, axis=-1, eps=1e-5):
    m = x.mean(dim=axis, keepdim=True)
    v = x.var(dim=axis, keepdim=True, unbiased=False)
    return (x - m) / torch.sqrt(v + eps)
def _scatter_add(tgt, idx, src, axis=0):
    return tgt.clone().index_add_(axis, idx, src)
def _segment_sum(src, seg, n):
    out = torch.zeros((n,) + src.shape[1:], dtype=src.dtype)
    return out.index_add_(0, seg, src)
def _pad(x, pw):
    flat = tuple(v for pair in reversed(pw) for v in pair)
    return torch.nn.functional.pad(x, flat)

kernel_name = 'interleave_layers__spectral_gfnet__softmax_full_mha__prompt'

def setup_inputs():

    _w = (lambda a: (lambda t: t.to(torch.bfloat16) if t.is_floating_point() else t)(torch.as_tensor(a)))
    def _A_setup():
        B, S, D = 1, 2048, 512
        Df = D // 2 + 1
        return {
            "x": _w((lambda *s: torch.randn(*s, dtype=torch.bfloat16) * 0.05)(B, S, D)),
            "w_r": _w((lambda *s: torch.randn(*s, dtype=torch.bfloat16) * 0.8)(S, Df) * 0.02),
            "w_i": _w((lambda *s: torch.randn(*s, dtype=torch.bfloat16) * 0.8)(S, Df) * 0.02),
        }
    _A_in = _A_setup()

    def _B_setup():
        B, S, D = 1, 2048, 512
        return {
            "x": _w((lambda *s: torch.randn(*s, dtype=torch.bfloat16) * 0.05)(B, S, D)),
            "wqkv": _w((lambda *s: torch.randn(*s, dtype=torch.bfloat16) * 0.05)(D, 3 * D)),
            "wo": _w((lambda *s: torch.randn(*s, dtype=torch.bfloat16) * 0.05)(D, D)),
        }
    _B_in = _B_setup()

    return {
        "A_x": _A_in["x"],
        "A_w_r": _A_in["w_r"],
        "A_w_i": _A_in["w_i"],
        "B_x": _B_in["x"],
        "B_wqkv": _B_in["wqkv"],
        "B_wo": _B_in["wo"],
    }

def reference(A_x, A_w_r, A_w_i, B_x, B_wqkv, B_wo):
    def _A_ref(x, w_r, w_i):
        B, S, D = x.shape
        X = (lambda x, axes=(-2,-1): torch.fft.rfft2(x.float(), dim=axes))(x, axes=(-2, -1))
        W = w_r + 1j * w_i
        X = X * W
        y = (lambda x, s, axes=(-2,-1): torch.fft.irfft2(x, s=s, dim=axes).to(torch.bfloat16))(X, (S, D), axes=(-2, -1))
        return y

    def _B_ref(x, wqkv, wo):
        B, S, D = x.shape
        H = 32; Dh = D // H
        qkv = (lambda x, *d: x.permute(*d))((x @ wqkv).reshape(B, S, 3, H, Dh), 2, 0, 3, 1, 4)
        q, k, v = qkv[0], qkv[1], qkv[2]
        scale = Dh ** -0.5
        scores = torch.einsum("bhqd,bhkd->bhqk", q, k) * scale
        p = _softmax(scores, axis=-1)
        o = torch.einsum("bhqk,bhkd->bhqd", p, v)
        return (lambda x, *d: x.permute(*d))(o, 0, 2, 1, 3).reshape(B, S, D) @ wo

    x = A_x
    x = x + _A_ref(_layernorm(x, axis=-1), A_w_r, A_w_i)
    x = x + _B_ref(_layernorm(x, axis=-1), B_wqkv, B_wo)
    x = x + _A_ref(_layernorm(x, axis=-1), A_w_r, A_w_i)
    x = x + _B_ref(_layernorm(x, axis=-1), B_wqkv, B_wo)
    return x
```

```python
import re

TRANS = ("v_exp_f32", "v_log_f32", "v_rcp_f32", "v_rsq_f32", "v_sqrt_f32", "v_sin_f32", "v_cos_f32")

def regs_of(tok):
    tok = tok.strip()
    tok = tok.lstrip('-')
    m = re.fullmatch(r"abs\((.*)\)", tok) or re.fullmatch(r"\|(.*)\|", tok)
    if m: tok = m.group(1)
    m = re.fullmatch(r"([vsa])(\d+)", tok)
    if m: return [(m.group(1), int(m.group(2)))]
    m = re.fullmatch(r"([vsa])\[(\d+):(\d+)\]", tok)
    if m: return [(m.group(1), i) for i in range(int(m.group(2)), int(m.group(3)) + 1)]
    if tok in ("vcc", "vcc_lo", "vcc_hi"): return [("s", "vcc")]
    if tok in ("exec", "exec_lo", "exec_hi"): return [("s", "exec")]
    if tok == "m0": return [("s", "m0")]
    return []

class Ins:
    def __init__(self, text):
        self.text = text
        t = text.split(";")[0].strip()
        self.op = t.split()[0] if t else ""
        rest = t[len(self.op):].strip()
        ops = []
        cur = ""; depth = 0
        for ch in rest:
            if ch in "[(": depth += 1
            if ch in "])": depth -= 1
            if ch == "," and depth == 0:
                ops.append(cur.strip()); cur = ""
            else: cur += ch
        if cur.strip(): ops.append(cur.strip())
        mods = ""
        if ops:
            parts = ops[-1].split(None, 1)
            ops[-1] = parts[0]
            mods = parts[1] if len(parts) > 1 else ""
        self.ops = ops; self.mods = mods
        op = self.op
        self.kind = "other"; self.w = []; self.r = []; self.passes = 0; self.c = []; self.ab = []
        self.ws = 1
        R = [regs_of(o) for o in ops]
        if op == "s_nop":
            self.kind = "nop"; self.ws = int(ops[0], 0) + 1
        elif op.startswith("v_mfma") or op.startswith("v_smfmac"):
            self.kind = "mfma"
            self.passes = 8 if "32x32" in op else 4
            self.w = R[0]
            if op.startswith("v_mfma"):
                self.ab = R[1] + R[2]; self.c = R[3]
            else:
                self.ab = R[1] + R[2] + R[3]; self.c = R[0]
            self.r = self.ab + self.c
        elif op.startswith("v_"):
            self.kind = "trans" if op.replace("_e32", "").replace("_e64", "") in TRANS else "valu"
            if op.startswith("v_cmp"):
                self.w = R[0]; self.r = sum(R[1:], [])
            elif op.startswith("v_permlane") and "swap" in op:
                self.w = R[0] + R[1]; self.r = R[0] + R[1]
            elif op.startswith(("v_add_co", "v_sub_co", "v_addc_co", "v_subb_co")):
                self.w = R[0] + R[1]; self.r = sum(R[2:], [])
            else:
                self.w = R[0]; self.r = sum(R[1:], [])
                if op.startswith(("v_fmac", "v_dot2c", "v_pk_fmac", "v_writelane")) or "UNUSED_PRESERVE" in mods or "dpp" in op or "quad_perm" in mods or "row_" in mods:
                    self.r = self.r + R[0]
                if op.startswith("v_cndmask") and len(ops) == 3:
                    self.r.append(("s", "vcc"))
            self.dpp = ("dpp" in op) or ("quad_perm" in mods) or ("row_" in mods) or ("wave_" in mods)
        elif op.startswith("ds_"):
            self.kind = "ds"
            if op.startswith(("ds_read", "ds_bpermute", "ds_permute", "ds_swizzle")):
                self.w = R[0]; self.r = sum(R[1:], [])
            else:
                self.r = sum(R, [])
        elif op.startswith(("buffer_", "global_", "flat_")):
            self.kind = "vmem"
            islds = (" lds" in (" " + mods)) or "load_lds" in op
            if "load" in op and not islds:
                self.w = R[0]; self.r = sum(R[1:], [])
                if "d16" in op: self.r = self.r + R[0]
            elif "atomic" in op and "sc0" in mods:
                self.w = R[0]; self.r = sum(R, [])
            else:
                self.r = sum(R, [])
            if islds: self.r.append(("s", "m0"))
            self.islds = islds
            self.widestore = ("store" in op) and op.endswith(("x3", "x4"))
            if self.widestore:
                self.sdata = R[0] if op.startswith("buffer_") else R[1]
        elif op.startswith("s_"):
            self.kind = "salu"
            if op.startswith(("s_cmp", "s_cbranch", "s_branch", "s_waitcnt", "s_barrier", "s_endpgm", "s_setprio", "s_sleep")):
                self.r = sum(R, [])
            else:
                self.w = R[0] if R else []; self.r = sum(R[1:], [])
                if "saveexec" in op: self.w = self.w + [("s", "exec")]

def need(prev, cur):
    n = 0
    pw = set(prev.w);
    if prev.kind in ("valu", "trans"):
        vw = {x for x in pw if x[0] in "va"}
        sw = {x for x in pw if x[0] == "s"}
        if cur.kind == "mfma" and vw & set(cur.r): n = max(n, 2)
        if cur.kind == "mfma" and ("s", "exec") in sw: n = max(n, 4)
        if prev.kind == "trans" and cur.kind == "valu" and vw & set(cur.r): n = max(n, 1)
        if cur.kind in ("valu", "trans"):
            if getattr(cur, "dpp", False) and vw & set(cur.r): n = max(n, 2)
            if cur.op.startswith("v_permlane") and vw & set(cur.r): n = max(n, 2)
            if cur.op.startswith(("v_readlane", "v_readfirstlane")) and vw & set(cur.r): n = max(n, 1)
            if sw & set(cur.r): n = max(n, 4 if cur.op.startswith(("v_readlane", "v_writelane")) else 2)
            if ("sdwa" in prev.op or "op_sel" in prev.mods and not prev.op.startswith("v_pk")) and vw & set(cur.r): n = max(n, 1)
        if cur.kind == "vmem" and sw & set(cur.r): n = max(n, 5)
        if cur.kind == "salu" and sw & set(cur.r): n = max(n, 2)
    if prev.kind == "mfma":
        p = prev.passes
        if cur.kind == "mfma":
            if pw & set(cur.ab): n = max(n, p + 4)
            if pw & set(cur.c):
                if not (list(prev.w) == list(cur.c) and prev.passes == cur.passes): n = max(n, p + 2)
            if pw & set(cur.w) and cur.passes < p: n = max(n, p + 4)
        elif cur.kind in ("valu", "trans"):
            if pw & (set(cur.r) | set(cur.w)): n = max(n, p + 4)
            if set(prev.c) & set(cur.w): n = max(n, p - 1)
        elif cur.kind in ("ds", "vmem"):
            if pw & (set(cur.r) | set(cur.w)): n = max(n, p + 4)
            if set(prev.c) & set(cur.w): n = max(n, p - 1)
    if prev.kind == "vmem" and getattr(prev, "widestore", False):
        if cur.kind in ("valu", "trans", "mfma") and set(prev.sdata) & set(cur.w): n = max(n, 2)
        elif set(prev.sdata) & set(cur.w): n = max(n, 1)
    if prev.kind == "salu" and ("s", "m0") in pw and cur.kind == "vmem" and getattr(cur, "islds", False): n = max(n, 1)
    return n

class Asm:
    def __init__(self):
        self.lines = []
        self.hist = []
        self.nops = 0
        self.loop_start = {}
        self.pending = {}
        self.alts = []
        self.vm = 0
    def raw(self, text):
        self.lines.append(text)
    def _dist_pad(self, ins, hist):
        pad = 0; dist = 0
        for prev in reversed(hist):
            n = need(prev, ins)
            if n > dist: pad = max(pad, n - dist)
            dist += prev.ws
            if dist > 24: break
        return pad
    def __call__(self, text):
        for line in text.strip("\n").split("\n"):
            t = line.strip()
            if not t or t.startswith(";"):
                if t: self.lines.append("    " + t)
                continue
            if t.endswith(":") or t.startswith("."):
                self.lines.append(t)
                if t.endswith(":"):
                    self.loop_start[t[:-1]] = len(self.hist)
                    self.alts += [[h, 0] for h in self.pending.pop(t[:-1], [])]
                continue
            ins = Ins(t)
            pad = self._dist_pad(ins, self.hist)
            for alt in self.alts: pad = max(pad, self._dist_pad(ins, alt[0]))
            while pad > 0:
                k = min(pad, 16)
                nop = Ins("s_nop %d" % (k - 1))
                self.hist.append(nop); self.lines.append("    s_nop %d" % (k - 1)); self.nops += 1
                for alt in self.alts: alt[0].append(nop); alt[1] += nop.ws
                pad -= k
            self.hist.append(ins); self.lines.append("    " + t)
            for alt in self.alts: alt[0].append(ins); alt[1] += ins.ws
            self.alts = [a for a in self.alts if a[1] < 26]
            if ins.kind == "vmem": self.vm += 1
            if ins.op.startswith(("s_cbranch", "s_branch")) and ins.ops and ins.ops[0] not in self.loop_start:
                self.pending.setdefault(ins.ops[0], []).append(list(self.hist[-30:]))
                for alt in self.alts: self.pending[ins.ops[0]].append(list(alt[0][-30:]))
            if ins.op in ("s_branch", "s_endpgm"):
                self.hist.append(Ins("s_nop 15")); self.hist.append(Ins("s_nop 15")); self.alts = []
            if ins.op.startswith(("s_cbranch", "s_branch")) and ins.ops and ins.ops[0] in self.loop_start:
                st = self.loop_start[ins.ops[0]]
                h = list(self.hist[:-2] if ins.op == "s_branch" else self.hist)
                for k in range(st, min(st + 30, len(self.hist))):
                    p = self._dist_pad(self.hist[k], h)
                    assert p == 0, "hazard across loop back-edge at: %s (needs %d)" % (self.hist[k].text, p)
                    h.append(self.hist[k])
    def wait_vm(self, idx, extra=""):
        n = self.vm - idx - 1
        assert 0 <= n <= 63, n
        self("s_waitcnt vmcnt(%d) %s" % (n, extra))
    def fence(self, n=16):
        self("s_nop %d" % (n - 1))
    def text(self):
        return "\n".join(self.lines) + "\n"
```

```python
def k_att(G):
    K, R, OFF, srd_load, lane_setup, OPT = G.K, G.R, G.OFF, G.srd_load, G.lane_setup, G.OPT
    k = K("att_kernel", 144); a = k.a
    IDX = 12; KA0 = 13; VA0 = 14; VINC = 15
    Q = 16; KB = 24; VB = 32; S0, S1, CM, OA = 48, 64, 80, 112
    CB = 0x20400; XB = 0x21800
    a("s_cmp_ge_u32 s2, 256\ns_cbranch_scc1 L_att_end")
    srd_load(a, 8, "ws")
    lane_setup(a)
    a("""
    s_and_b32 s42, s2, 7
    s_lshr_b32 s43, s2, 3
    s_lshl_b32 s42, s42, 2
    s_and_b32 s44, s43, 3
    s_add_u32 s42, s42, s44         ; head
    s_lshr_b32 s43, s43, 2          ; qb
    s_and_b32 s40, s3, 3
    s_lshr_b32 s41, s3, 2           ; kh
    s_lshl_b32 s44, s43, 3
    s_lshl_b32 s45, s40, 1
    s_add_u32 s44, s44, s45
    s_add_u32 s44, s44, s41         ; own row tile (q index 0); q index 1 = own ^ 1
    s_lshl_b32 s45, s42, 16
    s_lshl_b32 s46, s44, 10
    s_add_u32 s46, s46, s45
    s_add_u32 s46, s46, 0x%x
    s_xor_b32 s47, s46, 1024
    s_add_u32 s48, s45, 0x%x        ; K base of the head
    s_lshl_b32 s49, s41, 5
    s_add_u32 s49, s49, s40         ; slot of group 0
    s_lshl_b32 s50, s43, 2
    s_add_u32 s50, s50, s49         ; global tile of group 0 (mod 64)
    s_lshl_b32 s49, s49, 10         ; LDS offset of group 0
    s_waitcnt lgkmcnt(0)
    """ % (OFF["QF"], OFF["KF"]))
    k.mark()
    def group():
        a("""
        s_and_b32 s51, s50, 63
        s_lshl_b32 s51, s51, 10
        s_mov_b32 m0, s49
        s_add_u32 s51, s51, s48
        buffer_load_dwordx4 v9, s[8:11], s51 offen lds
        s_add_u32 m0, s49, 0x10000
        s_add_u32 s51, s51, 0x%x
        buffer_load_dwordx4 v9, s[8:11], s51 offen lds
        s_add_u32 s49, s49, 4096
        s_add_u32 s50, s50, 4
        """ % (OFF["VF"] - OFF["KF"]))
    a("buffer_load_dwordx4 %s, v9, s[8:11], s46 offen" % R(Q, 4))
    a("buffer_load_dwordx4 %s, v9, s[8:11], s47 offen" % R(Q + 4, 4))
    group(); group()
    a("""
    s_lshl_b32 s52, s41, 15
    v_add_u32 v%(KA0)d, s52, v9
    v_and_b32 v5, 15, v1
    v_lshlrev_b32 v5, 4, v5
    v_lshl_add_u32 v5, v3, 8, v5
    s_add_u32 s52, s52, 0x10000
    v_add_u32 v5, s52, v5
    v_and_b32 v6, 27, v2
    v_cmp_eq_u32 vcc, 16, v6
    v_mov_b32 v7, 0x%(cb1)x
    v_mov_b32 v8, 0x%(cb0)x
    v_cndmask_b32 v7, v7, v8, vcc
    v_cmp_gt_u32 vcc, 16, v2
    v_mov_b32 v8, 0
    v_mov_b32 v10, 4096
    v_cndmask_b32 v%(VA0)d, v7, v5, vcc
    v_cndmask_b32 v%(VINC)d, v8, v10, vcc
    v_mov_b32 v%(IDX)d, 0xdddddddd
    ; constant area: lane l<20 writes 16 B at CB + (l>>1)*512 + (l&1)*16 ; even = ones, odd = zeros
    v_lshrrev_b32 v5, 1, v1
    v_lshlrev_b32 v5, 9, v5
    v_and_b32 v6, 1, v1
    v_lshl_add_u32 v5, v6, 4, v5
    v_add_u32 v5, 0x%(cb0)x, v5
    v_add_u32 v6, -1, v6
    v_and_b32 v24, 0x3f803f80, v6
    v_mov_b32 v25, v24
    v_mov_b32 v26, v24
    v_mov_b32 v27, v24
    s_mov_b64 exec, 0xfffff
    ds_write_b128 v5, v[24:27]
    s_mov_b64 exec, -1
    s_mov_b32 s62, 0
    s_cmp_lt_u32 s3, 4
    s_cbranch_scc1 L_att_np
    s_setprio 1
L_att_np:
    """ % dict(KA0=KA0, VA0=VA0, VINC=VINC, IDX=IDX, cb0=CB, cb1=CB + 16))
    k.mark()
    a("s_waitcnt vmcnt(2) lgkmcnt(0)\ns_barrier")
    k.mark()
    a("ds_read_b128 %s, v%d" % (R(KB, 4), KA0))
    a("s_waitcnt lgkmcnt(0)")
    a("v_mfma_f32_32x32x16_bf16 %s, %s, %s, 0" % (R(S0, 16), R(KB, 4), R(Q, 4)))
    a("v_mfma_f32_32x32x16_bf16 %s, %s, %s, 0" % (R(S1, 16), R(KB, 4), R(Q + 4, 4)))
    for x, S in ((4, S0), (5, S1)):
        a("v_max3_f32 v%d, v%d, v%d, v%d" % (x, S, S + 1, S + 2))
        for r in range(3, 15, 2): a("v_max3_f32 v%d, v%d, v%d, v%d" % (x, x, S + r, S + r + 1))
        a("v_max_f32 v%d, v%d, v%d" % (x, x, S + 15))
    a("L_att_setm:")
    a("v_mov_b32 v6, v%d\nv_mov_b32 v7, v%d" % (KA0, VA0))
    def rdk(i, off): a("ds_read_b128 %s, v6 offset:%d" % (R(KB + 4 * i, 4), off))
    def rdv(i, f, off): a("ds_read_b128 %s, v7 offset:%d" % (R(VB + 8 * i + 4 * f, 4), off))
    rdk(0, 0); rdv(0, 0, 0); rdv(0, 1, 512); rdk(1, 1024)
    a("v_mov_b32 v10, v4\nv_mov_b32 v11, v5\nv_permlane32_swap_b32 v4, v10\nv_permlane32_swap_b32 v5, v11")
    a("v_max_f32 v4, v4, v10\nv_max_f32 v5, v5, v11")
    for r in range(16): a("v_sub_f32 v%d, 0, v4" % (CM + r))
    def qk(S, i, q):
        if OPT.get("noqk"): a("s_nop 0"); return
        a("v_mfma_f32_32x32x16_bf16 %s, %s, %s, %s" % (R(S, 16), R(KB + 4 * i, 4), R(Q + 4 * q, 4), R(CM + 16 * q, 16)))
    def pv(i, f, S, q):
        if OPT.get("nopv"): a("s_nop 0"); return
        a("v_smfmac_f32_32x32x32_bf16 %s, %s, %s, v%d" % (R(OA + 16 * q, 16), R(VB + 8 * i + 4 * f, 4), R(S + 8 * f, 8), IDX))
    def ex(S, lo, hi):
        for r in range(lo, hi):
            if OPT.get("noexp"): a("s_nop 1")
            else: a("v_exp_f32 v%d, v%d" % (S + r, S + r))
    a("s_waitcnt lgkmcnt(3)")
    qk(S0, 0, 0)
    for r in range(16): a("v_sub_f32 v%d, 0, v5" % (CM + 16 + r))
    for r in range(32): a("v_mov_b32 v%d, 0" % (OA + r))
    for r in range(8): a("v_mov_b32 v%d, 0" % (S1 + 8 + r))
    for r in range(4): a("v_mov_b32 v%d, 0" % (VB + 12 + r))
    a("s_mov_b32 s63, s62")
    a("s_add_u32 s64, s62, 8")
    k.mark()
    a(".p2align 6")
    a("L_att_loop:")
    a("s_cmp_lt_u32 s63, 2\ns_cbranch_scc1 L_att_issue")
    a("L_att_back1:")
    for u in range(8):
        t, q = u >> 1, u & 1
        Sc, Sn = (S0, S1) if q == 0 else (S1, S0)
        if u == 4:
            a("s_cmp_lt_u32 s63, 3\ns_cbranch_scc1 L_att_sync")
            a("L_att_back2:")
        ex(Sc, 0, 2)
        pv((t - 1 + q) & 1, 1, Sn, 1 - q)
        if q == 0:
            rdv((t + 1) & 1, 0, (t + 1) * 1024); rdv((t + 1) & 1, 1, (t + 1) * 1024 + 512)
        ex(Sc, 2, 5)
        qk(Sn, (t + q) & 1, 1 - q)
        if q == 0: rdk(t & 1, (t + 2) * 1024)
        ex(Sc, 5, 10)
        if q == 0: a("s_waitcnt lgkmcnt(3)")
        pv(t & 1, 0, Sc, q)
        if u == 7:
            a("v_add_u32 v6, 4096, v6\nv_add_u32 v7, v%d, v7" % VINC)
            a("s_add_u32 s63, s63, 1")
            a("s_cmp_eq_u32 s63, %d\ns_cbranch_scc0 L_att_kp\ns_setprio 0\nL_att_kp:" % OPT.get("sw", 6))
            a("s_cmp_lt_u32 s63, s64")
        ex(Sc, 10, 16)
    a("s_cbranch_scc1 L_att_loop")
    pv(1, 1, S1, 1)
    k.mark()
    a("s_waitcnt lgkmcnt(0)")
    a("v_mov_b32 v5, 0x4e800000")
    a("v_cmp_nlt_f32 vcc, v%d, v5" % (OA + 8))
    a("v_cmp_nlt_f32 s[66:67], v%d, v5" % (OA + 24))
    a("s_or_b64 vcc, vcc, s[66:67]")
    a("s_cmp_eq_u32 s62, 0\ns_cbranch_scc0 L_att_out")
    if not OPT.get("noslow"): a("s_cbranch_vccnz L_att_slow")
    a("L_att_out:")
    a("""
    s_mul_i32 s52, s3, 3072
    s_add_u32 s52, s52, 0x%x
    v_add_u32 v6, s52, v9
    s_xor_b32 s53, s3, 4
    s_mul_i32 s53, s53, 3072
    s_add_u32 s53, s53, 0x%x
    v_add_u32 v7, s53, v9
    v_mov_b32 v%d, v%d
    ds_write_b128 v6, %s
    ds_write_b128 v6, %s offset:1024
    ds_write_b64 v6, %s offset:2048
    s_lshl_b32 s46, s44, 15
    s_lshl_b32 s47, s42, 10
    s_add_u32 s46, s46, s47
    s_add_u32 s46, s46, 0x%x
    s_waitcnt lgkmcnt(0)
    s_barrier
    ds_read_b64 v[56:57], v7 offset:2048
    ds_read_b128 v[48:51], v7
    ds_read_b128 v[52:55], v7 offset:1024
    s_waitcnt lgkmcnt(2)
    v_min_f32 v4, v%d, v57
    v_sub_f32 v5, v4, v%d
    v_sub_f32 v4, v4, v57
    v_exp_f32 v10, v5
    v_exp_f32 v4, v4
    v_mul_f32 v5, v10, v%d
    v_fmac_f32 v5, v4, v56
    v_rcp_f32 v5, v5
    v_mul_f32 v10, v10, v5
    v_mul_f32 v4, v4, v5
    s_waitcnt lgkmcnt(0)
    """ % (XB, XB, OA + 25, CM + 16, R(OA + 16, 4), R(OA + 20, 4), R(OA + 24, 2), OFF["OF"], CM, CM, OA + 8))
    for r in range(8):
        a("v_mul_f32 v%d, v10, v%d" % (OA + r, OA + r))
        a("v_fmac_f32 v%d, v4, v%d" % (OA + r, 48 + r))
    for r in range(4): a("v_cvt_pk_bf16_f32 v%d, v%d, v%d" % (OA + r, OA + 2 * r, OA + 2 * r + 1))
    a("buffer_store_dwordx4 %s, v9, s[8:11], s46 offen" % R(OA, 4))
    a("L_att_end:")
    a("s_endpgm")
    a("L_att_issue:")
    group(); group(); group()
    a("s_branch L_att_back1")
    a("L_att_sync:")
    a("s_cmp_eq_u32 s63, 2\ns_cbranch_scc0 L_att_s6\ns_waitcnt vmcnt(0)\nL_att_s6:\ns_waitcnt vmcnt(6)\ns_barrier\ns_branch L_att_back2")
    a("L_att_slow:")
    a("s_mov_b32 s62, 16\ns_mov_b32 s63, 0\nv_mov_b32 v6, v%d\nv_mov_b32 v4, 0xff800000\nv_mov_b32 v5, 0xff800000" % KA0)
    a("L_att_maxloop:")
    a("ds_read_b128 %s, v6" % R(KB, 4))
    a("s_waitcnt lgkmcnt(0)")
    a("v_mfma_f32_32x32x16_bf16 %s, %s, %s, 0" % (R(S0, 16), R(KB, 4), R(Q, 4)))
    a("v_mfma_f32_32x32x16_bf16 %s, %s, %s, 0" % (R(S1, 16), R(KB, 4), R(Q + 4, 4)))
    a("v_add_u32 v6, 1024, v6")
    for x, S in ((4, S0), (5, S1)):
        for r in range(0, 16, 2): a("v_max3_f32 v%d, v%d, v%d, v%d" % (x, x, S + r, S + r + 1))
    a("s_add_u32 s63, s63, 1\ns_cmp_lt_u32 s63, 32\ns_cbranch_scc1 L_att_maxloop")
    a("s_branch L_att_setm")
    return k, 256, 512, XB + 8 * 3072
```

```python
import numpy as np, math

S, D, H, DH = 2048, 512, 32, 16
OFF = dict(U32=0x000000, UB=0x400000, WT=0x600000, WP=0x800000, WOP=0xA00000, WOF=0xA80000,
           QF=0xC00000, KF=0xE00000, VF=0x1000000, OF=0x1200000, SSQ0=0x1400000, SSQ2=0x1402000)
WS_USED = 0x1404000

def f2bf(x):
    x = np.ascontiguousarray(x, np.float32)
    u = x.view(np.uint32).astype(np.uint64)
    return ((u + 0x7FFF + ((u >> 16) & 1)) >> 16).astype(np.uint16)
def bf2f(u):
    return (np.asarray(u, np.uint16).astype(np.uint32) << 16).view(np.float32)
def rbf(x): return bf2f(f2bf(x))
def swap23(m): return (m & ~12) | ((m & 4) << 1) | ((m & 8) >> 1)
def pi_d(m): return 16 * ((m >> 2) & 1) + 4 * (m >> 3) + (m & 3)
def s_of_r(r): return 64 * (r & 31) + (r >> 5)

def cos512():
    return f2bf(np.cos(2 * np.pi * np.arange(512) / 512) / 16)

def F_idx():
    d = np.arange(512)[:, None]; c = np.arange(512)[None, :]
    idx = ((c >> 1) * d + 128 * (c & 1)) & 511
    idx[:, 0] = (256 * np.arange(512) + 64) & 511
    idx[:, 1] = 64
    return idx
def F_mat():
    return bf2f(cos512()[F_idx()])

lane = np.arange(64); m32 = lane & 31; h32 = lane >> 5; m16 = lane & 15; q16 = lane >> 4
j8 = np.arange(8)

def tab_M1():
    T = np.zeros((4, 2, 64, 8), np.float64)
    for mt in range(4):
        for t in range(2):
            j1 = (8 * mt + (m16 >> 1))[:, None]; cp = (m16 & 1)[:, None]
            a = 8 * q16[:, None] + j8[None, :]
            th = 2 * np.pi * a * j1 / 32
            if t == 0: T[mt, t] = np.where(cp == 0, np.cos(th), -np.sin(th))
            else:      T[mt, t] = np.where(cp == 0, np.sin(th), np.cos(th))
    return f2bf(T)
def tab_M2():
    T = np.zeros((4, 8, 64, 8), np.float64)
    for w in range(4):
        for t in range(8):
            o = (16 * w + (m32 >> 1))[:, None]; cp = (m32 & 1)[:, None]
            b = 8 * t + 4 * h32[:, None] + (j8[None, :] >> 1); comp = (j8 & 1)[None, :]
            th = 2 * np.pi * o * b / 64
            T[w, t] = np.where(cp == comp, np.cos(th), np.where(cp == 0, np.sin(th), -np.sin(th)))
    return f2bf(T)
def tab_M3():
    T = np.zeros((4, 2, 64, 8), np.float64)
    for cp in range(2):
        for ah in range(2):
            for t in range(2):
                a = (8 * (m16 >> 2) + 4 * ah + (m16 & 3))[:, None]
                j1 = 16 * t + 4 * q16[:, None] + (j8[None, :] >> 1); comp = (j8 & 1)[None, :]
                th = 2 * np.pi * a * j1 / 32
                if cp == 0: v = np.where(comp == 0, np.cos(th), np.sin(th))
                else:       v = np.where(comp == 0, np.sin(th), -np.cos(th))
                T[2 * cp + ah, t] = v / 2048
    return f2bf(T)
def tab_ID(perm):
    T = np.zeros((2, 64, 8), np.float64)
    for t in range(2):
        k = 16 * t + 8 * h32[:, None] + j8[None, :]
        T[t] = (k == perm(m32)[:, None])
    return f2bf(T)

def frag(X, rowmap=None, kmap=None):
    R, K = X.shape
    rm = m32 if rowmap is None else rowmap(m32)
    km = (8 * h32[:, None] + j8[None, :]) if kmap is None else kmap(h32[:, None], j8[None, :])
    rows = 32 * np.arange(R // 32)[:, None, None, None] + rm[None, None, :, None]
    ks = 16 * np.arange(K // 16)[None, :, None, None] + km[None, None, :, :]
    return X[rows, ks]
def kmap_d(h, j): return 8 * (j >> 2) + 4 * h + (j & 3)
```

```python
import numpy as np, math
from layouts import f2bf, bf2f, rbf, swap23, pi_d, cos512, F_idx, F_mat, frag, kmap_d, lane, m32, h32, m16, q16, j8, tab_M2

OFF = dict(UC=0x000000, UB=0x200000, WT=0x400000, WP=0x600000, WOP=0x800000, WOF=0x880000,
           QF=0xA00000, KF=0xC00000, VF=0xE00000, OF=0x1000000, SSQ0=0x1200000, SSQ2=0x1202000)
WS_USED = 0x1204000

def s_of_r(r):
    b = ((r >> 9) << 4) | (r & 15)
    a = (((r >> 4) & 3) << 3) | ((r >> 6) & 7)
    return 64 * a + b
def ssq_pos(r):
    w = r >> 9; v = (r >> 6) & 7; ln = r & 63
    return 512 * w + 256 * (v >> 2) + 4 * ln + (v & 3)

def tab_M1():
    T = np.zeros((4, 2, 64, 8), np.float64)
    for tau in range(4):
        for t in range(2):
            o = (8 * (m16 >> 2) + 2 * tau + ((m16 & 3) >> 1))[:, None]; cp = (m16 & 1)[:, None]
            n = 8 * q16[:, None] + 4 * t + (j8[None, :] >> 1); comp = (j8 & 1)[None, :]
            th = 2 * np.pi * o * n / 32
            T[tau, t] = np.where(cp == comp, np.cos(th), np.where(cp == 0, np.sin(th), -np.sin(th)))
    return f2bf(T)
```

```python
import sys, math
import numpy as np
from asmlib import Asm
from layouts2 import *

NAME = "interleave_layers__spectral_gfnet__softmax_full_mha__prompt"
KA = dict(x=0, wr=8, wi=16, wqkv=32, wo=40, out=48, dbg=56, ws=64)
SIZE = dict(x=2097152, wr=1052672, wi=1052672, wqkv=1572864, wo=524288, out=2097152, ws=WS_USED)
TOFF = dict(T1=0, T2=0x80000, M1=0x100000, M2=0x102000)
TSIZE = 0x10A000
LOG2E = 1.4426950408889634
STAMP = False
OPT = {}
def fbits(x): return int(np.float32(x).view(np.uint32))
def R(b, n): return "v[%d:%d]" % (b, b + n - 1)

class K:
    def __init__(self, name, vgpr, sgpr=96):
        self.name = name; self.vgpr = vgpr; self.sgpr = sgpr
        self.a = Asm()
        self.a.raw(".text\n.globl %s\n.p2align 8\n.type %s,@function" % (name, name))
        self.a(name + ":")
        self.nm = 0
        if STAMP:
            self.a.raw("    s_memrealtime s[84:85]\n    s_memtime s[86:87]\n    v_lshrrev_b32 v4, 6, v0\n    s_nop 1\n    v_readfirstlane_b32 s94, v4\n    s_mov_b32 s95, 0")
            self.a.raw("    s_waitcnt lgkmcnt(0)\n" + "\n".join("    s_mov_b32 s%d, s86" % (24 + 2 * i) for i in range(8)))
    def mark(self, i=None):
        if STAMP:
            if i is None: i = self.nm
            self.nm = i + 1
            assert i < 7
            self.a.raw("    s_memtime s[%d:%d]" % (24 + 2 * i, 25 + 2 * i))
    def text(self):
        t = self.a.text()
        if STAMP and "s_endpgm" in t:
            t = t.replace("    s_endpgm", "    s_branch %s_stamp" % self.name)
            t += """%s_stamp:
    s_memtime s[38:39]
    s_waitcnt vmcnt(0) lgkmcnt(0)
    s_memrealtime s[88:89]
    s_memtime s[90:91]
    s_load_dwordx2 s[80:81], s[0:1], 64
    s_load_dwordx2 s[92:93], s[0:1], 56
    s_mov_b32 s82, 0x4000000
    s_mov_b32 s83, 0x00020000
    s_waitcnt lgkmcnt(0)
    s_lshr_b32 s92, s92, 9
    s_and_b32 s92, s92, 63
    s_lshl_b32 s92, s92, 20
    s_lshl_b32 s93, s2, 10
    s_add_u32 s92, s92, s93
    s_lshl_b32 s93, s94, 6
    s_add_u32 s92, s92, s93
    s_add_u32 s92, s92, 0x2000000
    s_sub_u32 s90, s90, s86
    s_mov_b64 exec, 1
    v_mov_b32 v0, 0
    v_mov_b32 v4, s84
    v_mov_b32 v5, s88
    v_mov_b32 v6, s90
    v_mov_b32 v7, s95
    buffer_store_dwordx4 v[4:7], v0, s[80:83], s92 offen
""" % self.name
            for i in range(8): t += "    s_sub_u32 s%d, s%d, s86\n    v_mov_b32 v%d, s%d\n" % (24 + 2 * i, 24 + 2 * i, 8 + i, 24 + 2 * i)
            t += "    buffer_store_dwordx4 v[8:11], v0, s[80:83], s92 offen offset:16\n    buffer_store_dwordx4 v[12:15], v0, s[80:83], s92 offen offset:32\n    s_endpgm\n"
        return t
    def desc(self):
        return """.section .rodata,"a"
.p2align 6
.amdhsa_kernel %s
  .amdhsa_next_free_vgpr %d
  .amdhsa_next_free_sgpr %d
  .amdhsa_accum_offset %d
  .amdhsa_group_segment_fixed_size 0
  .amdhsa_kernarg_size 72
  .amdhsa_user_sgpr_count 2
  .amdhsa_user_sgpr_kernarg_segment_ptr 1
  .amdhsa_system_sgpr_workgroup_id_x 1
.end_amdhsa_kernel
""" % (self.name, self.vgpr, self.sgpr, (self.vgpr + 3) // 4 * 4)

def srd_load(a, s, what):
    a("s_load_dwordx2 s[%d:%d], s[0:1], %d" % (s, s + 1, KA[what]))
    a("s_mov_b32 s%d, 0x%x" % (s + 2, SIZE[what]))
    a("s_mov_b32 s%d, 0x00020000" % (s + 3))
def srd_tab(a, s):
    a("s_getpc_b64 s[%d:%d]" % (s, s + 1))
    a.raw("    s_add_u32 s%d, s%d, tables@rel32@lo+4" % (s, s))
    a.raw("    s_addc_u32 s%d, s%d, tables@rel32@hi+12" % (s + 1, s + 1))
    a("s_mov_b32 s%d, 0x%x" % (s + 2, TSIZE))
    a("s_mov_b32 s%d, 0x00020000" % (s + 3))
def lane_setup(a):
    a("""
    v_lshrrev_b32 v4, 6, v0
    v_and_b32 v1, 63, v0
    v_readfirstlane_b32 s3, v4
    v_and_b32 v2, 31, v0
    v_lshrrev_b32 v3, 5, v1
    v_lshlrev_b32 v9, 4, v1
    """)

ACC = 16
def g64_ids(a):
    a("""
    s_and_b32 s40, s2, 7
    s_lshr_b32 s41, s2, 3
    s_and_b32 s42, s40, 1
    s_lshl_b32 s42, s42, 2
    s_and_b32 s47, s41, 3
    s_add_u32 s42, s42, s47         ; cb
    s_lshr_b32 s43, s40, 1
    s_lshl_b32 s43, s43, 3
    s_lshr_b32 s48, s41, 2
    s_add_u32 s43, s43, s48         ; rb
    s_lshl_b32 s47, s47, 1
    s_add_u32 s51, s47, s48
    s_lshr_b32 s40, s3, 1
    s_and_b32 s41, s3, 1
    s_lshl_b32 s44, s42, 1
    s_add_u32 s44, s44, s40
    s_lshl_b32 s46, s43, 1
    s_add_u32 s46, s46, s41
    s_lshl_b32 s52, s3, 15
    s_lshl_b32 s40, s40, 15
    v_add_u32 v10, s40, v9
    s_lshl_b32 s40, s41, 15
    s_add_u32 s49, s40, 0x10000
    s_cmp_lt_u32 s3, 2
    s_cselect_b32 s45, s42, s43
    s_lshl_b32 s45, s45, 1
    s_add_u32 s45, s45, s41
    s_cmp_lt_u32 s3, 2
    """)
def g64_issue(a, ch, general, base="s50"):
    a("s_add_u32 s53, s51, %d\ns_and_b32 s53, s53, 7" % ch)
    if general:
        a("s_lshl_b32 s53, s53, s54\ns_add_u32 s53, s53, %s\ns_add_u32 s56, s53, s55" % base)
        for i in range(4):
            a("s_add_u32 m0, s52, %d" % (ch * 4096 + i * 1024))
            a("buffer_load_dwordx4 v%d, s[20:23], s%d offen lds" % (12 + (i >> 1), 53 if i % 2 == 0 else 56))
    else:
        a("s_lshl_b32 s53, s53, 12\ns_add_u32 m0, s52, %d\ns_add_u32 s53, s53, %s" % (ch * 4096, base))
        for i in range(4):
            a("buffer_load_dwordx4 v9, s[20:23], s53 offen offset:%d lds" % (i * 1024))
def g64_compute(a, ch, rowB, first, hook=None):
    for t in range(4):
        a("ds_read_b128 %s, v10 offset:%d" % (R(32 + 8 * t, 4), ch * 4096 + t * 1024))
        if rowB: a("ds_read_b128 %s, v%d offset:%d" % (R(36 + 8 * t, 4), 14 + (t & 1), ch * 4096 + (t >> 1) * 1024))
        else:    a("ds_read_b128 %s, v11 offset:%d" % (R(36 + 8 * t, 4), ch * 4096 + t * 1024))
    for t in range(4):
        a("s_waitcnt lgkmcnt(%d)" % (6 - 2 * t))
        a("v_mfma_f32_32x32x16_bf16 %s, %s, %s, %s" % (R(ACC, 16), R(32 + 8 * t, 4), R(36 + 8 * t, 4), "0" if (first and t == 0) else R(ACC, 16)))
        if hook: hook(36 + 8 * t)
PRE = 4
def g64_run(k, general, rowB, marks, hook=None, first=True):
    a = k.a
    for ch in range(8):
        a.wait_vm(marks[ch]); a("s_barrier")
        if ch == 0: k.mark()
        if ch + PRE < 8:
            g64_issue(a, ch + PRE, general); marks.append(a.vm - 1)
        g64_compute(a, ch, rowB, first and ch == 0, hook)
    k.mark()

def uc_store(a):
    for p in range(8): a("v_cvt_pk_bf16_f32 v%d, v%d, v%d" % (32 + p, ACC + 2 * p, ACC + 2 * p + 1))
    for p in range(8): a("buffer_store_dword v%d, v5, s[8:11], s%d offen" % (32 + p, 64 + p))
def uc_addr(a):
    a("s_lshl_b32 s40, s44, 17\ns_lshl_b32 s41, s46, 7\ns_add_u32 s40, s40, s41\ns_add_u32 s64, s40, 0x%x" % OFF["UC"])
    for p in range(1, 8): a("s_add_u32 s%d, s64, %d" % (64 + p, (8 * (p >> 2) + (p & 3)) * 8192))
    a("v_lshlrev_b32 v5, 15, v3\nv_lshl_add_u32 v5, v2, 2, v5")
def ssq_addr(a, dst):
    a("""
    s_lshr_b32 s40, s46, 3
    s_lshl_b32 s40, s40, 10
    s_lshr_b32 s41, s46, 1
    s_and_b32 s41, s41, 3
    s_lshl_b32 s41, s41, 2
    s_add_u32 s40, s40, s41
    s_and_b32 s41, s46, 1
    s_lshl_b32 s41, s41, 9
    s_add_u32 %s, s40, s41
    v_lshlrev_b32 v6, 4, v2
    """ % dst)

def rowmajor_addrs(a, rowstride_shift, rh_stride, bbase):
    a("""
    v_lshrrev_b32 v4, 2, v1
    v_lshrrev_b32 v7, 4, v1
    v_xor_b32 v7, v7, v1
    v_and_b32 v7, 3, v7
    v_lshlrev_b32 v7, 4, v7
    v_lshl_add_u32 v12, v4, %d, v7
    v_add_u32 v13, 0x%x, v12
    v_bfe_u32 v4, v1, 2, 2
    v_xor_b32 v4, v4, v3            ; h ^ x
    v_and_b32 v7, 15, v1
    v_lshlrev_b32 v7, 6, v7
    v_bfe_u32 v8, v1, 4, 1
    v_lshl_add_u32 v7, v8, 11, v7
    v_add_u32 v7, %s, v7
    v_lshl_add_u32 v14, v4, 4, v7
    v_xor_b32 v15, 32, v14
    """ % (rowstride_shift, rh_stride, bbase))

def k_prep():
    k = K("prep_kernel", 128); a = k.a
    a("s_cmp_ge_u32 s2, 256\ns_cbranch_scc1 L_prep_end")
    srd_load(a, 8, "ws"); srd_load(a, 12, "x")
    lane_setup(a)
    a("s_cmp_eq_u32 s3, 4\ns_cbranch_scc1 L_prep_D")
    srd_tab(a, 16)
    g64_ids(a)
    rowmajor_addrs(a, 10, 512 * 1024, "s49")
    a("""
    s_and_b32 s40, s45, 1
    s_lshl_b32 s40, s40, 20
    s_lshr_b32 s41, s45, 1
    s_and_b32 s41, s41, 7
    s_lshl_b32 s41, s41, 16
    s_add_u32 s40, s40, s41
    s_lshr_b32 s41, s45, 4
    s_lshl_b32 s41, s41, 14
    s_add_u32 s40, s40, s41
    s_lshl_b32 s41, s45, 15
    v_add_u32 v4, 2048, v9
    s_cmp_lt_u32 s3, 2
    s_cselect_b32 s50, s41, s40
    s_cselect_b32 s54, 12, 7
    s_cselect_b32 s55, 1024, 64
    s_cselect_b64 vcc, -1, 0
    v_cndmask_b32 v12, v12, v9, vcc
    v_cndmask_b32 v13, v13, v4, vcc
    s_waitcnt lgkmcnt(0)
    s_cselect_b64 s[20:21], s[16:17], s[12:13]
    s_cselect_b32 s22, s18, s14
    s_mov_b32 s23, 0x00020000
    """)
    k.mark()
    marks = []
    for ch in range(PRE):
        g64_issue(a, ch, True); marks.append(a.vm - 1)
    k.mark()
    uc_addr(a); ssq_addr(a, "s57")
    a("v_mov_b32 v7, 0\nv_mov_b32 v8, 0")
    def hook(r):
        for i in range(4): a("v_dot2c_f32_bf16 v%d, v%d, v%d" % (7 + (i & 1), r + i, r + i))
    g64_run(k, True, True, marks, hook)
    uc_store(a)
    a("s_cmp_eq_u32 s44, 0\ns_cbranch_scc0 L_prep_end")
    a("""
    v_add_f32 v7, v7, v8
    v_mov_b32 v8, v7
    v_permlane32_swap_b32 v7, v8
    v_add_f32 v7, v7, v8
    v_fma_f32 v7, -v%d, v%d, v7
    v_mov_b32 v8, 0
    s_add_u32 s40, s57, 0x%x
    s_add_u32 s41, s57, 0x%x
    s_mov_b32 exec_hi, 0
    buffer_store_dword v7, v6, s[8:11], s40 offen
    buffer_store_dword v8, v6, s[8:11], s41 offen
    s_endpgm
    """ % (ACC + 1, ACC + 1, OFF["SSQ0"], OFF["SSQ2"]))
    a("L_prep_D:")
    srd_load(a, 16, "wr"); srd_load(a, 20, "wi")
    a("""
    s_lshr_b32 s42, s2, 2
    s_and_b32 s43, s42, 3          ; oct
    s_lshr_b32 s44, s42, 2
    s_and_b32 s44, s44, 1          ; half
    s_lshr_b32 s45, s42, 3         ; w4*2+p  (0..7)
    s_lshl_b32 s46, s45, 3
    s_lshl_b32 s47, s44, 1
    s_add_u32 s46, s46, s47        ; j2 base
    s_lshl_b32 s46, s46, 5
    s_lshl_b32 s47, s43, 3
    s_add_u32 s46, s46, s47        ; j base
    s_mul_i32 s48, s46, 514
    s_add_u32 s49, s48, %d
    s_add_u32 s50, s48, %d
    s_add_u32 s51, s48, %d
    s_and_b32 s47, s2, 3
    s_lshl_b32 s47, s47, 6
    v_add_u32 v4, s47, v1          ; slot k
    v_lshlrev_b32 v5, 1, v4
    v_mov_b32 v6, 512
    v_cmp_eq_u32 vcc, 0, v4
    v_cndmask_b32 v5, v5, v6, vcc
    s_lshl_b32 s40, s45, 10
    s_lshl_b32 s41, s44, 9
    s_add_u32 s40, s40, s41
    s_lshl_b32 s41, s43, 7
    s_add_u32 s40, s40, s41
    s_add_u32 s40, s40, 0x%x
    v_lshlrev_b32 v7, 13, v4
    s_waitcnt lgkmcnt(0)
    """ % (32 * 514, 4 * 32 * 514, 5 * 32 * 514, OFF["WT"]))
    base = a.vm
    for o in range(8):
        if o == 7: a("s_waitcnt vmcnt(48)")
        for e4 in range(4):
            a("buffer_load_ushort v%d, v5, s[16:19], s%d offen offset:%d" % (64 + 4 * o + e4, 48 + e4, o * 514))
            a("buffer_load_ushort v%d, v5, s[20:23], s%d offen offset:%d" % (96 + 4 * o + e4, 48 + e4, o * 514))
    for o in range(8):
        a.wait_vm(base + 8 * o + 7)
        for e4 in range(4):
            a("v_lshl_or_b32 v%d, v%d, 16, v%d" % (64 + 4 * o + e4, 96 + 4 * o + e4, 64 + 4 * o + e4))
        a("buffer_store_dwordx4 %s, v7, s[8:11], s40 offen offset:%d" % (R(64 + 4 * o, 4), 16 * o))
    a("L_prep_end:")
    a("s_endpgm")
    return k, 256, 320, 131072

def k_oproj():
    k = K("oproj_kernel", 80); a = k.a
    a("s_cmp_ge_u32 s2, 256\ns_cbranch_scc1 L_op_end")
    srd_load(a, 8, "ws"); srd_load(a, 20, "ws")
    lane_setup(a)
    g64_ids(a)
    a("""
    s_cselect_b32 s50, 0x%x, 0x%x
    s_lshl_b32 s40, s45, 15
    s_add_u32 s50, s50, s40
    v_add_u32 v11, s49, v9
    s_lshl_b32 s40, s46, 15
    s_lshl_b32 s41, s44, 11
    s_add_u32 s40, s40, s41
    s_add_u32 s57, s40, 0x%x
    s_waitcnt lgkmcnt(0)
    """ % (0, OFF["OF"] - OFF["WOP"], OFF["UB"]))
    a("s_add_u32 s50, s50, 0x%x" % OFF["WOP"])
    k.mark()
    marks = []
    for ch in range(PRE):
        g64_issue(a, ch, False); marks.append(a.vm - 1)
        if ch == 1:
            a("buffer_load_dwordx4 v[64:67], v9, s[8:11], s57 offen\nbuffer_load_dwordx4 v[68:71], v9, s[8:11], s57 offen offset:1024")
    k.mark()
    uc_addr(a); ssq_addr(a, "s57")
    g64_run(k, False, False, marks)
    for p in range(8):
        a("v_lshlrev_b32 v32, 16, v%d\nv_and_b32 v33, 0xffff0000, v%d" % (64 + p, 64 + p))
        a("v_pk_add_f32 %s, %s, v[32:33]" % (R(ACC + 2 * p, 2), R(ACC + 2 * p, 2)))
    uc_store(a)
    a("v_add_u32 v4, s44, v3\nv_cmp_eq_u32 vcc, 0, v4\nv_cndmask_b32 v7, v%d, v4, vcc" % (ACC + 1))
    a("v_mul_f32 v7, v7, v7\nv_mul_f32 v8, v%d, v%d" % (ACC, ACC))
    for r in range(2, 16): a("v_fmac_f32 v%d, v%d, v%d" % (7 + (r & 1), ACC + r, ACC + r))
    a("""
    v_add_f32 v7, v7, v8
    v_mov_b32 v8, v7
    v_permlane32_swap_b32 v7, v8
    v_add_f32 v7, v7, v8
    s_add_u32 s41, s57, 0x%x
    s_mov_b32 exec_hi, 0
    buffer_atomic_add_f32 v7, v6, s[8:11], s41 offen
    """ % OFF["SSQ2"])
    a("L_op_end:")
    a("s_endpgm")
    return k, 256, 256, 131072

def k_final():
    k = K("final_kernel", 80); a = k.a
    a("s_cmp_ge_u32 s2, 256\ns_cbranch_scc1 L_fin_end")
    srd_load(a, 8, "ws"); srd_load(a, 12, "out"); srd_tab(a, 16)
    lane_setup(a)
    g64_ids(a)
    a("""
    s_cselect_b32 s50, 0x%x, 0
    s_cselect_b32 s58, 0, 0x%x
    s_add_u32 s50, s50, s58
    s_lshl_b32 s40, s45, 15
    s_add_u32 s50, s50, s40
    s_cmp_lt_u32 s3, 2
    s_cselect_b32 s58, 0, 0x%x
    s_add_u32 s58, s58, s40
    s_add_u32 s58, s58, 0x%x
    v_add_u32 v11, s49, v9
    s_cmp_lt_u32 s3, 2
    s_waitcnt lgkmcnt(0)
    s_cselect_b64 s[20:21], s[16:17], s[8:9]
    s_cselect_b32 s22, s18, s10
    s_mov_b32 s23, 0x00020000
    """ % (TOFF["T2"], OFF["UB"], OFF["OF"] - OFF["WOF"], OFF["WOF"]))
    k.mark()
    marks = []
    for ch in range(PRE):
        g64_issue(a, ch, False); marks.append(a.vm - 1)
    k.mark()
    a("""
    s_and_b32 s40, s46, 1
    s_lshl_b32 s40, s40, 20
    s_lshr_b32 s41, s46, 1
    s_and_b32 s41, s41, 7
    s_lshl_b32 s41, s41, 16
    s_add_u32 s40, s40, s41
    s_lshr_b32 s41, s46, 4
    s_lshl_b32 s41, s41, 14
    s_add_u32 s40, s40, s41
    s_lshl_b32 s41, s44, 6
    s_add_u32 s57, s40, s41
    v_and_b32 v5, 15, v1
    v_lshlrev_b32 v5, 10, v5
    v_bfe_u32 v4, v1, 4, 1
    v_lshl_add_u32 v5, v4, 19, v5
    v_lshl_add_u32 v5, v3, 5, v5
    """)
    for ch in range(16):
        a.wait_vm(marks[ch]); a("s_barrier")
        if ch == 0: k.mark()
        n = ch + PRE
        if n == 8: a("s_mov_b64 s[20:21], s[8:9]\ns_mov_b32 s22, s10")
        if n < 16:
            g64_issue(a, n & 7, False, "s50" if n < 8 else "s58"); marks.append(a.vm - 1)
        g64_compute(a, ch & 7, False, ch == 0)
    k.mark()
    for p in range(8): a("v_cvt_pk_bf16_f32 v%d, v%d, v%d" % (32 + p, ACC + 2 * p, ACC + 2 * p + 1))
    a("buffer_store_dwordx4 v[32:35], v5, s[12:15], s57 offen\nbuffer_store_dwordx4 v[36:39], v5, s[12:15], s57 offen offset:16")
    a("L_fin_end:")
    a("s_endpgm")
    return k, 256, 256, 131072

def wprep_roles(k):
    a = k.a
    TF = 48; AC = 24
    a("L_wp:")
    srd_load(a, 12, "wqkv"); srd_load(a, 20, "wo")
    a("s_cmp_ge_u32 s2, 512\ns_cbranch_scc1 L_wp_F")
    a("""
    s_sub_u32 s42, s2, 256
    s_and_b32 s43, s42, 3
    s_lshl_b32 s43, s43, 2
    s_add_u32 s43, s43, s3          ; ct
    s_lshr_b32 s44, s42, 2
    s_lshl_b32 s45, s43, 15
    s_lshl_b32 s52, s3, 13
    s_cmp_ge_u32 s44, 48
    s_cbranch_scc1 L_wp_C
    """)
    a("""
    v_lshrrev_b32 v4, 2, v1
    s_movk_i32 s40, 3072
    v_mul_lo_u32 v12, v4, s40
    v_and_b32 v4, 3, v1
    v_lshl_add_u32 v12, v4, 4, v12  ; row*3072 + chunk*16
    s_mul_i32 s46, s3, %d
    s_lshl_b32 s41, s44, 6
    s_add_u32 s46, s46, s41
    s_waitcnt lgkmcnt(0)
    """ % (128 * 3072))
    for i in range(8):
        a("s_add_u32 m0, s52, %d" % (i * 1024))
        a("buffer_load_dwordx4 v12, s[12:15], s46 offen lds")
        if i < 7: a("s_add_u32 s46, s46, %d" % (16 * 3072))
    m_sh = a.vm - 1
    def t1_loads():
        ms = []
        for t in range(32):
            if t % 4 == 0: a("s_add_u32 s47, s45, %d" % (TOFF["T1"] + t * 1024))
            a("buffer_load_dwordx4 %s, v9, s[16:19], s47 offen offset:%d" % (R(TF + 4 * t, 4), 1024 * (t & 3)))
            ms.append(a.vm - 1)
        return ms
    ms = t1_loads()
    a("""
    v_bfe_u32 v4, v1, 2, 2
    v_lshl_add_u32 v4, v3, 3, v4
    v_lshlrev_b32 v4, 6, v4
    v_bfe_u32 v5, v1, 4, 1
    v_lshl_add_u32 v4, v5, 5, v4
    v_and_b32 v5, 3, v1
    v_lshl_add_u32 v13, v5, 3, v4
    """)
    a.wait_vm(m_sh); a("s_barrier")
    for t0 in range(0, 32, 4):
        for t in range(t0, t0 + 4):
            b = 8 + 4 * (t & 3) if False else None
        for t in range(t0, t0 + 2):
            pass
        for t in range(t0, t0 + 4):
            b = 176 + 4 * (t & 3)
            a("ds_read_b64_tr_b16 %s, v13 offset:%d" % (R(b, 2), t * 1024))
            a("ds_read_b64_tr_b16 %s, v13 offset:%d" % (R(b + 2, 2), t * 1024 + 256))
        a.wait_vm(ms[t0 + 3])
        for t in range(t0, t0 + 4):
            b = 176 + 4 * (t & 3)
            a("s_waitcnt lgkmcnt(%d)" % (6 - 2 * (t & 3)))
            a("v_mfma_f32_32x32x16_bf16 %s, %s, %s, %s" % (R(AC, 16), R(TF + 4 * t, 4), R(b, 4), "0" if t == 0 else R(AC, 16)))
    a("""
    s_lshr_b32 s40, s44, 4
    s_and_b32 s41, s44, 15
    s_cmp_eq_u32 s40, 0
    s_cselect_b32 s50, 0x%x, 1.0
    s_mul_i32 s41, s41, 98304
    s_lshl_b32 s40, s40, 15
    s_add_u32 s40, s40, s41
    s_lshl_b32 s41, s43, 11
    s_add_u32 s40, s40, s41
    s_add_u32 s40, s40, 0x%x
    v_add_u32 v4, s43, v3
    v_cmp_eq_u32 vcc, 0, v4
    v_cndmask_b32 v%d, v%d, v4, vcc
    """ % (fbits(0.25 * LOG2E), OFF["WP"], AC + 1, AC + 1))
    for r in range(16): a("v_mul_f32 v%d, s50, v%d" % (AC + r, AC + r))
    a("L_wp_out:")
    for r in range(8): a("v_cvt_pk_bf16_f32 v%d, v%d, v%d" % (40 + r, AC + 2 * r, AC + 2 * r + 1))
    a("buffer_store_dwordx4 v[40:43], v9, s[8:11], s40 offen\nbuffer_store_dwordx4 v[44:47], v9, s[8:11], s40 offen offset:1024")
    a("s_endpgm")
    a("L_wp_C:")
    rowmajor_addrs(a, 10, 16 * 1024, "0")
    a("""
    s_sub_u32 s44, s44, 48          ; et
    s_lshl_b32 s46, s44, 15
    s_lshl_b32 s41, s3, 8
    s_add_u32 s46, s46, s41
    s_waitcnt lgkmcnt(0)
    """)
    for i in range(8):
        a("s_add_u32 m0, s52, %d" % (i * 1024))
        a("s_add_u32 s47, s46, %d" % ((i >> 2) * 128 + (i & 1) * 64))
        a("buffer_load_dwordx4 v%d, s[20:23], s47 offen lds" % (12 + ((i >> 1) & 1)))
    m_sh = a.vm - 1
    ms = t1_loads()
    a.wait_vm(m_sh); a("s_barrier")
    for t0 in range(0, 32, 4):
        for t in range(t0, t0 + 4):
            a("ds_read_b128 %s, v%d offset:%d" % (R(176 + 4 * (t & 3), 4), 14 + (t & 1), (t >> 2) * 4096 + ((t >> 1) & 1) * 1024))
        a.wait_vm(ms[t0 + 3])
        for t in range(t0, t0 + 4):
            a("s_waitcnt lgkmcnt(%d)" % (3 - (t & 3)))
            a("v_mfma_f32_32x32x16_bf16 %s, %s, %s, %s" % (R(AC, 16), R(176 + 4 * (t & 3), 4), R(TF + 4 * t, 4), "0" if t == 0 else R(AC, 16)))
    a("s_lshl_b32 s41, s44, 11\ns_add_u32 s40, s45, s41\ns_add_u32 s40, s40, 0x%x" % OFF["WOP"])
    a("s_nop 7\ns_nop 3")
    a("s_branch L_wp_out")
    a("L_wp_F:")
    a("""
    s_sub_u32 s44, s2, 512
    s_lshl_b32 s52, s3, 13
    v_lshrrev_b32 v4, 2, v1
    v_lshlrev_b32 v12, 10, v4
    v_and_b32 v4, 3, v1
    v_lshl_add_u32 v12, v4, 4, v12
    s_lshl_b32 s46, s3, 17
    s_lshl_b32 s41, s44, 6
    s_add_u32 s46, s46, s41
    v_bfe_u32 v4, v1, 2, 2
    v_lshl_add_u32 v4, v3, 2, v4
    v_lshlrev_b32 v4, 6, v4         ; (4h + r)*64
    v_and_b32 v5, 1, v1
    v_lshl_add_u32 v4, v5, 5, v4    ; 16*(cq&1) elements
    v_bfe_u32 v5, v1, 4, 1
    v_lshl_add_u32 v4, v5, 4, v4    ; 8*(G&1)
    v_bfe_u32 v5, v1, 1, 1
    v_lshl_add_u32 v4, v5, 3, v4    ; 4*(cq>>1)
    v_add_u32 v13, s52, v4
    s_lshl_b32 s40, s44, 15
    s_add_u32 s40, s40, s52
    s_add_u32 s40, s40, 0x%x
    s_add_u32 s41, s40, 4096
    s_waitcnt lgkmcnt(0)
    """ % OFF["WOF"])
    for i in range(8):
        a("s_add_u32 m0, s52, %d" % (i * 1024))
        a("buffer_load_dwordx4 v12, s[20:23], s46 offen lds")
        if i < 7: a("s_add_u32 s46, s46, %d" % (16 * 1024))
    a("s_waitcnt vmcnt(0)")
    for i in range(8):
        a("ds_read_b64_tr_b16 %s, v13 offset:%d" % (R(48 + 4 * i, 2), i * 1024))
        a("ds_read_b64_tr_b16 %s, v13 offset:%d" % (R(50 + 4 * i, 2), i * 1024 + 512))
        if i == 3 or i == 7:
            a("s_waitcnt lgkmcnt(0)")
            for x in range(i - 3, i + 1):
                a("buffer_store_dwordx4 %s, v9, s[8:11], s%d offen offset:%d" % (R(48 + 4 * x, 4), 40 + (x >> 2), 1024 * (x & 3)))
    a("s_endpgm")

def k_col():
    k2 = K("col2_kernel", 192); a = k2.a
    a("s_mov_b32 s47, 0x%x\ns_movk_i32 s61, 256\ns_branch L_col" % OFF["SSQ2"])
    k = K("col1_kernel", 192); a = k.a
    a("s_mov_b32 s47, 0x%x\ns_movk_i32 s61, 528" % OFF["SSQ0"])
    a("L_col:")
    X1, X2, X3 = 0, 8704, 17408
    RAW, SQ, UO, M1, M2, TWF, TWI, WW, WU, BUF = 16, 24, 32, 48, 80, 112, 128, 144, 176, 144
    WW = 16
    WW = 184
    WU = 176
    a("s_cmp_ge_u32 s2, s61\ns_cbranch_scc1 L_col_end")
    srd_load(a, 8, "ws"); srd_tab(a, 16)
    lane_setup(a)
    a("s_cmp_ge_u32 s2, 256\ns_cbranch_scc1 L_wp")
    a("s_mov_b32 s48, %d\ns_mov_b32 s49, %d" % (TOFF["M1"], TOFF["M1"] + 4096))
    for f in range(8): a("buffer_load_dwordx4 %s, v9, s[16:19], s%d offen offset:%d" % (R(M1 + 4 * f, 4), 48 + (f >> 2), 1024 * (f & 3)))
    a("""
    s_and_b32 s42, s2, 7
    s_lshr_b32 s43, s2, 3
    s_lshl_b32 s42, s42, 5
    s_add_u32 s42, s42, s43         ; slot k
    v_and_b32 v5, 15, v1            ; b_l
    v_lshrrev_b32 v6, 4, v1         ; q
    v_lshlrev_b32 v7, 2, v1
    s_lshl_b32 s44, s3, 11          ; w*2048
    s_lshl_b32 s45, s42, 13
    s_add_u32 s45, s45, s44         ; k*8192 + w*2048
    s_add_u32 s54, s45, 0x%x
    s_add_u32 s45, s45, 0x%x
    s_add_u32 s47, s47, s44
    s_lshl_b32 s50, s3, 13
    s_add_u32 s50, s50, %d
    s_add_u32 s51, s50, 4096
    s_waitcnt lgkmcnt(0)
    """ % (OFF["WT"], OFF["UC"], TOFF["M2"]))
    k.mark()
    for i in range(2): a("buffer_load_dwordx4 %s, v9, s[8:11], s47 offen offset:%d" % (R(SQ + 4 * i, 4), 1024 * i))
    for v in range(8): a("buffer_load_dword v%d, v7, s[8:11], s45 offen offset:%d" % (RAW + v, 256 * v))
    m_in = a.vm - 1
    a("""
    s_lshl_b32 s56, s3, 4
    v_add_u32 v10, s56, v5
    v_cvt_f32_u32 v10, v10
    v_mul_f32 v10, 0x3a000000, v10      ; b/2048
    v_lshlrev_b32 v11, 3, v6
    v_cvt_f32_u32 v11, v11
    v_mul_f32 v11, v10, v11
    """)
    for i in range(8):
        a("v_fmamk_f32 v12, v10, 0x%x, v11" % fbits(i))
        a("v_cos_f32 v%d, v12\nv_sin_f32 v%d, v12" % (TWF + 2 * i, TWF + 2 * i + 1))
    for f in range(8): a("buffer_load_dwordx4 %s, v9, s[16:19], s%d offen offset:%d" % (R(M2 + 4 * f, 4), 50 + (f >> 2), 1024 * (f & 3)))
    for i in range(2): a("buffer_load_dwordx4 %s, v9, s[8:11], s54 offen offset:%d" % (R(WW + 4 * i, 4), 1024 * i))
    m_w = a.vm - 1
    k.mark()
    a("""
    v_cvt_f32_u32 v10, v2
    v_mul_f32 v10, 0x3a000000, v10
    v_lshlrev_b32 v11, 1, v3
    v_add_u32 v11, s56, v11
    v_cvt_f32_u32 v11, v11
    v_mul_f32 v11, v10, v11
    s_mov_b32 s58, 0x3a000000
    s_mov_b32 s59, 0x3a000000
    """)
    for g in range(4):
        for e in range(2):
            i = 2 * g + e
            a("v_fmamk_f32 v12, v10, 0x%x, v11" % fbits(4 * g + e))
            a("v_cos_f32 v%d, v12\nv_sin_f32 v%d, v12" % (TWI + 2 * i, TWI + 2 * i + 1))
    for i in range(8): a("v_pk_mul_f32 %s, %s, s[58:59]" % (R(TWI + 2 * i, 2), R(TWI + 2 * i, 2)))
    a("""
    s_movk_i32 s57, 2176
    v_mul_lo_u32 v10, v6, s57           ; 8q*272
    v_lshl_add_u32 v10, v5, 2, v10
    s_lshl_b32 s58, s3, 6
    v_add_u32 v10, s58, v10             ; X1 write
    s_movk_i32 s57, 272
    v_mul_lo_u32 v11, v2, s57
    v_lshl_add_u32 v12, v3, 3, v11
    v_add_u32 v12, s58, v12             ; X2 write
    v_lshl_add_u32 v11, v3, 4, v11      ; X1/X2 read
    s_mul_i32 s58, s3, 2304
    s_movk_i32 s57, 288
    v_mul_lo_u32 v13, v3, s57
    v_lshl_add_u32 v13, v2, 2, v13
    v_add_u32 v13, s58, v13             ; X3 write
    s_movk_i32 s57, 144
    v_mul_lo_u32 v14, v5, s57
    v_add_u32 v14, s58, v14
    v_lshl_add_u32 v14, v6, 5, v14      ; X3 read: (16w+b_l)*144 + q*32
    s_lshr_b32 s40, s42, 2
    s_lshl_b32 s40, s40, 9
    s_and_b32 s41, s42, 3
    s_lshl_b32 s41, s41, 2
    s_add_u32 s40, s40, s41
    s_lshl_b32 s41, s3, 19
    s_add_u32 s40, s40, s41
    s_add_u32 s40, s40, 0x%x
    v_lshlrev_b32 v8, 15, v3
    v_lshl_add_u32 v8, v2, 4, v8        ; UB: (lane>>5)*32768 + m*16
    s_mov_b32 s60, 0x%x
    v_mov_b32 v4, 0x%x
    """ % (OFF["UB"], fbits(1.0 / 512), fbits(1e-5)))
    k.mark()
    a.wait_vm(m_in - 8)
    for i in range(8): a("v_fma_f32 v%d, v%d, s60, v4" % (SQ + i, SQ + i))
    for i in range(8): a("v_rsq_f32 v%d, v%d" % (SQ + i, SQ + i))
    a.wait_vm(m_in)
    k.mark()
    T0 = BUF
    for v in range(8):
        a("v_and_b32 v%d, 0xffff0000, v%d\nv_lshlrev_b32 v%d, 16, v%d" % (UO + 2 * v, RAW + v, UO + 2 * v + 1, RAW + v))
        s = v & 1
        a("v_pk_mul_f32 %s, %s, %s op_sel:[0,%d] op_sel_hi:[1,%d]" % (R(T0 + 2 * v, 2), R(UO + 2 * v, 2), R(SQ + v - s, 2), s, s))
    a("s_cmp_eq_u32 s42, 0\ns_cbranch_scc0 L_col_n0")
    for v in range(8): a("v_mov_b32 v%d, 0" % (T0 + 2 * v))
    a("L_col_n0:")
    for v in range(8): a("v_cvt_pk_bf16_f32 v%d, v%d, v%d" % (SQ + v, T0 + 2 * v + 1, T0 + 2 * v))
    for t in range(2):
        for tau in range(4):
            d = R(T0 + 4 * tau, 4)
            a("v_mfma_f32_16x16x32_bf16 %s, %s, %s, %s" % (d, R(M1 + 4 * (2 * tau + t), 4), R(SQ + 4 * t, 4), "0" if t == 0 else d))
    T1_ = BUF + 16
    for i in range(8):
        y, tw, t = R(T0 + 2 * i, 2), R(TWF + 2 * i, 2), R(T1_ + 2 * i, 2)
        a("v_pk_mul_f32 %s, %s, %s op_sel:[0,0] op_sel_hi:[1,0]" % (t, y, tw))
        a("v_pk_fma_f32 %s, %s, %s, %s op_sel:[1,1,0] op_sel_hi:[0,1,1] neg_hi:[1,0,0]" % (t, y, tw, t))
        a("v_cvt_pk_bf16_f32 v%d, v%d, v%d" % (SQ + i, T1_ + 2 * i, T1_ + 2 * i + 1))
        a("ds_write_b32 v10, v%d offset:%d" % (SQ + i, X1 + i * 272))
    a("s_waitcnt lgkmcnt(0)\ns_barrier")
    k.mark()
    for t in range(8): a("ds_read_b128 %s, v11 offset:%d" % (R(BUF + 4 * t, 4), X1 + 32 * t))
    a.wait_vm(m_w)
    AC = TWF
    for t in range(8):
        a("s_waitcnt lgkmcnt(%d)" % (7 - t))
        a("v_mfma_f32_32x32x16_bf16 %s, %s, %s, %s" % (R(AC, 16), R(M2 + 4 * t, 4), R(BUF + 4 * t, 4), "0" if t == 0 else R(AC, 16)))
    for i in range(8):
        a("v_lshlrev_b32 v%d, 16, v%d\nv_and_b32 v%d, 0xffff0000, v%d" % (T0 + 2 * i, WW + i, T0 + 2 * i + 1, WW + i))
    for i in range(8):
        y, w, t = R(AC + 2 * i, 2), R(T0 + 2 * i, 2), R(T1_ + 2 * i, 2)
        a("v_pk_mul_f32 %s, %s, %s op_sel:[0,0] op_sel_hi:[1,0] neg_hi:[1,0]" % (t, y, w))
        a("v_pk_fma_f32 %s, %s, %s, %s op_sel:[1,1,0] op_sel_hi:[0,1,1] neg_lo:[1,0,0] neg_hi:[1,0,0]" % (t, y, w, t))
        a("v_cvt_pk_bf16_f32 v%d, v%d, v%d" % (SQ + i, T1_ + 2 * i, T1_ + 2 * i + 1))
        if i & 1: a("ds_write_b64 v12, %s offset:%d" % (R(SQ + i - 1, 2), X2 + 16 * (i >> 1)))
    a("s_waitcnt lgkmcnt(0)\ns_barrier")
    k.mark()
    for t in range(8): a("ds_read_b128 %s, v11 offset:%d" % (R(BUF + 4 * t, 4), X2 + 32 * t))
    for t in range(8):
        a("s_waitcnt lgkmcnt(%d)" % (7 - t))
        a("v_mfma_f32_32x32x16_bf16 %s, %s, %s, %s" % (R(AC, 16), R(M2 + 4 * t, 4), R(BUF + 4 * t, 4), "0" if t == 0 else R(AC, 16)))
    for i in range(8):
        y, tw, t = R(AC + 2 * i, 2), R(TWI + 2 * i, 2), R(T0 + 2 * i, 2)
        a("v_pk_mul_f32 %s, %s, %s op_sel:[0,1] op_sel_hi:[0,0]" % (t, y, tw))
        a("v_pk_fma_f32 %s, %s, %s, %s op_sel:[1,0,0] op_sel_hi:[1,1,1] neg_lo:[1,0,0]" % (t, y, tw, t))
        a("v_cvt_pk_bf16_f32 v%d, v%d, v%d" % (SQ + i, T0 + 2 * i, T0 + 2 * i + 1))
        a("ds_write_b32 v13, v%d offset:%d" % (SQ + i, X3 + (4 * (i >> 1) + (i & 1)) * 144))
    a("s_waitcnt lgkmcnt(0)")
    for t in range(2): a("ds_read_b128 %s, v14 offset:%d" % (R(BUF + 4 * t, 4), X3 + 16 * t))
    a("s_waitcnt lgkmcnt(0)")
    k.mark()
    for t in range(2):
        for tau in range(4):
            d = R(UO + 4 * tau, 4)
            a("v_mfma_f32_16x16x32_bf16 %s, %s, %s, %s" % (d, R(M1 + 4 * (2 * tau + t), 4), R(BUF + 4 * t, 4), d))
    a("s_cmp_eq_u32 s42, 0\ns_cbranch_scc0 L_col_n1")
    for v in range(8): a("v_and_b32 v%d, 0xffff0000, v%d" % (UO + 2 * v, RAW + v))
    a("L_col_n1:")
    for v in range(8):
        a("v_cvt_pk_bf16_f32 v%d, v%d, v%d" % (SQ + v, UO + 2 * v + 1, UO + 2 * v))
        a("buffer_store_dword v%d, v8, s[8:11], s40 offen" % (SQ + v))
        if v < 7: a("s_add_u32 s40, s40, 0x10000")
    a("L_col_end:")
    a("s_endpgm")
    wprep_roles(k)
    return (k, 528, 256, 32768), (k2, 256, 256, 32768)

def k_qkv():
    k = K("qkv_kernel", 240); a = k.a
    UF = 64
    AQ, AK, AV = 192, 208, 224
    a("s_cmp_ge_u32 s2, 256\ns_cbranch_scc1 L_qkv_end")
    srd_load(a, 8, "ws")
    lane_setup(a)
    a("""
    s_and_b32 s40, s2, 7
    s_lshr_b32 s41, s2, 3
    s_and_b32 s42, s40, 1
    s_lshl_b32 s42, s42, 3
    s_and_b32 s47, s41, 7
    s_add_u32 s42, s42, s47         ; hp
    s_lshr_b32 s43, s40, 1
    s_lshl_b32 s43, s43, 2
    s_lshr_b32 s48, s41, 3
    s_add_u32 s43, s43, s48         ; rb
    s_lshl_b32 s48, s48, 1
    s_add_u32 s51, s47, s48         ; rot
    s_lshl_b32 s44, s43, 2
    s_add_u32 s44, s44, s3          ; rt
    s_lshl_b32 s45, s44, 15
    s_add_u32 s45, s45, 0x%x        ; UB tile base
    s_mul_i32 s46, s42, 98304
    s_add_u32 s46, s46, 0x%x
    s_lshl_b32 s47, s3, 10          ; w*1024
    s_add_u32 s46, s46, s47
    v_lshlrev_b32 v5, 4, v2
    s_waitcnt lgkmcnt(0)
    """ % (OFF["UB"], OFF["WP"]))
    k.mark()
    marks = []
    def issue(ch):
        a("s_add_u32 s53, s51, %d\ns_and_b32 s53, s53, 7\ns_lshl_b32 s53, s53, 12" % ch)
        a("s_add_u32 s48, s46, s53\ns_add_u32 s49, s45, s53")
        for p in range(3):
            a("s_add_u32 m0, s47, %d" % (p * 32768 + ch * 4096))
            if p: a("s_add_u32 s48, s48, 32768")
            a("buffer_load_dwordx4 v9, s[8:11], s48 offen lds")
        for t in range(4):
            a("buffer_load_dwordx4 %s, v9, s[8:11], s49 offen offset:%d" % (R(UF + 4 * (4 * ch + t), 4), 1024 * t))
        marks.append(a.vm - 1)
    QPRE = OPT.get("qpre", 3)
    for ch in range(QPRE): issue(ch)
    a("buffer_load_dword v6, v5, s[8:11], s45 offen")
    k.mark()
    a("v_mov_b32 v10, 0\nv_mov_b32 v11, 0\nv_add_u32 v14, 0x10000, v9")
    for ch in range(8):
        a.wait_vm(marks[ch]); a("s_barrier")
        if ch == 0: k.mark()
        for t in range(4):
            tt = 4 * ch + t
            a("ds_read_b128 %s, v9 offset:%d" % (R(16 + 12 * t, 4), tt * 1024))
            a("ds_read_b128 %s, v9 offset:%d" % (R(20 + 12 * t, 4), 32768 + tt * 1024))
            a("ds_read_b128 %s, v14 offset:%d" % (R(24 + 12 * t, 4), tt * 1024))
        if ch + QPRE < 8: issue(ch + QPRE)
        for t in range(4):
            tt = 4 * ch + t; u = UF + 4 * tt; z = tt == 0
            a("s_waitcnt lgkmcnt(%d)" % (9 - 3 * t))
            a("v_mfma_f32_32x32x16_bf16 %s, %s, %s, %s" % (R(AQ, 16), R(16 + 12 * t, 4), R(u, 4), "0" if z else R(AQ, 16)))
            a("v_dot2c_f32_bf16 v10, v%d, v%d\nv_dot2c_f32_bf16 v11, v%d, v%d" % (u, u, u + 1, u + 1))
            a("v_mfma_f32_32x32x16_bf16 %s, %s, %s, %s" % (R(AK, 16), R(20 + 12 * t, 4), R(u, 4), "0" if z else R(AK, 16)))
            a("v_dot2c_f32_bf16 v10, v%d, v%d\nv_dot2c_f32_bf16 v11, v%d, v%d" % (u + 2, u + 2, u + 3, u + 3))
            a("v_mfma_f32_32x32x16_bf16 %s, %s, %s, %s" % (R(AV, 16), R(u, 4), R(24 + 12 * t, 4), "0" if z else R(AV, 16)))
    k.mark()
    a("""
    v_and_b32 v6, 0xffff0000, v6
    s_nop 1
    v_add_f32 v10, v10, v11
    v_mov_b32 v11, v10
    v_permlane32_swap_b32 v10, v11
    v_add_f32 v10, v10, v11
    v_fma_f32 v10, -v6, v6, v10
    v_mov_b32 v11, 0x%x
    v_fmac_f32 v11, 0x%x, v10
    v_rsq_f32 v10, v11
    s_lshl_b32 s48, s3, 8
    s_add_u32 s48, s48, 0x18000
    v_lshl_add_u32 v12, v1, 2, s48
    v_lshl_add_u32 v13, v3, 4, s48
    ds_write_b32 v12, v10
    s_waitcnt lgkmcnt(0)
    """ % (fbits(1e-5), fbits(1.0 / 512)))
    for g in range(4): a("ds_read_b128 %s, v13 offset:%d" % (R(16 + 4 * g, 4), 32 * g))
    a("""
    s_lshl_b32 s50, s42, 17
    s_lshl_b32 s51, s44, 10
    s_add_u32 s50, s50, s51
    s_add_u32 s52, s50, 0x%x
    s_add_u32 s53, s52, 0x10000
    s_add_u32 s54, s50, 0x%x
    s_add_u32 s55, s54, 0x10000
    s_add_u32 s56, s50, 0x%x
    v_and_b32 v15, 0x33, v1
    v_and_b32 v14, 4, v1
    v_lshl_or_b32 v15, v14, 1, v15
    v_and_b32 v14, 8, v1
    v_lshrrev_b32 v14, 1, v14
    v_or_b32 v15, v15, v14
    v_lshlrev_b32 v15, 4, v15
    v_and_b32 v14, 15, v1
    v_lshlrev_b32 v14, 4, v14
    v_lshl_add_u32 v14, v3, 8, v14
    v_bfe_u32 v12, v1, 4, 1
    v_lshl_add_u32 v14, v12, 16, v14
    v_mov_b32 v11, v10
    """ % (OFF["QF"], OFF["KF"], OFF["VF"]))
    for base, voff, so in ((AK, 15, 54), (AQ, 9, 52)):
        for r in range(0, 16, 2): a("v_pk_mul_f32 %s, %s, v[10:11]" % (R(base + r, 2), R(base + r, 2)))
        for r in range(8): a("v_cvt_pk_bf16_f32 v%d, v%d, v%d" % (base + r, base + 2 * r, base + 2 * r + 1))
        a("buffer_store_dwordx4 %s, v%d, s[8:11], s%d offen" % (R(base, 4), voff, so))
        a("buffer_store_dwordx4 %s, v%d, s[8:11], s%d offen" % (R(base + 4, 4), voff, so + 1))
    a("s_waitcnt lgkmcnt(0)")
    for r in range(0, 16, 2): a("v_pk_mul_f32 %s, %s, %s" % (R(AV + r, 2), R(AV + r, 2), R(16 + r, 2)))
    for r in range(8): a("v_cvt_pk_bf16_f32 v%d, v%d, v%d" % (AV + r, AV + 2 * r, AV + 2 * r + 1))
    a("buffer_store_dwordx4 %s, v14, s[8:11], s56 offen" % R(AV, 4))
    a("buffer_store_dwordx4 %s, v14, s[8:11], s56 offen offset:512" % R(AV + 4, 4))
    a("L_qkv_end:")
    a("s_endpgm")
    return k, 256, 256, 98304 + 1024

from att2 import k_att

def hexdump(arr):
    u = np.ascontiguousarray(arr).reshape(-1).view(np.uint64)
    return "\n".join(".quad " + ",".join("0x%x" % v for v in u[i:i + 8]) for i in range(0, len(u), 8)) + "\n"

def tables():
    s = '.section .rodata,"a"\n.p2align 12\n'
    c = cos512()
    for i in range(512): s += ".set C%d, 0x%04x\n" % (i, c[i])
    s += r""".altmacro
.macro E8 a,b,c,d,e,f,g,h
.short C\a,C\b,C\c,C\d,C\e,C\f,C\g,C\h
.endm
.macro F8 p,k
E8 %((\p)&511),%((\p+\k)&511),%((\p+2*\k)&511),%((\p+3*\k)&511),%((\p+4*\k)&511),%((\p+5*\k)&511),%((\p+6*\k)&511),%((\p+7*\k)&511)
.endm
.macro G8 i0,i1,p,d
E8 %((\i0)&511),%((\i1)&511),%((\p+\d)&511),%((\p+\d+128)&511),%((\p+2*\d)&511),%((\p+2*\d+128)&511),%((\p+3*\d)&511),%((\p+3*\d+128)&511)
.endm
.type tables,@object
tables:
.set n, 0
.rept 32768
.set cc, ((n>>11)<<5) + (n&19) + ((n&4)<<1) + ((n&8)>>1)
.set dd, (((n>>6)&31)<<4) + (((n>>5)&1)<<3)
.set lt2, ((cc-2)>>63)&1
.set kk, (cc>>1) + 256*(((cc-1)>>63)&1)
.set pp, kk*dd + lt2*64 + (1-lt2)*128*(cc&1)
F8 pp, kk
.set n, n+1
.endr
.set n, 0
.rept 32768
.set dd, ((n>>11)<<5) + (((n>>2)&1)<<4) + (((n>>3)&3)<<2) + (n&3)
.set kk, (((n>>6)&31)<<3) + (((n>>5)&1)<<2)
.set z, ((kk-1)>>63)&1
.set pp, kk*dd
.set i0, z*(256*dd+64) + (1-z)*pp
.set i1, z*64 + (1-z)*(pp+128)
G8 i0, i1, pp, dd
.set n, n+1
.endr
.noaltmacro
"""
    s += hexdump(tab_M1()) + hexdump(tab_M2())
    return s

def build(order=None):
    c1, c2 = k_col()
    ks = dict(prep=k_prep(), col2=c2, col1=c1, qkv=k_qkv(), att=k_att(sys.modules[__name__]), oproj=k_oproj(), final=k_final())
    order = order or ["prep", "col1", "qkv", "att", "oproj", "col2", "qkv", "att", "final"]
    ref = open("cdna_kernels/%s.s.ref" % NAME).read().split("\n")
    head = "\n".join(l for l in ref[:10]) + "\n"
    for o in order:
        k, g, b, lds = ks[o]
        head += "; @launch kernel=%s grid=(%d,1,1) block=(%d,1,1) lds=%d\n" % (k.name, g, b, lds)
    s = head + '.amdgcn_target "amdgcn-amd-amdhsa--gfx950"\n'
    for k, *_ in ks.values(): s += k.text()
    for k, *_ in ks.values(): s += k.desc()
    s += tables()
    return s

if __name__ == "__main__":
    out = sys.argv[1] if len(sys.argv) > 1 else "cdna_kernels/%s.s" % NAME
    STAMP = len(sys.argv) > 2 and "stamp" in sys.argv[2]
    for kv in sys.argv[3:]:
        key, val = kv.split("="); OPT[key] = int(val)
    open(out, "w").write(build())
    print("wrote", out)
```

```python
from layouts2 import *
OFF = dict(UC=0x000000, UB=0x200000, WT=0x400000, WP=0x600000, WOP=0x800000, WOF=0x880000,
           KF=0xA00000, VF=0xC00000, OF=0xE00000,
           SSQ0=0x1600000, SSQ2=0x1602000, FLK=0x1604000, PSQ=0x1610000, OL=0x1700000)
LAYER = 0x600000
WS_USED = 0x1630000
def ssq_pos(r): return r
```

```python
def k_mha(G):
    K, R, OFF, srd_load, lane_setup, OPT, fbits, LAYER = G.K, G.R, G.OFF, G.srd_load, G.lane_setup, G.OPT, G.fbits, G.LAYER
    NV = 152
    k2 = K("mha2_kernel", NV)
    k2.a("s_mov_b32 s65, 0x%x\ns_movk_i32 s66, 0x2000\ns_branch L_mha" % LAYER)
    k = K("mha1_kernel", NV); a = k.a
    a("s_mov_b32 s65, 0\ns_mov_b32 s66, 0")
    a("L_mha:")
    IDX = 12; KA0 = 13; VA0 = 14; VINC = 15
    Q = 16; KB = 24; VB = 32; S0, S1, CM, OA = 48, 64, 80, 112
    CB = 0x20000; BN = 0x21000; XB = 0x22400; WL = 0x2000
    a("s_cmp_ge_u32 s2, 256\ns_cbranch_scc1 L_mha_end")
    srd_load(a, 8, "ws")
    lane_setup(a)
    a("""
    s_and_b32 s40, s2, 7
    s_lshr_b32 s41, s2, 3
    s_and_b32 s42, s40, 1
    s_lshl_b32 s42, s42, 4
    s_and_b32 s47, s41, 15
    s_add_u32 s42, s42, s47         ; head
    s_lshr_b32 s43, s40, 1
    s_lshl_b32 s43, s43, 1
    s_lshr_b32 s48, s41, 4
    s_add_u32 s43, s43, s48         ; qb
    s_lshl_b32 s48, s48, 2
    s_add_u32 s51, s47, s48         ; rot (chunks of 4 k-steps)
    s_lshl_b32 s44, s43, 3
    s_add_u32 s44, s44, s3          ; projection row tile
    s_lshl_b32 s45, s44, 15
    s_add_u32 s45, s45, 0x%x        ; UB tile
    s_mul_i32 s46, s42, 49152
    s_add_u32 s46, s46, 0x%x        ; W' of the head
    s_add_u32 s47, s51, s3
    s_and_b32 s47, s47, 7
    s_lshl_b32 s48, s47, 12
    s_add_u32 s48, s48, s46
    s_lshl_b32 s49, s47, 11
    s_add_u32 s49, s49, s46
    s_add_u32 s49, s49, 32768
    s_lshl_b32 s52, s3, 12
    s_lshl_b32 s53, s3, 11
    s_add_u32 m0, s52, 0x%x
    v_lshlrev_b32 v5, 4, v2
    s_waitcnt lgkmcnt(0)
    """ % (OFF["UB"], OFF["WP"], WL))
    k.mark()
    for i in range(4): a("buffer_load_dwordx4 v9, s[8:11], s48 offen offset:%d lds" % (1024 * i))
    a("s_add_u32 m0, s53, 0x%x" % (WL + 32768))
    for i in range(2): a("buffer_load_dwordx4 v9, s[8:11], s49 offen offset:%d lds" % (1024 * i))
    m_w = a.vm - 1
    UF = 48; AQK = 112; AV = 128; WB = 16; RING = 16
    um = []
    def uload(t):
        if t % 4 == 0:
            a("s_add_u32 s54, s51, %d\ns_and_b32 s54, s54, 7\ns_lshl_b32 s54, s54, 12\ns_add_u32 s54, s54, s45" % (t >> 2))
        a("buffer_load_dwordx4 %s, v9, s[8:11], s54 offen offset:%d" % (R(UF + 4 * (t % RING), 4), 1024 * (t & 3)))
        um.append(a.vm - 1)
    UPRE = OPT.get("upre", 8)
    U0 = OPT.get("u0", 3)
    for t in range(U0): uload(t)
    a("buffer_load_dword v8, v5, s[8:11], s45 offen")
    a("""
    v_and_b32 v5, 15, v1
    v_lshlrev_b32 v5, 4, v5
    v_lshl_add_u32 v5, v3, 8, v5            ; h*256 + (m&15)*16
    v_add_u32 v7, 0x%(wv)x, v5              ; W'v read address
    v_add_u32 v6, 0x%(wl)x, v9              ; W'qk read address
    s_lshr_b32 s41, s3, 2                   ; kh
    s_lshl_b32 s55, s41, 12
    v_add_u32 v%(KA0)d, s55, v9
    s_add_u32 s55, s55, 0x10000
    v_add_u32 v4, s55, v5
    v_and_b32 v10, 27, v2
    v_cmp_eq_u32 vcc, 16, v10
    v_mov_b32 v10, 0x%(cb1)x
    v_mov_b32 v11, 0x%(cb0)x
    v_cndmask_b32 v10, v10, v11, vcc
    v_cmp_gt_u32 vcc, 16, v2
    v_mov_b32 v11, 0
    v_mov_b32 v%(IDX)d, 8192
    v_cndmask_b32 v%(VA0)d, v10, v4, vcc
    v_cndmask_b32 v%(VINC)d, v11, v%(IDX)d, vcc
    v_mov_b32 v%(IDX)d, 0xdddddddd
    v_lshrrev_b32 v4, 1, v1
    v_and_b32 v10, 7, v4
    v_lshrrev_b32 v4, 3, v4
    v_lshlrev_b32 v10, 9, v10
    v_lshl_add_u32 v4, v4, 13, v10
    v_and_b32 v10, 1, v1
    v_lshl_add_u32 v4, v10, 4, v4
    v_add_u32 v4, 0x%(cb0)x, v4
    v_add_u32 v10, -1, v10
    v_and_b32 v16, 0x3f803f80, v10
    v_mov_b32 v17, v16
    v_mov_b32 v18, v16
    v_mov_b32 v19, v16
    s_mov_b64 exec, 0xfffff
    ds_write_b128 v4, v[16:19]
    s_mov_b64 exec, -1
    v_mov_b32 v10, 0
    v_mov_b32 v11, 0
    """ % dict(KA0=KA0, VA0=VA0, VINC=VINC, IDX=IDX, cb0=CB, cb1=CB + 16, wl=WL, wv=WL + 32768))
    a.wait_vm(m_w, "lgkmcnt(0)"); a("s_barrier")
    k.mark()
    def wrd(t):
        b = WB + 8 * (t & 3)
        a("ds_read_b128 %s, v6 offset:%d" % (R(b, 4), t * 1024))
        a("ds_read_b128 %s, v7 offset:%d" % (R(b + 4, 4), t * 512))
    for t in range(3): wrd(t)
    if OPT.get("p1prio"): a("s_cmp_lt_u32 s3, 4\ns_cbranch_scc1 L_mha_np1\ns_setprio 1\nL_mha_np1:")
    while len(um) < OPT.get("u1", 6): uload(len(um))
    def sq(r):
        m = OPT.get("sqm", 0)
        if m == 1: return
        if m == 2:
            a("v_lshlrev_b32 v0, 16, v%d\nv_fmac_f32 v10, v%d, v%d\nv_fmac_f32 v11, v0, v0" % (r, r, r)); return
        if m == 3:
            x = 144 + 2 * (r & 3)
            a("v_and_b32 v%d, s71, v%d\nv_lshlrev_b32 v%d, 16, v%d\nv_fmac_f32 v10, v%d, v%d\nv_fmac_f32 v11, v%d, v%d" % (x, r, x + 1, r, x, x, x + 1, x + 1)); return
        a("v_and_b32 v4, 0xffff0000, v%d\nv_lshlrev_b32 v0, 16, v%d\nv_fmac_f32 v10, v4, v4\nv_fmac_f32 v11, v0, v0" % (r, r))
    a("s_mov_b32 s71, 0xffff0000")
    for t in range(32):
        u = UF + 4 * (t % RING); b = WB + 8 * (t & 3); z = t == 0
        if t + 3 < 32: wrd(t + 3)
        a.wait_vm(um[t], "lgkmcnt(%d)" % (2 * min(3, 31 - t)))
        a("v_mfma_f32_32x32x16_bf16 %s, %s, %s, %s" % (R(AQK, 16), R(b, 4), R(u, 4), "0" if z else R(AQK, 16)))
        sq(u); sq(u + 1)
        if len(um) < min(32, t + UPRE): uload(len(um))
        a("v_mfma_f32_32x32x16_bf16 %s, %s, %s, %s" % (R(AV, 16), R(u, 4), R(b + 4, 4), "0" if z else R(AV, 16)))
        sq(u + 2); sq(u + 3)
        if len(um) < min(32, t + 1 + UPRE): uload(len(um))
        if OPT.get("p1bar") and t % OPT["p1bar"] == OPT["p1bar"] - 1 and t < 31: a("s_barrier")
    k.mark()
    a("""
    v_and_b32 v8, 0xffff0000, v8
    v_add_f32 v10, v10, v11
    v_mov_b32 v11, v10
    v_permlane32_swap_b32 v10, v11
    v_add_f32 v10, v10, v11
    v_fma_f32 v10, -v8, v8, v10
    v_mov_b32 v11, 0x%x
    v_fmac_f32 v11, 0x%x, v10
    v_rsq_f32 v10, v11
    s_lshl_b32 s48, s3, 8
    s_add_u32 s48, s48, 0x%x
    v_lshl_add_u32 v6, v1, 2, s48
    v_lshl_add_u32 v7, v3, 4, s48
    ds_write_b32 v6, v10
    s_waitcnt lgkmcnt(0)
    """ % (fbits(1e-5), fbits(1.0 / 512), BN))
    for g in range(4): a("ds_read_b128 %s, v7 offset:%d" % (R(32 + 4 * g, 4), 32 * g))
    a("""
    s_lshl_b32 s48, s42, 16
    s_add_u32 s48, s48, s65
    s_add_u32 s48, s48, 0x%x        ; K base of the head
    s_lshl_b32 s49, s44, 10
    s_add_u32 s49, s49, s48
    s_add_u32 s50, s49, 0x%x
    s_lshl_b32 s52, s3, 10
    v_and_b32 v6, 0x33, v1
    v_and_b32 v4, 4, v1
    v_lshl_or_b32 v6, v4, 1, v6
    v_and_b32 v4, 8, v1
    v_lshrrev_b32 v4, 1, v4
    v_or_b32 v6, v6, v4
    v_lshlrev_b32 v6, 4, v6         ; swap23(lane)*16
    v_add_u32 v8, s52, v6
    v_bfe_u32 v4, v1, 4, 1
    v_lshl_add_u32 v5, v4, 9, v5    ; f*512 + h*256 + dim*16
    s_add_u32 s53, s52, 0x10000
    v_add_u32 v0, s53, v5
    s_add_u32 s53, s52, 0x%x
    v_add_u32 v4, s53, v9
    """ % (OFF["KF"], OFF["VF"] - OFF["KF"], XB))
    for r in range(8, 16): a("v_mul_f32 v%d, v10, v%d" % (AQK + r, AQK + r))
    for r in range(4): a("v_cvt_pk_bf16_f32 v%d, v%d, v%d" % (52 + r, AQK + 8 + 2 * r, AQK + 9 + 2 * r))
    a("buffer_store_dwordx4 v[52:55], v6, s[8:11], s49 offen sc1")
    a("ds_write_b128 v8, v[52:55]")
    a("s_waitcnt lgkmcnt(1)")
    for r in range(8):
        a("v_cndmask_b32 v%d, v%d, v%d, vcc" % (AV + r, AV + 8 + r, AV + r))
        a("v_cndmask_b32 v%d, v%d, v%d, vcc" % (32 + r, 40 + r, 32 + r))
        a("v_mul_f32 v%d, v%d, v%d" % (AV + r, AV + r, 32 + r))
    for r in range(4): a("v_cvt_pk_bf16_f32 v%d, v%d, v%d" % (56 + r, AV + 2 * r, AV + 1 + 2 * r))
    a("buffer_store_dwordx4 v[56:59], v5, s[8:11], s50 offen sc1")
    a("ds_write_b128 v0, v[56:59]")
    for r in range(8): a("v_mul_f32 v%d, v10, v%d" % (AQK + r, AQK + r))
    for r in range(4): a("v_cvt_pk_bf16_f32 v%d, v%d, v%d" % (48 + r, AQK + 2 * r, AQK + 1 + 2 * r))
    a("ds_write_b128 v4, v[48:51]")
    a("""
    s_and_b32 s40, s3, 3
    s_lshl_b32 s40, s40, 1
    s_add_u32 s40, s40, s41         ; local q tile
    s_lshl_b32 s44, s43, 3
    s_add_u32 s44, s44, s40         ; output row tile
    s_lshl_b32 s40, s40, 10
    v_add_u32 v4, s40, v9
    v_xor_b32 v5, 1024, v4
    v_add_u32 v4, 0x%x, v4
    v_add_u32 v5, 0x%x, v5
    s_add_u32 s48, s48, s52         ; K base + w*1024
    s_add_u32 s49, s52, 8192        ; LDS offset of the next group
    s_add_u32 s50, s43, 1           ; next block
    s_lshl_b32 s56, s42, 8
    s_lshl_b32 s57, s3, 5
    s_add_u32 s56, s56, s57
    s_add_u32 s56, s56, s66
    s_add_u32 s56, s56, 0x%x        ; flags of (head, w)
    s_lshl_b32 s57, s43, 2
    s_add_u32 s57, s57, s56         ; own flag
    v_and_b32 v8, 7, v1
    v_lshlrev_b32 v8, 2, v8
    v_mov_b32 v0, 0
    v_mov_b32 v1, 1
    s_mov_b32 s62, 0
    s_mov_b32 s67, 0
    """ % (XB, XB, OFF["FLK"]))
    assert XB % 2048 == 1024 or True
    for r in range(32): a("v_mov_b32 v%d, 0" % (OA + r))
    a("s_cmp_lt_u32 s3, 4\ns_cbranch_scc1 L_mha_np\ns_setprio 1\nL_mha_np:")
    a("s_waitcnt lgkmcnt(0)\ns_barrier")
    k.mark()
    def group():
        a("""
        s_and_b32 s51, s50, 7
        s_lshl_b32 s51, s51, 13
        s_mov_b32 m0, s49
        s_add_u32 s51, s51, s48
        buffer_load_dwordx4 v9, s[8:11], s51 offen sc1 lds
        s_add_u32 m0, s49, 0x10000
        s_add_u32 s51, s51, 0x%x
        buffer_load_dwordx4 v9, s[8:11], s51 offen sc1 lds
        s_add_u32 s49, s49, 8192
        s_add_u32 s50, s50, 1
        """ % (OFF["VF"] - OFF["KF"]))
    a("ds_read_b128 %s, v%d" % (R(KB, 4), KA0))
    a("ds_read_b128 %s, v4\nds_read_b128 %s, v5" % (R(Q, 4), R(Q + 4, 4)))
    a("s_waitcnt lgkmcnt(0)")
    a("v_mfma_f32_32x32x16_bf16 %s, %s, %s, 0" % (R(S0, 16), R(KB, 4), R(Q, 4)))
    a("v_mfma_f32_32x32x16_bf16 %s, %s, %s, 0" % (R(S1, 16), R(KB, 4), R(Q + 4, 4)))
    for x, S in ((4, S0), (5, S1)):
        a("v_max3_f32 v%d, v%d, v%d, v%d" % (x, S, S + 1, S + 2))
        for r in range(3, 15, 2): a("v_max3_f32 v%d, v%d, v%d, v%d" % (x, x, S + r, S + r + 1))
        a("v_max_f32 v%d, v%d, v%d" % (x, x, S + 15))
    a("L_mha_setm:")
    a("v_mov_b32 v6, v%d\nv_mov_b32 v7, v%d" % (KA0, VA0))
    def off(t): return (t >> 2) * 8192 + (t & 3) * 1024
    def rdk(i, o): a("ds_read_b128 %s, v6 offset:%d" % (R(KB + 4 * i, 4), o))
    def rdv(i, f, o): a("ds_read_b128 %s, v7 offset:%d" % (R(VB + 8 * i + 4 * f, 4), o))
    def qk(S, i, q): a("v_mfma_f32_32x32x16_bf16 %s, %s, %s, %s" % (R(S, 16), R(KB + 4 * i, 4), R(Q + 4 * q, 4), R(CM + 16 * q, 16)))
    def pv(i, f, S, q): a("v_smfmac_f32_32x32x32_bf16 %s, %s, %s, v%d" % (R(OA + 16 * q, 16), R(VB + 8 * i + 4 * f, 4), R(S + 8 * f, 8), IDX))
    def ex(S, lo, hi):
        for r in range(lo, hi): a("v_exp_f32 v%d, v%d" % (S + r, S + r))
    rdk(0, 0); rdv(0, 0, 0); rdv(0, 1, 512); rdk(1, 1024)
    a("v_mov_b32 v10, v4\nv_mov_b32 v11, v5\nv_permlane32_swap_b32 v4, v10\nv_permlane32_swap_b32 v5, v11")
    a("v_max_f32 v4, v4, v10\nv_max_f32 v5, v5, v11")
    for r in range(16): a("v_sub_f32 v%d, 0, v4" % (CM + r))
    a("s_waitcnt lgkmcnt(3)")
    qk(S0, 0, 0)
    for r in range(16): a("v_sub_f32 v%d, 0, v5" % (CM + 16 + r))
    for r in range(8): a("v_mov_b32 v%d, 0" % (S1 + 8 + r))
    for r in range(4): a("v_mov_b32 v%d, 0" % (VB + 12 + r))
    a("s_mov_b32 s63, s62\ns_add_u32 s64, s62, 8")
    k.mark()
    HA, HB_, HC = OPT.get("ha", 0), OPT.get("hpoll", 4), OPT.get("hchk", 7)
    a(".p2align 6")
    a("L_mha_loop:")
    for u in range(8):
        t, q = u >> 1, u & 1
        Sc, Sn = (S0, S1) if q == 0 else (S1, S0)
        if u in (0, 4, 7):
            a("s_cmp_lt_u32 s63, 3\ns_cbranch_scc1 L_mha_hook%d" % u)
            a("L_mha_back%d:" % u)
        ex(Sc, 0, 2)
        pv((t - 1 + q) & 1, 1, Sn, 1 - q)
        if q == 0:
            rdv((t + 1) & 1, 0, off(t + 1)); rdv((t + 1) & 1, 1, off(t + 1) + 512)
        ex(Sc, 2, 5)
        qk(Sn, (t + q) & 1, 1 - q)
        if q == 0: rdk(t & 1, off(t + 2))
        ex(Sc, 5, 10)
        if q == 0: a("s_waitcnt lgkmcnt(3)")
        pv(t & 1, 0, Sc, q)
        if u == 7:
            a("v_add_u32 v6, 8192, v6\nv_add_u32 v7, v%d, v7" % VINC)
            a("s_add_u32 s63, s63, 1")
            a("s_cmp_eq_u32 s63, %d\ns_cbranch_scc0 L_mha_kp\ns_setprio 0\nL_mha_kp:" % OPT.get("sw", 7))
            a("s_cmp_lt_u32 s63, s64")
        ex(Sc, 10, 16)
    a("s_cbranch_scc1 L_mha_loop")
    pv(1, 1, S1, 1)
    k.mark()
    a("s_waitcnt lgkmcnt(0)")
    a("v_mov_b32 v5, 0x4e800000")
    a("v_cmp_nlt_f32 vcc, v%d, v5" % (OA + 8))
    a("v_cmp_nlt_f32 s[68:69], v%d, v5" % (OA + 24))
    a("s_or_b64 vcc, vcc, s[68:69]")
    a("s_cmp_eq_u32 s62, 0\ns_cbranch_scc0 L_mha_out")
    a("s_cbranch_vccnz L_mha_slow")
    a("L_mha_out:")
    a("""
    s_mul_i32 s52, s3, 2560
    s_add_u32 s52, s52, 0x%x
    v_add_u32 v6, s52, v9
    v_lshrrev_b32 v4, 1, v9
    v_add_u32 v10, s52, v4
    s_xor_b32 s53, s3, 4
    s_mul_i32 s53, s53, 2560
    s_add_u32 s53, s53, 0x%x
    v_add_u32 v7, s53, v9
    v_add_u32 v11, s53, v4
    v_mov_b32 v%d, v%d
    ds_write_b128 v6, %s
    ds_write_b128 v6, %s offset:1024
    ds_write_b64 v10, %s offset:2048
    s_lshl_b32 s46, s44, 15
    s_lshl_b32 s47, s42, 10
    s_add_u32 s46, s46, s47
    s_add_u32 s46, s46, s65
    s_add_u32 s46, s46, 0x%x
    s_waitcnt lgkmcnt(0)
    s_barrier
    ds_read_b64 v[56:57], v11 offset:2048
    ds_read_b128 v[48:51], v7
    ds_read_b128 v[52:55], v7 offset:1024
    s_waitcnt lgkmcnt(2)
    v_min_f32 v4, v%d, v57
    v_sub_f32 v5, v4, v%d
    v_sub_f32 v4, v4, v57
    v_exp_f32 v10, v5
    v_exp_f32 v4, v4
    v_mul_f32 v5, v10, v%d
    v_fmac_f32 v5, v4, v56
    v_rcp_f32 v5, v5
    v_mul_f32 v10, v10, v5
    v_mul_f32 v4, v4, v5
    s_waitcnt lgkmcnt(0)
    """ % (XB, XB, OA + 25, CM + 16, R(OA + 16, 4), R(OA + 20, 4), R(OA + 24, 2), OFF["OF"], CM, CM, OA + 8))
    for r in range(8):
        a("v_mul_f32 v%d, v10, v%d" % (OA + r, OA + r))
        a("v_fmac_f32 v%d, v4, v%d" % (OA + r, 48 + r))
    for r in range(4): a("v_cvt_pk_bf16_f32 v%d, v%d, v%d" % (OA + r, OA + 2 * r, OA + 2 * r + 1))
    a("buffer_store_dwordx4 %s, v9, s[8:11], s46 offen" % R(OA, 4))
    a("L_mha_end:")
    a("s_endpgm")
    a("L_mha_hook0:")
    a("s_cmp_eq_u32 s63, 0\ns_cbranch_scc0 L_mha_h01")
    a("s_waitcnt vmcnt(0)\nbuffer_store_dword v1, v0, s[8:11], s57 offen sc1\ns_branch L_mha_back0")
    a("L_mha_h01:")
    a("s_cmp_eq_u32 s63, 1\ns_cbranch_scc0 L_mha_back0")
    a("s_cmp_eq_u32 s67, 1\ns_cbranch_scc1 L_mha_rdy")
    a("s_mov_b32 s70, 0")
    a("L_mha_spin:")
    a("buffer_load_dword v2, v8, s[8:11], s56 offen sc1\ns_add_u32 s70, s70, 1\ns_waitcnt vmcnt(0)\nv_cmp_ne_u32 vcc, 1, v2")
    a("s_cmp_gt_u32 s70, 0x10000\ns_cbranch_scc1 L_mha_go\ns_cbranch_vccnz L_mha_spin")
    a("L_mha_go:")
    group(); group(); group()
    a("L_mha_rdy:")
    a("s_waitcnt vmcnt(4) lgkmcnt(0)\ns_barrier")
    if G.STAMP: k.mark(6)
    rdk(0, 0); rdv(0, 0, 0); rdv(0, 1, 512); rdk(1, 1024)
    group(); group(); group(); group()
    a("s_waitcnt lgkmcnt(3)")
    qk(S0, 0, 0)
    a("s_nop 7\ns_nop 3\ns_branch L_mha_back0")
    a("L_mha_hook4:")
    a("s_cmp_eq_u32 s63, 0\ns_cbranch_scc0 L_mha_h41")
    a("buffer_load_dword v2, v8, s[8:11], s56 offen sc1\ns_branch L_mha_back4")
    a("L_mha_h41:")
    a("s_cmp_eq_u32 s63, 2\ns_cbranch_scc0 L_mha_s8\ns_waitcnt vmcnt(0)\nL_mha_s8:\ns_waitcnt vmcnt(8)\ns_barrier\ns_branch L_mha_back4")
    a("L_mha_hook7:")
    a("s_cmp_eq_u32 s63, 0\ns_cbranch_scc0 L_mha_back7")
    a("s_waitcnt vmcnt(0)\nv_cmp_ne_u32 vcc, 1, v2\ns_nop 1\ns_cbranch_vccnz L_mha_back7")
    group(); group(); group()
    a("s_mov_b32 s67, 1\ns_branch L_mha_back7")
    a("L_mha_slow:")
    a("s_mov_b32 s62, 16\ns_mov_b32 s63, 0\nv_mov_b32 v6, v%d\nv_mov_b32 v4, 0xff800000\nv_mov_b32 v5, 0xff800000" % KA0)
    for r in range(32): a("v_mov_b32 v%d, 0" % (OA + r))
    a("L_mha_maxloop:")
    for i in range(4):
        a("ds_read_b128 %s, v6 offset:%d" % (R(KB, 4), 1024 * i))
        a("s_waitcnt lgkmcnt(0)")
        a("v_mfma_f32_32x32x16_bf16 %s, %s, %s, 0" % (R(S0, 16), R(KB, 4), R(Q, 4)))
        a("v_mfma_f32_32x32x16_bf16 %s, %s, %s, 0" % (R(S1, 16), R(KB, 4), R(Q + 4, 4)))
        for x, S in ((4, S0), (5, S1)):
            for r in range(0, 16, 2): a("v_max3_f32 v%d, v%d, v%d, v%d" % (x, x, S + r, S + r + 1))
    a("v_add_u32 v6, 8192, v6")
    a("s_add_u32 s63, s63, 1\ns_cmp_lt_u32 s63, 8\ns_cbranch_scc1 L_mha_maxloop")
    a("s_branch L_mha_setm")
    lds = XB + 8 * 2560
    return (k, 256, 512, lds), (k2, 256, 512, lds)
```

```python
def k_prep(G):
    K, R, OFF, TOFF, SIZE, srd_load, srd_tab, lane_setup, OPT, fbits, LOG2E = G.K, G.R, G.OFF, G.TOFF, G.SIZE, G.srd_load, G.srd_tab, G.lane_setup, G.OPT, G.fbits, G.LOG2E
    ACC = 16; ACW = 32; TF = 112; BX = 48; BW = 80
    HL = 0x20000; AS = 9216
    NT = 'nt ' if OPT.get('nt', 3) & 1 else ''
    NTW = 'nt ' if OPT.get('nt', 3) & 2 else ''
    k = K("prep_kernel", 240); a = k.a
    a("s_cmp_ge_u32 s2, 256\ns_cbranch_scc1 L_prep_end")
    a("s_load_dwordx4 s[72:75], s[0:1], 0\ns_load_dwordx2 s[76:77], s[0:1], 16\ns_load_dwordx4 s[12:15], s[0:1], 32")
    srd_load(a, 8, "ws")
    lane_setup(a)
    a("""
    s_and_b32 s40, s2, 7
    s_lshr_b32 s41, s2, 3
    s_and_b32 s42, s41, 7           ; cb
    s_lshl_b32 s43, s40, 2
    s_lshr_b32 s48, s41, 3
    s_add_u32 s43, s43, s48         ; rb
    s_lshl_b32 s48, s48, 1
    s_add_u32 s51, s42, s48         ; rot
    s_mov_b32 s23, 0x00020000
    s_cmp_ge_u32 s3, 4
    s_cbranch_scc1 L_prep_help
    s_lshr_b32 s57, s3, 1           ; wm
    s_and_b32 s58, s3, 1            ; wn
    s_lshl_b32 s44, s42, 1
    s_add_u32 s44, s44, s57         ; c tile
    s_lshl_b32 s46, s43, 1
    s_add_u32 s46, s46, s58
    s_lshl_b32 s50, s44, 15
    """)
    a("""
    v_and_b32 v4, 0x13, v1
    v_and_b32 v5, 4, v1
    v_lshl_or_b32 v4, v5, 1, v4
    v_bfe_u32 v5, v1, 3, 1
    v_lshl_or_b32 v4, v5, 2, v4
    s_lshl_b32 s40, s44, 5
    v_add_u32 v4, s40, v4           ; c
    v_lshrrev_b32 v5, 1, v4         ; kk
    v_and_b32 v6, 1, v4
    v_lshlrev_b32 v6, 7, v6         ; ph
    v_mov_b32 v7, 256
    v_cmp_eq_u32 vcc, 0, v4
    v_cndmask_b32 v5, v5, v7, vcc
    v_mov_b32 v7, 64
    v_cmp_gt_u32 vcc, 2, v4
    v_cndmask_b32 v6, v6, v7, vcc
    v_lshlrev_b32 v7, 3, v3
    v_mad_u32_u24 v6, v5, v7, v6
    v_cvt_f32_u32 v7, v5
    v_mul_f32 v7, 0x3b000000, v7
    v_lshlrev_b32 v11, 31, v5
    v_ashrrev_i32 v11, 31, v11
    v_and_b32 v12, v5, v4
    v_lshrrev_b32 v13, 1, v5
    v_xor_b32 v12, v12, v13
    v_lshlrev_b32 v12, 31, v12
    v_ashrrev_i32 v12, 31, v12
    v_and_b32 v11, 0x80008000, v11
    v_and_b32 v12, 0x80008000, v12
    v_xor_b32 v13, v11, v12
    """)
    for c in range(2):
        a("s_add_u32 s53, s51, %d\ns_lshl_b32 s53, s53, 6" % c)
        for t in range(4):
            if t: a("s_add_u32 s53, s53, 16")
            a("v_mad_u32_u24 v10, v5, s53, v6\nv_and_b32 v10, 511, v10\nv_cvt_f32_u32 v10, v10\nv_mul_f32 v48, 0x3b000000, v10")
            for j in range(1, 8): a("v_fmamk_f32 v%d, v7, 0x%x, v48" % (48 + j, fbits(j)))
            for j in range(8): a("v_cos_f32 v%d, v%d" % (48 + j, 48 + j))
            d = TF + 16 * c + 4 * t
            for j in range(4): a("v_cvt_pk_bf16_f32 v%d, v%d, v%d" % (d + j, 48 + 2 * j, 49 + 2 * j))
            for j in range(4): a("v_xor_b32 v%d, v11, v%d" % (d + 64 + j, d + j))
            for j in range(4): a("v_xor_b32_dpp v%d, v%d, v12 quad_perm:[0,1,3,2] row_mask:0xf bank_mask:0xf" % (d + 32 + j, d + j))
            for j in range(4): a("v_xor_b32_dpp v%d, v%d, v13 quad_perm:[0,1,3,2] row_mask:0xf bank_mask:0xf" % (d + 96 + j, d + j))
    k.mark(0)
    a("""
    s_lshl_b32 s49, s58, 12
    v_bfe_u32 v5, v1, 1, 3
    v_xor_b32 v5, v5, v3
    v_lshlrev_b32 v7, 7, v2
    v_add_u32 v7, s49, v7
    v_lshl_add_u32 v10, v5, 4, v7
    v_xor_b32 v11, 32, v10
    v_xor_b32 v12, 64, v10
    v_xor_b32 v13, 96, v10
    v_bfe_u32 v4, v1, 2, 2
    v_lshl_add_u32 v4, v3, 3, v4
    v_lshlrev_b32 v4, 7, v4         ; (8h + r)*128
    v_bfe_u32 v5, v1, 3, 1
    v_xor_b32 v5, s58, v5
    v_lshl_add_u32 v4, v5, 6, v4
    v_bfe_u32 v6, v1, 4, 1
    v_lshl_add_u32 v4, v6, 5, v4
    v_and_b32 v5, 3, v1
    v_lshl_add_u32 v14, v5, 3, v4
    s_waitcnt lgkmcnt(0)
    """)
    G.uc_addr(a)
    k.mark(5)
    a("s_cmp_ge_u32 s43, 24\ns_cbranch_scc1 L_prep_o")
    def mainloop(tr):
        n = 12 if tr else 8
        def reads(ch, t):
            so = (ch & 3) * 16384; s = 16 * (ch & 1)
            a("ds_read_b128 %s, v%d offset:%d" % (R(BX + s + 4 * t, 4), 10 + t, so))
            if tr:
                a("ds_read_b64_tr_b16 %s, v14 offset:%d" % (R(BW + s + 4 * t, 2), so + 8192 + t * 2048))
                a("ds_read_b64_tr_b16 %s, v14 offset:%d" % (R(BW + s + 4 * t + 2, 2), so + 8192 + t * 2048 + 512))
            else:
                a("ds_read_b128 %s, v%d offset:%d" % (R(BW + s + 4 * t, 4), 10 + t, so + 8192))
        def mf(ch, t, half):
            s = 16 * (ch & 1)
            z = ch == 0 and t == 0
            T = R(TF + 16 * ch + 4 * t, 4)
            W = R(BW + s + 4 * t, 4)
            if half == 0: a("v_mfma_f32_32x32x16_bf16 %s, %s, %s, %s" % (R(ACC, 16), T, R(BX + s + 4 * t, 4), "0" if z else R(ACC, 16)))
            else: a("v_mfma_f32_32x32x16_bf16 %s, %s, %s, %s" % (R(ACW, 16), T if tr else W, W if tr else T, "0" if z else R(ACW, 16)))
        for ch in range(8):
            if ch == 4:
                for v in range(10, 15): a("v_add_u32 v%d, 0x10000, v%d" % (v, v))
            a("s_waitcnt lgkmcnt(0)")
            if ch: mf(ch - 1, 0, 0); mf(ch - 1, 0, 1)
            a("s_barrier")
            if ch == 0: k.mark(1)
            if ch == 4: k.mark(2)
            for i in range(6):
                if i < 4: reads(ch, i)
                if ch: mf(ch - 1, 1 + i // 2, i & 1)
        k.mark(3)
        for t in range(4):
            a("s_waitcnt lgkmcnt(%d)" % ((n // 4) * (3 - t)))
            mf(7, t, 0); mf(7, t, 1)
    AC_ = ACW
    mainloop(True)
    a("""
    s_lshr_b32 s47, s46, 4          ; part
    s_and_b32 s41, s46, 15
    s_mul_i32 s41, s41, 98304
    s_add_u32 s41, s41, 0x%x
    s_cmp_eq_u32 s47, 0
    s_mov_b32 s50, 0x3d800000
    s_cselect_b32 s50, 0x%x, s50
    s_lshl_b32 s40, s44, 11
    s_lshl_b32 s48, s47, 8
    s_add_u32 s40, s40, s48         ; Q/K: ct*2048 + part*256
    s_lshl_b32 s48, s44, 10
    s_add_u32 s48, s48, 32768       ; V: 32768 + ct*1024
    s_cmp_eq_u32 s47, 2
    s_cselect_b32 s40, s48, s40
    s_cselect_b32 s48, 9, 10
    s_cselect_b32 s47, 8, 9
    s_add_u32 s40, s40, s41
    s_lshl_b32 s48, 1, s48
    s_add_u32 s41, s40, s48
    v_and_b32 v7, 15, v1
    v_lshlrev_b32 v9, 4, v7
    v_lshlrev_b32 v7, s47, v3
    v_add_u32 v9, v9, v7
    s_mov_b32 s48, 49152
    v_mad_u32_u24 v9, v6, s48, v9
    v_add_u32 v4, s44, v3
    v_cmp_eq_u32 vcc, 0, v4
    v_cndmask_b32 v%d, v%d, v4, vcc
    """ % (OFF["WP"], fbits(0.25 * LOG2E / 16), AC_ + 1, AC_ + 1))
    a("L_prep_out:")
    for r in range(16): a("v_mul_f32 v%d, 0x3d800000, v%d" % (ACC + r, ACC + r))
    for p in range(8): a("v_cvt_pk_bf16_f32 v%d, v%d, v%d" % (48 + p, ACC + 2 * p, ACC + 2 * p + 1))
    for p in range(8): a("buffer_store_dword v%d, v5, s[8:11], s%d offen" % (48 + p, 64 + p))
    for r in range(16): a("v_mul_f32 v%d, s50, v%d" % (AC_ + r, AC_ + r))
    for r in range(8): a("v_cvt_pk_bf16_f32 v%d, v%d, v%d" % (56 + r, AC_ + 2 * r, AC_ + 2 * r + 1))
    a("buffer_store_dwordx4 v[56:59], v9, s[8:11], s40 offen\nbuffer_store_dwordx4 v[60:63], v9, s[8:11], s41 offen")
    a("s_endpgm")
    a("L_prep_o:")
    mainloop(False)
    a("s_sub_u32 s46, s46, 48\ns_lshl_b32 s40, s44, 15\ns_lshl_b32 s41, s46, 11\ns_add_u32 s40, s40, s41\ns_add_u32 s40, s40, 0x%x\ns_add_u32 s41, s40, 1024" % OFF["WOP"])
    a("s_mov_b32 s50, 0x3d800000\ns_nop 7\ns_branch L_prep_out")
    a("L_prep_help:")
    a("s_cmp_ge_u32 s3, 6\ns_cbranch_scc1 L_prep_h67")
    a("""
    v_lshrrev_b32 v4, 3, v1
    v_lshrrev_b32 v7, 4, v1
    v_xor_b32 v7, v7, v1
    v_and_b32 v7, 7, v7
    v_lshlrev_b32 v7, 4, v7
    v_lshl_add_u32 v12, v4, 10, v7
    v_xor_b32 v13, 64, v12
    v_add_u32 v13, 8192, v13
    s_movk_i32 s54, 128
    s_mov_b32 s52, 0
    s_cmp_eq_u32 s3, 5
    s_cbranch_scc1 L_prep_w
    s_and_b32 s40, s43, 7
    s_lshl_b32 s40, s40, 16
    s_lshr_b32 s41, s43, 3
    s_lshl_b32 s41, s41, 14
    s_add_u32 s50, s40, s41
    s_mov_b32 s55, 0x80000
    s_mov_b32 s59, 0x100000
    s_mov_b32 s22, 0x%x
    s_waitcnt lgkmcnt(0)
    s_mov_b64 s[20:21], s[72:73]
    s_branch L_prep_go
L_prep_w:
    s_movk_i32 s52, 8192
    s_cmp_lt_u32 s43, 24
    s_cbranch_scc1 L_prep_q
    s_sub_u32 s50, s43, 24
    s_lshl_b32 s50, s50, 16
    s_movk_i32 s55, 16384
    s_mov_b32 s59, 32768
    s_mov_b32 s22, 0x%x
    s_waitcnt lgkmcnt(0)
    s_mov_b64 s[20:21], s[14:15]
    s_branch L_prep_go
L_prep_q:
    s_movk_i32 s40, 3072
    v_mul_lo_u32 v12, v4, s40
    v_lshrrev_b32 v7, 2, v1
    v_and_b32 v7, 4, v7
    v_xor_b32 v7, v7, v1
    v_and_b32 v7, 7, v7
    v_lshl_add_u32 v12, v7, 4, v12
    v_add_u32 v13, %d, v12
    s_lshl_b32 s50, s43, 7
    s_mov_b32 s54, %d
    s_mov_b32 s55, %d
    s_mov_b32 s59, %d
    s_mov_b32 s22, 0x%x
    s_waitcnt lgkmcnt(0)
    s_mov_b64 s[20:21], s[12:13]
L_prep_go:
    s_setprio 3
    """ % (SIZE["x"], SIZE["wo"], 8 * 3072, 64 * 3072, 16 * 3072, 32 * 3072, SIZE["wqkv"]))
    k.mark(0)
    LP = OPT.get("lpre", 4)
    lm = []
    def issue(ch):
        a("s_add_u32 s53, s51, %d\ns_and_b32 s53, s53, 7\ns_mul_i32 s53, s53, s54\ns_add_u32 s60, s53, s50" % ch)
        a("s_add_u32 s61, s60, s55\ns_add_u32 s62, s60, s59\ns_add_u32 s63, s61, s59")
        for i in range(8):
            a("s_add_u32 m0, s52, %d" % (ch * 16384 + i * 1024))
            a("buffer_load_dwordx4 v%d, s[20:23], s%d offen %slds" % (12 + (i & 1), 60 + (i >> 1), NT if ch < OPT.get("ntch", 1) else ""))
        lm.append(a.vm - 1)
    L0 = OPT.get("l0", 2)
    for ch in range(L0): issue(ch)
    k.mark(1)
    for ch in range(8):
        a.wait_vm(lm[ch])
        if ch == 0: k.mark(2)
        if ch == 0 and len(lm) < 2: issue(1)
        a("s_barrier")
        while len(lm) < min(8, ch + 1 + LP): issue(len(lm))
    a("s_endpgm")
    a("L_prep_h67:")
    if OPT.get("nohelp"): a("s_endpgm")
    a("s_cmp_eq_u32 s3, 7\ns_cbranch_scc1 L_prep_stat")
    a("""
    s_lshl_b32 s44, s40, 5
    s_add_u32 s44, s44, s41
    s_and_b32 s47, s44, 1
    s_lshr_b32 s44, s44, 1
    s_mul_i32 s45, s44, 8224
    s_add_u32 s46, s45, 4096
    s_add_u32 s48, s45, 8192
    s_mov_b32 s18, 0x%x
    s_mov_b32 s19, 0x00020000
    s_mov_b32 s22, 0x%x
    s_waitcnt lgkmcnt(0)
    s_mov_b64 s[16:17], s[74:75]
    s_mov_b64 s[20:21], s[76:77]
    """ % (SIZE["wr"], SIZE["wi"]))
    for arr in range(2):
        srd = "s[16:19]" if arr == 0 else "s[20:23]"
        for hf in range(2):
            a("s_mov_b32 m0, %d" % (HL + AS * arr + 4096 * hf))
            for i in range(4): a("buffer_load_dwordx4 v9, %s, s%d offen offset:%d %slds" % (srd, 45 + hf, 1024 * i, NTW))
        a("s_mov_b32 m0, %d\ns_mov_b64 exec, 3" % (HL + AS * arr + 8192))
        a("buffer_load_dwordx4 v9, %s, s48 offen lds" % srd)
        a("s_mov_b64 exec, -1")
    a("""
    s_mov_b32 s49, %d
    v_lshrrev_b32 v4, 2, v1
    s_lshl_b32 s47, s47, 7
    v_add_u32 v4, s47, v4           ; slot k of group 0
    v_and_b32 v8, 3, v1
    s_movk_i32 s48, 2056
    v_mul_lo_u32 v10, v8, s48
    v_lshlrev_b32 v5, 1, v4
    v_mov_b32 v6, 512
    v_cmp_eq_u32 vcc, 0, v4
    v_cndmask_b32 v6, v5, v6, vcc
    v_add3_u32 v5, v5, v10, s49
    v_add3_u32 v6, v6, v10, s49
    v_lshlrev_b32 v7, 13, v4
    v_lshl_add_u32 v7, v8, 4, v7
    s_lshl_b32 s44, s44, 6
    s_add_u32 s44, s44, 0x%x
    s_setprio 3
    """ % (HL, OFF["WT"]))
    k.mark(1)
    HW = OPT.get("hw", 3)
    for _ in range(HW): a("s_barrier")
    a("s_waitcnt vmcnt(0)")
    k.mark(2)
    nb = HW
    for g in range(8):
        if g and g % 2 == 0 and nb < 8:
            a("s_barrier"); nb += 1
        for o in range(4):
            a("ds_read_u16 v%d, v%d offset:%d" % (64 + o, 6 if g == 0 else 5, g * 32 + o * 514))
            a("ds_read_u16 v%d, v%d offset:%d" % (72 + o, 6 if g == 0 else 5, AS + g * 32 + o * 514))
        a("s_waitcnt lgkmcnt(0)")
        b = 80 + 4 * (g & 3)
        for o in range(4): a("v_lshl_or_b32 v%d, v%d, 16, v%d" % (b + o, 72 + o, 64 + o))
        a("buffer_store_dwordx4 %s, v7, s[8:11], s44 offen" % R(b, 4))
        if g < 7: a("s_add_u32 s44, s44, 0x20000")
    if G.STAMP:
        for _ in range(8 - nb): a("s_barrier")
    a("s_endpgm")
    a("L_prep_stat:")
    a("""
    s_lshl_b32 s40, s42, 10
    v_add_u32 v7, s40, v9
    v_mov_b32 v20, 0
    v_lshlrev_b32 v21, 2, v1
    v_lshrrev_b32 v6, 3, v1
    v_lshlrev_b32 v6, 2, v6
    s_lshl_b32 s44, s43, 8
    s_lshl_b32 s45, s42, 5
    s_add_u32 s44, s44, s45
    s_add_u32 s43, s44, 0x%x
    s_add_u32 s44, s44, 0x%x
    s_lshl_b32 s45, s2, 7
    s_add_u32 s45, s45, 0x%x
    v_mov_b32 v10, 0
    v_mov_b32 v11, 0
    s_waitcnt lgkmcnt(0)
    buffer_store_dword v20, v6, s[8:11], s44 offen
    s_mov_b32 exec_hi, 0
    buffer_store_dword v20, v21, s[8:11], s45 offen
    s_mov_b32 exec_hi, -1
    s_mov_b32 s46, 0
    s_setprio 2
L_prep_sl:
    s_barrier
    ds_read_b128 v[64:67], v7
    v_add_u32 v7, 16384, v7
    s_add_u32 s46, s46, 1
    s_waitcnt lgkmcnt(0)
    """ % (OFF["SSQ0"], OFF["SSQ2"], OFF["FLK"]))
    for r in range(4):
        a("v_and_b32 v4, 0xffff0000, v%d\nv_lshlrev_b32 v5, 16, v%d" % (64 + r, 64 + r))
        a("v_fmac_f32 v10, v4, v4\nv_add_f32 v11, v11, v4\nv_fmac_f32 v10, v5, v5\nv_add_f32 v11, v11, v5")
    a("s_cmp_lt_u32 s46, 8\ns_cbranch_scc1 L_prep_sl")
    for m in ("quad_perm:[1,0,3,2]", "quad_perm:[2,3,0,1]", "row_half_mirror"):
        a("v_add_f32_dpp v10, v10, v10 %s row_mask:0xf bank_mask:0xf" % m)
        a("v_add_f32_dpp v11, v11, v11 %s row_mask:0xf bank_mask:0xf" % m)
    a("v_mul_f32 v12, 0x%x, v11" % fbits(-1.0 / 512))
    a("v_fma_f32 v13, v12, v11, v10")
    a("buffer_store_dword v13, v6, s[8:11], s43 offen")
    a("L_prep_end:")
    a("s_endpgm")
    return k, 256, 512, HL + 18432
```

```python
import sys, math
import numpy as np
from asmlib import Asm
from layouts3 import *

NAME = "interleave_layers__spectral_gfnet__softmax_full_mha__prompt"
KA = dict(x=0, wr=8, wi=16, wqkv=32, wo=40, out=48, dbg=56, ws=64)
SIZE = dict(x=2097152, wr=1052672, wi=1052672, wqkv=1572864, wo=524288, out=2097152, ws=WS_USED)
TOFF = dict(T1=0, T2=0x80000, M1=0x100000, M2=0x102000)
TSIZE = 0x10A000
LOG2E = 1.4426950408889634
STAMP = False
OPT = {}
def fbits(x): return int(np.float32(x).view(np.uint32))
def R(b, n): return "v[%d:%d]" % (b, b + n - 1)

class K:
    def __init__(self, name, vgpr, sgpr=96):
        self.name = name; self.vgpr = vgpr; self.sgpr = sgpr
        self.a = Asm()
        self.a.raw(".text\n.globl %s\n.p2align 8\n.type %s,@function" % (name, name))
        self.a(name + ":")
        self.nm = 0
        if STAMP:
            self.a.raw("    s_memrealtime s[84:85]\n    s_memtime s[86:87]\n    v_lshrrev_b32 v4, 6, v0\n    s_nop 1\n    v_readfirstlane_b32 s94, v4\n    s_mov_b32 s95, 0")
            self.a.raw("    s_waitcnt lgkmcnt(0)\n" + "\n".join("    s_mov_b32 s%d, s86" % (24 + 2 * i) for i in range(8)))
    def mark(self, i=None):
        if STAMP:
            if i is None: i = self.nm
            self.nm = i + 1
            assert i < 7
            self.a.raw("    s_memtime s[%d:%d]" % (24 + 2 * i, 25 + 2 * i))
    def text(self):
        t = self.a.text()
        if STAMP and "s_endpgm" in t:
            t = t.replace("    s_endpgm", "    s_branch %s_stamp" % self.name)
            t += """%s_stamp:
    s_memtime s[38:39]
    s_waitcnt vmcnt(0) lgkmcnt(0)
    s_memrealtime s[88:89]
    s_memtime s[90:91]
    s_load_dwordx2 s[80:81], s[0:1], 64
    s_load_dwordx2 s[92:93], s[0:1], 56
    s_mov_b32 s82, 0x4000000
    s_mov_b32 s83, 0x00020000
    s_waitcnt lgkmcnt(0)
    s_lshr_b32 s92, s92, 9
    s_and_b32 s92, s92, 63
    s_lshl_b32 s92, s92, 20
    s_lshl_b32 s93, s2, 10
    s_add_u32 s92, s92, s93
    s_lshl_b32 s93, s94, 6
    s_add_u32 s92, s92, s93
    s_add_u32 s92, s92, 0x2000000
    s_sub_u32 s90, s90, s86
    s_mov_b64 exec, 1
    v_mov_b32 v0, 0
    v_mov_b32 v4, s84
    v_mov_b32 v5, s88
    v_mov_b32 v6, s90
    v_mov_b32 v7, s95
    buffer_store_dwordx4 v[4:7], v0, s[80:83], s92 offen
""" % self.name
            for i in range(8): t += "    s_sub_u32 s%d, s%d, s86\n    v_mov_b32 v%d, s%d\n" % (24 + 2 * i, 24 + 2 * i, 8 + i, 24 + 2 * i)
            t += "    buffer_store_dwordx4 v[8:11], v0, s[80:83], s92 offen offset:16\n    buffer_store_dwordx4 v[12:15], v0, s[80:83], s92 offen offset:32\n    s_endpgm\n"
        return t
    def desc(self):
        return """.section .rodata,"a"
.p2align 6
.amdhsa_kernel %s
  .amdhsa_next_free_vgpr %d
  .amdhsa_next_free_sgpr %d
  .amdhsa_accum_offset %d
  .amdhsa_group_segment_fixed_size 0
  .amdhsa_kernarg_size 72
  .amdhsa_user_sgpr_count 2
  .amdhsa_user_sgpr_kernarg_segment_ptr 1
  .amdhsa_system_sgpr_workgroup_id_x 1
.end_amdhsa_kernel
""" % (self.name, self.vgpr, self.sgpr, (self.vgpr + 3) // 4 * 4)

def srd_load(a, s, what):
    a("s_load_dwordx2 s[%d:%d], s[0:1], %d" % (s, s + 1, KA[what]))
    a("s_mov_b32 s%d, 0x%x" % (s + 2, SIZE[what]))
    a("s_mov_b32 s%d, 0x00020000" % (s + 3))
def srd_tab(a, s):
    a("s_getpc_b64 s[%d:%d]" % (s, s + 1))
    a.raw("    s_add_u32 s%d, s%d, tables@rel32@lo+4" % (s, s))
    a.raw("    s_addc_u32 s%d, s%d, tables@rel32@hi+12" % (s + 1, s + 1))
    a("s_mov_b32 s%d, 0x%x" % (s + 2, TSIZE))
    a("s_mov_b32 s%d, 0x00020000" % (s + 3))
def lane_setup(a):
    a("""
    v_lshrrev_b32 v4, 6, v0
    v_and_b32 v1, 63, v0
    v_readfirstlane_b32 s3, v4
    v_and_b32 v2, 31, v0
    v_lshrrev_b32 v3, 5, v1
    v_lshlrev_b32 v9, 4, v1
    """)

ACC = 16
def g64_ids(a):
    a("""
    s_and_b32 s40, s2, 7
    s_lshr_b32 s41, s2, 3
    s_and_b32 s42, s40, 1
    s_lshl_b32 s42, s42, 2
    s_and_b32 s47, s41, 3
    s_add_u32 s42, s42, s47         ; cb
    s_lshr_b32 s43, s40, 1
    s_lshl_b32 s43, s43, 3
    s_lshr_b32 s48, s41, 2
    s_add_u32 s43, s43, s48         ; rb
    s_lshl_b32 s47, s47, 1
    s_add_u32 s51, s47, s48
    s_lshr_b32 s40, s3, 1
    s_and_b32 s41, s3, 1
    s_lshl_b32 s44, s42, 1
    s_add_u32 s44, s44, s40
    s_lshl_b32 s46, s43, 1
    s_add_u32 s46, s46, s41
    s_lshl_b32 s52, s3, 15
    s_lshl_b32 s40, s40, 15
    v_add_u32 v10, s40, v9
    s_lshl_b32 s40, s41, 15
    s_add_u32 s49, s40, 0x10000
    s_cmp_lt_u32 s3, 2
    s_cselect_b32 s45, s42, s43
    s_lshl_b32 s45, s45, 1
    s_add_u32 s45, s45, s41
    s_cmp_lt_u32 s3, 2
    """)
def g64_issue(a, ch, general, base="s50"):
    a("s_add_u32 s53, s51, %d\ns_and_b32 s53, s53, 7" % ch)
    if general:
        a("s_lshl_b32 s53, s53, s54\ns_add_u32 s53, s53, %s\ns_add_u32 s56, s53, s55" % base)
        for i in range(4):
            a("s_add_u32 m0, s52, %d" % (ch * 4096 + i * 1024))
            a("buffer_load_dwordx4 v%d, s[20:23], s%d offen lds" % (12 + (i >> 1), 53 if i % 2 == 0 else 56))
    else:
        a("s_lshl_b32 s53, s53, 12\ns_add_u32 m0, s52, %d\ns_add_u32 s53, s53, %s" % (ch * 4096, base))
        for i in range(4):
            a("buffer_load_dwordx4 v9, s[20:23], s53 offen offset:%d lds" % (i * 1024))
def g64_compute(a, ch, rowB, first, hook=None):
    for t in range(4):
        a("ds_read_b128 %s, v10 offset:%d" % (R(32 + 8 * t, 4), ch * 4096 + t * 1024))
        if rowB: a("ds_read_b128 %s, v%d offset:%d" % (R(36 + 8 * t, 4), 14 + (t & 1), ch * 4096 + (t >> 1) * 1024))
        else:    a("ds_read_b128 %s, v11 offset:%d" % (R(36 + 8 * t, 4), ch * 4096 + t * 1024))
    for t in range(4):
        a("s_waitcnt lgkmcnt(%d)" % (6 - 2 * t))
        a("v_mfma_f32_32x32x16_bf16 %s, %s, %s, %s" % (R(ACC, 16), R(32 + 8 * t, 4), R(36 + 8 * t, 4), "0" if (first and t == 0) else R(ACC, 16)))
        if hook: hook(36 + 8 * t)
PRE = 4
def g64_run(k, general, rowB, marks, hook=None, first=True):
    a = k.a
    for ch in range(8):
        a.wait_vm(marks[ch]); a("s_barrier")
        if ch == 0: k.mark()
        if ch + PRE < 8:
            g64_issue(a, ch + PRE, general); marks.append(a.vm - 1)
        g64_compute(a, ch, rowB, first and ch == 0, hook)
    k.mark()

def uc_store(a):
    for p in range(8): a("v_cvt_pk_bf16_f32 v%d, v%d, v%d" % (32 + p, ACC + 2 * p, ACC + 2 * p + 1))
    for p in range(8): a("buffer_store_dword v%d, v5, s[8:11], s%d offen" % (32 + p, 64 + p))
def uc_addr(a):
    a("s_lshl_b32 s40, s44, 17\ns_lshl_b32 s41, s46, 7\ns_add_u32 s40, s40, s41\ns_add_u32 s64, s40, 0x%x" % OFF["UC"])
    for p in range(1, 8): a("s_add_u32 s%d, s64, %d" % (64 + p, (8 * (p >> 2) + (p & 3)) * 8192))
    a("v_lshlrev_b32 v5, 15, v3\nv_lshl_add_u32 v5, v2, 2, v5")
def ssq_addr(a, dst):
    a("s_lshl_b32 %s, s46, 7\nv_lshlrev_b32 v6, 2, v2" % dst)

def rowmajor_addrs(a, rowstride_shift, rh_stride, bbase):
    a("""
    v_lshrrev_b32 v4, 2, v1
    v_lshrrev_b32 v7, 4, v1
    v_xor_b32 v7, v7, v1
    v_and_b32 v7, 3, v7
    v_lshlrev_b32 v7, 4, v7
    v_lshl_add_u32 v12, v4, %d, v7
    v_add_u32 v13, 0x%x, v12
    v_bfe_u32 v4, v1, 2, 2
    v_xor_b32 v4, v4, v3            ; h ^ x
    v_and_b32 v7, 15, v1
    v_lshlrev_b32 v7, 6, v7
    v_bfe_u32 v8, v1, 4, 1
    v_lshl_add_u32 v7, v8, 11, v7
    v_add_u32 v7, %s, v7
    v_lshl_add_u32 v14, v4, 4, v7
    v_xor_b32 v15, 32, v14
    """ % (rowstride_shift, rh_stride, bbase))

def k_oproj():
    k = K("oproj_kernel", 80); a = k.a
    a("s_cmp_ge_u32 s2, 256\ns_cbranch_scc1 L_op_end")
    srd_load(a, 8, "ws"); srd_load(a, 20, "ws")
    lane_setup(a)
    g64_ids(a)
    a("""
    s_cselect_b32 s50, 0x%x, 0x%x
    s_lshl_b32 s40, s45, 15
    s_add_u32 s50, s50, s40
    v_add_u32 v11, s49, v9
    s_lshl_b32 s40, s46, 15
    s_lshl_b32 s41, s44, 11
    s_add_u32 s40, s40, s41
    s_add_u32 s57, s40, 0x%x
    s_waitcnt lgkmcnt(0)
    """ % (0, OFF["OF"] - OFF["WOP"], OFF["UB"]))
    a("s_add_u32 s50, s50, 0x%x" % OFF["WOP"])
    k.mark()
    marks = []
    for ch in range(PRE):
        g64_issue(a, ch, False); marks.append(a.vm - 1)
        if ch == 1:
            a("buffer_load_dwordx4 v[64:67], v9, s[8:11], s57 offen\nbuffer_load_dwordx4 v[68:71], v9, s[8:11], s57 offen offset:1024")
    k.mark()
    uc_addr(a); ssq_addr(a, "s57")
    g64_run(k, False, False, marks)
    for p in range(8):
        a("v_lshlrev_b32 v32, 16, v%d\nv_and_b32 v33, 0xffff0000, v%d" % (64 + p, 64 + p))
        a("v_pk_add_f32 %s, %s, v[32:33]" % (R(ACC + 2 * p, 2), R(ACC + 2 * p, 2)))
    uc_store(a)
    a("v_add_u32 v4, s44, v3\nv_cmp_eq_u32 vcc, 0, v4\nv_cndmask_b32 v7, v%d, v4, vcc" % (ACC + 1))
    a("v_mul_f32 v7, v7, v7\nv_mul_f32 v8, v%d, v%d" % (ACC, ACC))
    for r in range(2, 16): a("v_fmac_f32 v%d, v%d, v%d" % (7 + (r & 1), ACC + r, ACC + r))
    a("""
    v_add_f32 v7, v7, v8
    v_mov_b32 v8, v7
    v_permlane32_swap_b32 v7, v8
    v_add_f32 v7, v7, v8
    s_add_u32 s41, s57, 0x%x
    s_mov_b32 exec_hi, 0
    buffer_atomic_add_f32 v7, v6, s[8:11], s41 offen
    """ % OFF["SSQ2"])
    a("L_op_end:")
    a("s_endpgm")
    return k, 256, 256, 131072

def k_final():
    k = K("final_kernel", 80); a = k.a
    a("s_cmp_ge_u32 s2, 256\ns_cbranch_scc1 L_fin_end")
    srd_load(a, 8, "ws"); srd_load(a, 12, "out"); srd_tab(a, 16)
    lane_setup(a)
    g64_ids(a)
    a("""
    s_cselect_b32 s50, 0x%x, 0
    s_cselect_b32 s58, 0, 0x%x
    s_add_u32 s50, s50, s58
    s_lshl_b32 s40, s45, 15
    s_add_u32 s50, s50, s40
    s_cmp_lt_u32 s3, 2
    s_cselect_b32 s58, 0, 0x%x
    s_add_u32 s58, s58, s40
    s_add_u32 s58, s58, 0x%x
    v_add_u32 v11, s49, v9
    s_cmp_lt_u32 s3, 2
    s_waitcnt lgkmcnt(0)
    s_cselect_b64 s[20:21], s[16:17], s[8:9]
    s_cselect_b32 s22, s18, s10
    s_mov_b32 s23, 0x00020000
    """ % (TOFF["T2"], OFF["UB"], OFF["OF"] + LAYER - OFF["WOF"], OFF["WOF"]))
    k.mark()
    marks = []
    for ch in range(PRE):
        g64_issue(a, ch, False); marks.append(a.vm - 1)
    k.mark()
    a("""
    s_and_b32 s40, s46, 1
    s_lshl_b32 s40, s40, 20
    s_lshr_b32 s41, s46, 1
    s_and_b32 s41, s41, 7
    s_lshl_b32 s41, s41, 16
    s_add_u32 s40, s40, s41
    s_lshr_b32 s41, s46, 4
    s_lshl_b32 s41, s41, 14
    s_add_u32 s40, s40, s41
    s_lshl_b32 s41, s44, 6
    s_add_u32 s57, s40, s41
    v_and_b32 v5, 15, v1
    v_lshlrev_b32 v5, 10, v5
    v_bfe_u32 v4, v1, 4, 1
    v_lshl_add_u32 v5, v4, 19, v5
    v_lshl_add_u32 v5, v3, 5, v5
    """)
    for ch in range(16):
        a.wait_vm(marks[ch]); a("s_barrier")
        if ch == 0: k.mark()
        n = ch + PRE
        if n == 8: a("s_mov_b64 s[20:21], s[8:9]\ns_mov_b32 s22, s10")
        if n < 16:
            g64_issue(a, n & 7, False, "s50" if n < 8 else "s58"); marks.append(a.vm - 1)
        g64_compute(a, ch & 7, False, ch == 0)
    k.mark()
    for p in range(8): a("v_cvt_pk_bf16_f32 v%d, v%d, v%d" % (32 + p, ACC + 2 * p, ACC + 2 * p + 1))
    a("buffer_store_dwordx4 v[32:35], v5, s[12:15], s57 offen\nbuffer_store_dwordx4 v[36:39], v5, s[12:15], s57 offen offset:16")
    a("L_fin_end:")
    a("s_endpgm")
    return k, 256, 256, 131072

def wprep_roles(k):
    a = k.a
    TF = 48; AC = 24
    a("L_wp:")
    srd_load(a, 20, "wo")
    a("""
    s_sub_u32 s44, s2, 256
    s_lshl_b32 s52, s3, 13
    v_lshrrev_b32 v4, 2, v1
    v_lshlrev_b32 v12, 10, v4
    v_and_b32 v4, 3, v1
    v_lshl_add_u32 v12, v4, 4, v12
    s_lshl_b32 s46, s3, 17
    s_lshl_b32 s41, s44, 6
    s_add_u32 s46, s46, s41
    v_bfe_u32 v4, v1, 2, 2
    v_lshl_add_u32 v4, v3, 2, v4
    v_lshlrev_b32 v4, 6, v4         ; (4h + r)*64
    v_and_b32 v5, 1, v1
    v_lshl_add_u32 v4, v5, 5, v4    ; 16*(cq&1) elements
    v_bfe_u32 v5, v1, 4, 1
    v_lshl_add_u32 v4, v5, 4, v4    ; 8*(G&1)
    v_bfe_u32 v5, v1, 1, 1
    v_lshl_add_u32 v4, v5, 3, v4    ; 4*(cq>>1)
    v_add_u32 v13, s52, v4
    s_lshl_b32 s40, s44, 15
    s_add_u32 s40, s40, s52
    s_add_u32 s40, s40, 0x%x
    s_add_u32 s41, s40, 4096
    s_waitcnt lgkmcnt(0)
    """ % OFF["WOF"])
    for i in range(8):
        a("s_add_u32 m0, s52, %d" % (i * 1024))
        a("buffer_load_dwordx4 v12, s[20:23], s46 offen lds")
        if i < 7: a("s_add_u32 s46, s46, %d" % (16 * 1024))
    a("s_waitcnt vmcnt(0)")
    for i in range(8):
        a("ds_read_b64_tr_b16 %s, v13 offset:%d" % (R(48 + 4 * i, 2), i * 1024))
        a("ds_read_b64_tr_b16 %s, v13 offset:%d" % (R(50 + 4 * i, 2), i * 1024 + 512))
        if i == 3 or i == 7:
            a("s_waitcnt lgkmcnt(0)")
            for x in range(i - 3, i + 1):
                a("buffer_store_dwordx4 %s, v9, s[8:11], s%d offen offset:%d" % (R(48 + 4 * x, 4), 40 + (x >> 2), 1024 * (x & 3)))
    a("s_endpgm")

def k_col():
    k2 = K("col2_kernel", 192); a = k2.a
    a("s_mov_b32 s47, 0x%x\ns_movk_i32 s61, 256\ns_branch L_col" % OFF["SSQ2"])
    k = K("col1_kernel", 192); a = k.a
    a("s_mov_b32 s47, 0x%x\ns_movk_i32 s61, 272" % OFF["SSQ0"])
    a("L_col:")
    X1, X2, X3 = 0, 8704, 17408
    RAW, SQ, UO, M1, M2, TWF, TWI, WW, WU, BUF = 16, 24, 32, 48, 80, 112, 128, 144, 176, 144
    WW = 16
    WW = 184
    WU = 176
    a("s_cmp_ge_u32 s2, s61\ns_cbranch_scc1 L_col_end")
    srd_load(a, 8, "ws"); srd_tab(a, 16)
    lane_setup(a)
    a("s_cmp_ge_u32 s2, 256\ns_cbranch_scc1 L_wp")
    a("s_mov_b32 s48, %d\ns_mov_b32 s49, %d" % (TOFF["M1"], TOFF["M1"] + 4096))
    for f in range(8): a("buffer_load_dwordx4 %s, v9, s[16:19], s%d offen offset:%d" % (R(M1 + 4 * f, 4), 48 + (f >> 2), 1024 * (f & 3)))
    a("""
    s_and_b32 s42, s2, 7
    s_lshr_b32 s43, s2, 3
    s_lshl_b32 s42, s42, 5
    s_add_u32 s42, s42, s43         ; slot k
    v_and_b32 v5, 15, v1            ; b_l
    v_lshrrev_b32 v6, 4, v1         ; q
    v_lshlrev_b32 v7, 2, v1
    s_lshl_b32 s44, s3, 11          ; w*2048
    s_lshl_b32 s45, s42, 13
    s_add_u32 s45, s45, s44         ; k*8192 + w*2048
    s_add_u32 s54, s45, 0x%x
    s_add_u32 s45, s45, 0x%x
    s_add_u32 s47, s47, s44
    s_lshl_b32 s50, s3, 13
    s_add_u32 s50, s50, %d
    s_add_u32 s51, s50, 4096
    s_waitcnt lgkmcnt(0)
    """ % (OFF["WT"], OFF["UC"], TOFF["M2"]))
    k.mark()
    for v in range(8): a("buffer_load_dword v%d, v7, s[8:11], s47 offen offset:%d" % (SQ + v, 256 * v))
    for v in range(8): a("buffer_load_dword v%d, v7, s[8:11], s45 offen offset:%d" % (RAW + v, 256 * v))
    m_in = a.vm - 1
    a("""
    s_lshl_b32 s56, s3, 4
    v_add_u32 v10, s56, v5
    v_cvt_f32_u32 v10, v10
    v_mul_f32 v10, 0x3a000000, v10      ; b/2048
    v_lshlrev_b32 v11, 3, v6
    v_cvt_f32_u32 v11, v11
    v_mul_f32 v11, v10, v11
    """)
    for i in range(8):
        a("v_fmamk_f32 v12, v10, 0x%x, v11" % fbits(i))
        a("v_cos_f32 v%d, v12\nv_sin_f32 v%d, v12" % (TWF + 2 * i, TWF + 2 * i + 1))
    for f in range(8): a("buffer_load_dwordx4 %s, v9, s[16:19], s%d offen offset:%d" % (R(M2 + 4 * f, 4), 50 + (f >> 2), 1024 * (f & 3)))
    a("v_lshlrev_b32 v15, 8, v3\nv_lshl_add_u32 v15, v2, 2, v15")
    for i in range(8): a("buffer_load_dword v%d, v15, s[8:11], s54 offen offset:%d" % (WW + i, 128 * (4 * (i >> 1) + (i & 1))))
    m_w = a.vm - 1
    k.mark()
    a("""
    v_cvt_f32_u32 v10, v2
    v_mul_f32 v10, 0x3a000000, v10
    v_lshlrev_b32 v11, 1, v3
    v_add_u32 v11, s56, v11
    v_cvt_f32_u32 v11, v11
    v_mul_f32 v11, v10, v11
    s_mov_b32 s58, 0x3a000000
    s_mov_b32 s59, 0x3a000000
    """)
    for g in range(4):
        for e in range(2):
            i = 2 * g + e
            a("v_fmamk_f32 v12, v10, 0x%x, v11" % fbits(4 * g + e))
            a("v_cos_f32 v%d, v12\nv_sin_f32 v%d, v12" % (TWI + 2 * i, TWI + 2 * i + 1))
    for i in range(8): a("v_pk_mul_f32 %s, %s, s[58:59]" % (R(TWI + 2 * i, 2), R(TWI + 2 * i, 2)))
    a("""
    s_movk_i32 s57, 2176
    v_mul_lo_u32 v10, v6, s57           ; 8q*272
    v_lshl_add_u32 v10, v5, 2, v10
    s_lshl_b32 s58, s3, 6
    v_add_u32 v10, s58, v10             ; X1 write
    s_movk_i32 s57, 272
    v_mul_lo_u32 v11, v2, s57
    v_lshl_add_u32 v12, v3, 3, v11
    v_add_u32 v12, s58, v12             ; X2 write
    v_lshl_add_u32 v11, v3, 4, v11      ; X1/X2 read
    s_mul_i32 s58, s3, 2304
    s_movk_i32 s57, 288
    v_mul_lo_u32 v13, v3, s57
    v_lshl_add_u32 v13, v2, 2, v13
    v_add_u32 v13, s58, v13             ; X3 write
    s_movk_i32 s57, 144
    v_mul_lo_u32 v14, v5, s57
    v_add_u32 v14, s58, v14
    v_lshl_add_u32 v14, v6, 5, v14      ; X3 read: (16w+b_l)*144 + q*32
    s_lshr_b32 s40, s42, 2
    s_lshl_b32 s40, s40, 9
    s_and_b32 s41, s42, 3
    s_lshl_b32 s41, s41, 2
    s_add_u32 s40, s40, s41
    s_lshl_b32 s41, s3, 19
    s_add_u32 s40, s40, s41
    s_add_u32 s40, s40, 0x%x
    v_lshlrev_b32 v8, 15, v3
    v_lshl_add_u32 v8, v2, 4, v8        ; UB: (lane>>5)*32768 + m*16
    s_mov_b32 s60, 0x%x
    v_mov_b32 v4, 0x%x
    """ % (OFF["UB"], fbits(1.0 / 512), fbits(1e-5)))
    k.mark()
    a.wait_vm(m_in - 8)
    for i in range(8): a("v_fma_f32 v%d, v%d, s60, v4" % (SQ + i, SQ + i))
    for i in range(8): a("v_rsq_f32 v%d, v%d" % (SQ + i, SQ + i))
    a.wait_vm(m_in)
    k.mark()
    T0 = BUF
    for v in range(8):
        a("v_and_b32 v%d, 0xffff0000, v%d\nv_lshlrev_b32 v%d, 16, v%d" % (UO + 2 * v, RAW + v, UO + 2 * v + 1, RAW + v))
        s = v & 1
        a("v_pk_mul_f32 %s, %s, %s op_sel:[0,%d] op_sel_hi:[1,%d]" % (R(T0 + 2 * v, 2), R(UO + 2 * v, 2), R(SQ + v - s, 2), s, s))
    a("s_cmp_eq_u32 s42, 0\ns_cbranch_scc0 L_col_n0")
    for v in range(8): a("v_mov_b32 v%d, 0" % (T0 + 2 * v))
    a("L_col_n0:")
    for v in range(8): a("v_cvt_pk_bf16_f32 v%d, v%d, v%d" % (SQ + v, T0 + 2 * v + 1, T0 + 2 * v))
    for t in range(2):
        for tau in range(4):
            d = R(T0 + 4 * tau, 4)
            a("v_mfma_f32_16x16x32_bf16 %s, %s, %s, %s" % (d, R(M1 + 4 * (2 * tau + t), 4), R(SQ + 4 * t, 4), "0" if t == 0 else d))
    T1_ = BUF + 16
    for i in range(8):
        y, tw, t = R(T0 + 2 * i, 2), R(TWF + 2 * i, 2), R(T1_ + 2 * i, 2)
        a("v_pk_mul_f32 %s, %s, %s op_sel:[0,0] op_sel_hi:[1,0]" % (t, y, tw))
        a("v_pk_fma_f32 %s, %s, %s, %s op_sel:[1,1,0] op_sel_hi:[0,1,1] neg_hi:[1,0,0]" % (t, y, tw, t))
        a("v_cvt_pk_bf16_f32 v%d, v%d, v%d" % (SQ + i, T1_ + 2 * i, T1_ + 2 * i + 1))
        a("ds_write_b32 v10, v%d offset:%d" % (SQ + i, X1 + i * 272))
    a("s_waitcnt lgkmcnt(0)\ns_barrier")
    k.mark()
    for t in range(8): a("ds_read_b128 %s, v11 offset:%d" % (R(BUF + 4 * t, 4), X1 + 32 * t))
    a.wait_vm(m_w)
    AC = TWF
    for t in range(8):
        a("s_waitcnt lgkmcnt(%d)" % (7 - t))
        a("v_mfma_f32_32x32x16_bf16 %s, %s, %s, %s" % (R(AC, 16), R(M2 + 4 * t, 4), R(BUF + 4 * t, 4), "0" if t == 0 else R(AC, 16)))
    for i in range(8):
        a("v_lshlrev_b32 v%d, 16, v%d\nv_and_b32 v%d, 0xffff0000, v%d" % (T0 + 2 * i, WW + i, T0 + 2 * i + 1, WW + i))
    for i in range(8):
        y, w, t = R(AC + 2 * i, 2), R(T0 + 2 * i, 2), R(T1_ + 2 * i, 2)
        a("v_pk_mul_f32 %s, %s, %s op_sel:[0,0] op_sel_hi:[1,0] neg_hi:[1,0]" % (t, y, w))
        a("v_pk_fma_f32 %s, %s, %s, %s op_sel:[1,1,0] op_sel_hi:[0,1,1] neg_lo:[1,0,0] neg_hi:[1,0,0]" % (t, y, w, t))
        a("v_cvt_pk_bf16_f32 v%d, v%d, v%d" % (SQ + i, T1_ + 2 * i, T1_ + 2 * i + 1))
        if i & 1: a("ds_write_b64 v12, %s offset:%d" % (R(SQ + i - 1, 2), X2 + 16 * (i >> 1)))
    a("s_waitcnt lgkmcnt(0)\ns_barrier")
    k.mark()
    for t in range(8): a("ds_read_b128 %s, v11 offset:%d" % (R(BUF + 4 * t, 4), X2 + 32 * t))
    for t in range(8):
        a("s_waitcnt lgkmcnt(%d)" % (7 - t))
        a("v_mfma_f32_32x32x16_bf16 %s, %s, %s, %s" % (R(AC, 16), R(M2 + 4 * t, 4), R(BUF + 4 * t, 4), "0" if t == 0 else R(AC, 16)))
    for i in range(8):
        y, tw, t = R(AC + 2 * i, 2), R(TWI + 2 * i, 2), R(T0 + 2 * i, 2)
        a("v_pk_mul_f32 %s, %s, %s op_sel:[0,1] op_sel_hi:[0,0]" % (t, y, tw))
        a("v_pk_fma_f32 %s, %s, %s, %s op_sel:[1,0,0] op_sel_hi:[1,1,1] neg_lo:[1,0,0]" % (t, y, tw, t))
        a("v_cvt_pk_bf16_f32 v%d, v%d, v%d" % (SQ + i, T0 + 2 * i, T0 + 2 * i + 1))
        a("ds_write_b32 v13, v%d offset:%d" % (SQ + i, X3 + (4 * (i >> 1) + (i & 1)) * 144))
    a("s_waitcnt lgkmcnt(0)")
    for t in range(2): a("ds_read_b128 %s, v14 offset:%d" % (R(BUF + 4 * t, 4), X3 + 16 * t))
    a("s_waitcnt lgkmcnt(0)")
    k.mark()
    for t in range(2):
        for tau in range(4):
            d = R(UO + 4 * tau, 4)
            a("v_mfma_f32_16x16x32_bf16 %s, %s, %s, %s" % (d, R(M1 + 4 * (2 * tau + t), 4), R(BUF + 4 * t, 4), d))
    a("s_cmp_eq_u32 s42, 0\ns_cbranch_scc0 L_col_n1")
    for v in range(8): a("v_and_b32 v%d, 0xffff0000, v%d" % (UO + 2 * v, RAW + v))
    a("L_col_n1:")
    for v in range(8):
        a("v_cvt_pk_bf16_f32 v%d, v%d, v%d" % (SQ + v, UO + 2 * v + 1, UO + 2 * v))
        a("buffer_store_dword v%d, v8, s[8:11], s40 offen" % (SQ + v))
        if v < 7: a("s_add_u32 s40, s40, 0x10000")
    a("L_col_end:")
    a("s_endpgm")
    wprep_roles(k)
    return (k, 272, 256, 32768), (k2, 256, 256, 32768)

from prep4 import k_prep
from mha3 import k_mha


def hexdump(arr):
    u = np.ascontiguousarray(arr).reshape(-1).view(np.uint64)
    return "\n".join(".quad " + ",".join("0x%x" % v for v in u[i:i + 8]) for i in range(0, len(u), 8)) + "\n"

def tables():
    s = '.section .rodata,"a"\n.p2align 12\n'
    c = cos512()
    for i in range(512): s += ".set C%d, 0x%04x\n" % (i, c[i])
    s += r""".altmacro
.macro E8 a,b,c,d,e,f,g,h
.short C\a,C\b,C\c,C\d,C\e,C\f,C\g,C\h
.endm
.macro F8 p,k
E8 %((\p)&511),%((\p+\k)&511),%((\p+2*\k)&511),%((\p+3*\k)&511),%((\p+4*\k)&511),%((\p+5*\k)&511),%((\p+6*\k)&511),%((\p+7*\k)&511)
.endm
.macro G8 i0,i1,p,d
E8 %((\i0)&511),%((\i1)&511),%((\p+\d)&511),%((\p+\d+128)&511),%((\p+2*\d)&511),%((\p+2*\d+128)&511),%((\p+3*\d)&511),%((\p+3*\d+128)&511)
.endm
.type tables,@object
tables:
.set n, 0
.rept 32768
.set cc, ((n>>11)<<5) + (n&19) + ((n&4)<<1) + ((n&8)>>1)
.set dd, (((n>>6)&31)<<4) + (((n>>5)&1)<<3)
.set lt2, ((cc-2)>>63)&1
.set kk, (cc>>1) + 256*(((cc-1)>>63)&1)
.set pp, kk*dd + lt2*64 + (1-lt2)*128*(cc&1)
F8 pp, kk
.set n, n+1
.endr
.set n, 0
.rept 32768
.set dd, ((n>>11)<<5) + (((n>>2)&1)<<4) + (((n>>3)&3)<<2) + (n&3)
.set kk, (((n>>6)&31)<<3) + (((n>>5)&1)<<2)
.set z, ((kk-1)>>63)&1
.set pp, kk*dd
.set i0, z*(256*dd+64) + (1-z)*pp
.set i1, z*64 + (1-z)*(pp+128)
G8 i0, i1, pp, dd
.set n, n+1
.endr
.noaltmacro
"""
    s += hexdump(tab_M1()) + hexdump(tab_M2())
    return s

def build(order=None):
    c1, c2 = k_col()
    me = sys.modules[__name__]
    m1, m2 = k_mha(me)
    ks = dict(prep=k_prep(me), col2=c2, col1=c1, mha2=m2, mha1=m1, oproj=k_oproj(), final=k_final())
    order = order or ["prep", "col1", "mha1", "oproj", "col2", "mha2", "final"]
    ref = open("cdna_kernels/%s.s.ref" % NAME).read().split("\n")
    head = "\n".join(l for l in ref[:10]) + "\n"
    for o in order:
        k, g, b, lds = ks[o]
        head += "; @launch kernel=%s grid=(%d,1,1) block=(%d,1,1) lds=%d\n" % (k.name, g, b, lds)
    s = head + '.amdgcn_target "amdgcn-amd-amdhsa--gfx950"\n'
    for k, *_ in ks.values(): s += k.text()
    for k, *_ in ks.values(): s += k.desc()
    s += tables()
    return s

if __name__ == "__main__":
    out = sys.argv[1] if len(sys.argv) > 1 else "cdna_kernels/%s.s" % NAME
    STAMP = len(sys.argv) > 2 and "stamp" in sys.argv[2]
    for kv in sys.argv[3:]:
        key, val = kv.split("="); OPT[key] = int(val)
    open(out, "w").write(build())
    print("wrote", out)
```

```python
def k_mha(G):
    K, R, OFF, TOFF, srd_load, srd_tab, lane_setup, OPT, fbits, LAYER = G.K, G.R, G.OFF, G.TOFF, G.srd_load, G.srd_tab, G.lane_setup, G.OPT, G.fbits, G.LAYER
    NV = 232
    k2 = K("mha2_kernel", NV)
    k2.a("s_mov_b32 s65, 0x%x\ns_mov_b32 s66, 1\ns_branch L_mha" % LAYER)
    k = K("mha1_kernel", NV); a = k.a
    a("s_mov_b32 s65, 0\ns_mov_b32 s66, 0")
    a("L_mha:")
    IDX = 12; KA0 = 13; VA0 = 14; VINC = 15
    Q = 16; KB = 24; VB = 32; S0, S1, CM, OA = 48, 64, 80, 112
    RS = 144; AL = 148; LN = 149; AW = 152; A3 = 216
    CB = 0x20000; BN = 0x21000; XB = 0x22400; WL = 0x2000
    a("s_cmp_ge_u32 s2, 256\ns_cbranch_scc1 L_mha_end")
    srd_load(a, 8, "ws"); srd_load(a, 12, "out"); srd_tab(a, 20)
    lane_setup(a)
    a("""
    s_and_b32 s40, s2, 7
    s_lshr_b32 s41, s2, 3
    s_and_b32 s42, s40, 1
    s_lshl_b32 s42, s42, 4
    s_and_b32 s47, s41, 15
    s_add_u32 s42, s42, s47         ; head
    s_lshr_b32 s43, s40, 1
    s_lshl_b32 s43, s43, 1
    s_lshr_b32 s48, s41, 4
    s_add_u32 s43, s43, s48         ; qb
    s_lshl_b32 s48, s48, 2
    s_add_u32 s51, s47, s48         ; rot (chunks of 4 k-steps)
    s_lshl_b32 s44, s43, 3
    s_add_u32 s44, s44, s3          ; projection row tile
    s_lshl_b32 s45, s44, 15
    s_add_u32 s45, s45, 0x%x        ; UB tile
    s_mul_i32 s46, s42, 49152
    s_add_u32 s46, s46, 0x%x        ; W' of the head
    s_add_u32 s47, s51, s3
    s_and_b32 s47, s47, 7
    s_lshl_b32 s48, s47, 12
    s_add_u32 s48, s48, s46
    s_lshl_b32 s49, s47, 11
    s_add_u32 s49, s49, s46
    s_add_u32 s49, s49, 32768
    s_lshl_b32 s52, s3, 12
    s_lshl_b32 s53, s3, 11
    s_add_u32 m0, s52, 0x%x
    v_lshlrev_b32 v5, 4, v2
    s_waitcnt lgkmcnt(0)
    """ % (OFF["UB"], OFF["WP"], WL))
    k.mark()
    UF = 48; AQK = 112; AV = 128; WB = 16; RING = OPT.get('ring', 16)
    def ureg(t):
        i = t % RING
        return UF + 4 * i if i < 16 else AW + 4 * (i - 16)
    um = []
    def uload(t):
        if t % 4 == 0:
            a("s_add_u32 s54, s51, %d\ns_and_b32 s54, s54, 7\ns_lshl_b32 s54, s54, 12\ns_add_u32 s54, s54, s45" % (t >> 2))
        a("buffer_load_dwordx4 %s, v9, s[8:11], s54 offen offset:%d" % (R(ureg(t), 4), 1024 * (t & 3)))
        um.append(a.vm - 1)
    for t in range(OPT.get("ub", 0)): uload(t)
    for i in range(4): a("buffer_load_dwordx4 v9, s[8:11], s48 offen offset:%d lds" % (1024 * i))
    a("s_add_u32 m0, s53, 0x%x" % (WL + 32768))
    for i in range(2): a("buffer_load_dwordx4 v9, s[8:11], s49 offen offset:%d lds" % (1024 * i))
    m_w = a.vm - 1
    UPRE = OPT.get("upre", 8)
    while len(um) < OPT.get("u0", 3): uload(len(um))
    a("""
    v_mov_b32 v%(LN)d, v1
    v_lshlrev_b32 v150, 2, v2               ; partial-sum store offset m*4
    v_lshl_add_u32 v151, v3, 9, v150        ; partial-sum load offset h*512 + m*4
    s_lshl_b32 s58, s44, 10
    s_lshl_b32 s59, s66, 16
    s_add_u32 s58, s58, s59
    s_add_u32 s58, s58, 0x%(psq)x
    s_and_b32 s59, s51, 7
    s_lshl_b32 s59, s59, 7
    s_add_u32 s59, s59, s58
    v_mov_b32 v148, v5
    v_and_b32 v5, 15, v1
    v_lshlrev_b32 v5, 4, v5
    v_lshl_add_u32 v5, v3, 8, v5            ; h*256 + (m&15)*16
    v_add_u32 v7, 0x%(wv)x, v5              ; W'v read address
    v_add_u32 v6, 0x%(wl)x, v9              ; W'qk read address
    s_lshr_b32 s41, s3, 2                   ; kh
    s_lshl_b32 s55, s41, 12
    v_add_u32 v%(KA0)d, s55, v9
    s_add_u32 s55, s55, 0x10000
    v_add_u32 v4, s55, v5
    v_and_b32 v10, 27, v2
    v_cmp_eq_u32 vcc, 16, v10
    v_mov_b32 v10, 0x%(cb1)x
    v_mov_b32 v11, 0x%(cb0)x
    v_cndmask_b32 v10, v10, v11, vcc
    v_cmp_gt_u32 s[60:61], 16, v2
    v_mov_b32 v11, 0
    v_mov_b32 v%(IDX)d, 8192
    v_cndmask_b32 v%(VA0)d, v10, v4, s[60:61]
    v_cndmask_b32 v%(VINC)d, v11, v%(IDX)d, s[60:61]
    v_mov_b32 v%(IDX)d, 0xdddddddd
    v_lshrrev_b32 v4, 1, v1
    v_and_b32 v10, 7, v4
    v_lshrrev_b32 v4, 3, v4
    v_lshlrev_b32 v10, 9, v10
    v_lshl_add_u32 v4, v4, 13, v10
    v_and_b32 v10, 1, v1
    v_lshl_add_u32 v4, v10, 4, v4
    v_add_u32 v4, 0x%(cb0)x, v4
    v_add_u32 v10, -1, v10
    v_and_b32 v16, 0x3f803f80, v10
    v_mov_b32 v17, v16
    v_mov_b32 v18, v16
    v_mov_b32 v19, v16
    s_mov_b64 exec, 0xfffff
    ds_write_b128 v4, v[16:19]
    s_mov_b64 exec, -1
    v_mov_b32 v10, 0
    v_mov_b32 v11, 0
    """ % dict(KA0=KA0, VA0=VA0, VINC=VINC, IDX=IDX, cb0=CB, cb1=CB + 16, wl=WL, wv=WL + 32768, LN=LN, psq=OFF["PSQ"]))
    for r in range(80): a("v_mov_b32 v%d, 0" % (AW + r))
    a.wait_vm(m_w, "lgkmcnt(0)"); a("s_barrier")
    k.mark()
    def wrd(t):
        b = WB + 8 * (t & 3)
        a("ds_read_b128 %s, v6 offset:%d" % (R(b, 4), t * 1024))
        a("ds_read_b128 %s, v7 offset:%d" % (R(b + 4, 4), t * 512))
    for t in range(3): wrd(t)
    while len(um) < OPT.get("u1", 6): uload(len(um))
    def sq(r):
        a("v_and_b32 v4, 0xffff0000, v%d\nv_lshlrev_b32 v0, 16, v%d\nv_fmac_f32 v10, v4, v4\nv_fmac_f32 v11, v0, v0" % (r, r))
    for t in range(32):
        u = ureg(t); b = WB + 8 * (t & 3); z = t == 0
        if t + 3 < 32: wrd(t + 3)
        a.wait_vm(um[t], "lgkmcnt(%d)" % (2 * min(3, 31 - t)))
        a("v_mfma_f32_32x32x16_bf16 %s, %s, %s, %s" % (R(AQK, 16), R(b, 4), R(u, 4), "0" if z else R(AQK, 16)))
        if len(um) < min(32, t + UPRE): uload(len(um))
        a("v_mfma_f32_32x32x16_bf16 %s, %s, %s, %s" % (R(AV, 16), R(u, 4), R(b + 4, 4), "0" if z else R(AV, 16)))
        if t == 3:
            a("s_cmp_lt_u32 s42, 8\ns_cbranch_scc0 L_mha_nsq")
            for r in range(16): sq(UF + r)
            a("v_add_f32 v10, v10, v11\nv_mov_b32 v11, v10\nv_permlane32_swap_b32 v10, v11\nv_add_f32 v10, v10, v11\ns_mov_b32 exec_hi, 0")
            a("buffer_store_dword v10, v150, s[8:11], s59 offen sc1")
            a.vm -= 1
            a("s_mov_b64 exec, -1")
            a("L_mha_nsq:")
        if len(um) < min(32, t + 1 + UPRE): uload(len(um))
        if t == OPT.get("pst", 25):
            a("buffer_load_dword v8, v148, s[8:11], s45 offen")
            for i in range(4): a("buffer_load_dword v%d, v151, s[8:11], s58 offen offset:%d sc1" % (RS + i, 128 * i))
    k.mark()
    a("s_mov_b32 s70, 0")
    a("L_mha_ps:")
    a("""
    s_waitcnt vmcnt(0)
    v_or3_b32 v4, v144, v145, v146
    v_or_b32 v4, v4, v147
    v_cmp_gt_i32 vcc, 0, v4
    s_add_u32 s70, s70, 1
    s_cmp_gt_u32 s70, 0x10000
    s_cbranch_scc1 L_mha_ps1
    s_cbranch_vccz L_mha_ps1
    buffer_load_dword v144, v151, s[8:11], s58 offen sc1
    buffer_load_dword v145, v151, s[8:11], s58 offen offset:128 sc1
    buffer_load_dword v146, v151, s[8:11], s58 offen offset:256 sc1
    buffer_load_dword v147, v151, s[8:11], s58 offen offset:384 sc1
    s_branch L_mha_ps
L_mha_ps1:
    v_add_f32 v10, v144, v145
    v_add_f32 v11, v146, v147
    v_and_b32 v8, 0xffff0000, v8
    v_add_f32 v10, v10, v11
    v_mov_b32 v11, v10
    v_permlane32_swap_b32 v10, v11
    v_add_f32 v10, v10, v11
    v_fma_f32 v10, -v8, v8, v10
    v_mov_b32 v11, 0x%x
    v_fmac_f32 v11, 0x%x, v10
    v_rsq_f32 v10, v11
    s_lshl_b32 s48, s3, 8
    s_add_u32 s48, s48, 0x%x
    v_lshl_add_u32 v6, v1, 2, s48
    v_lshl_add_u32 v7, v3, 4, s48
    v_bfe_u32 v4, v1, 4, 1
    v_lshl_add_u32 v7, v4, 6, v7    ; lanes m>=16 take rows 16..31
    ds_write_b32 v6, v10
    s_waitcnt lgkmcnt(0)
    ds_read_b128 v[32:35], v7
    ds_read_b128 v[36:39], v7 offset:32
    v_lshl_add_u32 v5, v4, 9, v5    ; f*512 + h*256 + dim*16
    s_lshl_b32 s48, s42, 16
    s_add_u32 s48, s48, s65
    s_add_u32 s48, s48, 0x%x        ; K base of the head
    s_lshl_b32 s49, s44, 10
    s_add_u32 s49, s49, s48
    s_add_u32 s50, s49, 0x%x
    s_lshl_b32 s52, s3, 10
    v_and_b32 v6, 0x33, v1
    v_and_b32 v4, 4, v1
    v_lshl_or_b32 v6, v4, 1, v6
    v_and_b32 v4, 8, v1
    v_lshrrev_b32 v4, 1, v4
    v_or_b32 v6, v6, v4
    v_lshlrev_b32 v6, 4, v6         ; swap23(lane)*16
    v_add_u32 v8, s52, v6
    s_add_u32 s53, s52, 0x10000
    v_add_u32 v0, s53, v5
    s_add_u32 s53, s52, 0x%x
    v_add_u32 v4, s53, v9
    """ % (fbits(1e-5), fbits(1.0 / 512), BN, OFF["KF"], OFF["VF"] - OFF["KF"], XB))
    for r in range(8, 16): a("v_mul_f32 v%d, v10, v%d" % (AQK + r, AQK + r))
    for r in range(4): a("v_cvt_pk_bf16_f32 v%d, v%d, v%d" % (52 + r, AQK + 8 + 2 * r, AQK + 9 + 2 * r))
    a("buffer_store_dwordx4 v[52:55], v6, s[8:11], s49 offen sc1")
    a("ds_write_b128 v8, v[52:55]")
    for r in range(8): a("v_cndmask_b32 v%d, v%d, v%d, s[60:61]" % (AV + r, AV + 8 + r, AV + r))
    a("s_waitcnt lgkmcnt(1)")
    for r in range(8): a("v_mul_f32 v%d, v%d, v%d" % (AV + r, AV + r, 32 + r))
    for r in range(4): a("v_cvt_pk_bf16_f32 v%d, v%d, v%d" % (56 + r, AV + 2 * r, AV + 1 + 2 * r))
    a("buffer_store_dwordx4 v[56:59], v5, s[8:11], s50 offen sc1")
    a("ds_write_b128 v0, v[56:59]")
    for r in range(8): a("v_mul_f32 v%d, v10, v%d" % (AQK + r, AQK + r))
    for r in range(4): a("v_cvt_pk_bf16_f32 v%d, v%d, v%d" % (48 + r, AQK + 2 * r, AQK + 1 + 2 * r))
    a("ds_write_b128 v4, v[48:51]")
    a("v_mul_f32 v60, v%d, v%d" % (AQK, AQK + 8))
    for r in range(1, 8): a("v_fmac_f32 v60, v%d, v%d" % (AQK + r, AQK + 8 + r))
    a("v_mov_b32 v61, v60\nv_permlane32_swap_b32 v60, v61\nv_add_f32 v60, v60, v61")
    a("v_sub_f32 v60, 0, v60\nv_mov_b32 v61, v60\nv_mov_b32 v62, v60\nv_mov_b32 v63, v60")
    a("ds_write_b128 v4, v[60:63] offset:8192")
    a("""
    s_and_b32 s40, s3, 3
    s_lshl_b32 s40, s40, 1
    s_add_u32 s40, s40, s41         ; local q tile
    s_lshl_b32 s44, s43, 3
    s_add_u32 s44, s44, s40         ; output row tile
    s_lshl_b32 s40, s40, 10
    v_add_u32 v4, s40, v9
    v_xor_b32 v5, 1024, v4
    v_add_u32 v4, 0x%x, v4
    v_add_u32 v5, 0x%x, v5
    s_add_u32 s48, s48, s52         ; K base + w*1024
    s_add_u32 s49, s52, 8192        ; LDS offset of the next group
    s_add_u32 s50, s43, 1           ; next block
    s_lshl_b32 s56, s42, 8
    s_lshl_b32 s57, s3, 5
    s_add_u32 s56, s56, s57
    s_lshl_b32 s57, s66, 13
    s_add_u32 s56, s56, s57
    s_add_u32 s56, s56, 0x%x        ; flags of (head, w)
    s_lshl_b32 s57, s43, 2
    s_add_u32 s57, s57, s56         ; own flag
    v_and_b32 v8, 7, v1
    v_lshlrev_b32 v8, 2, v8
    v_mov_b32 v0, 0
    v_mov_b32 v1, 1
    s_mov_b32 s62, 0
    s_mov_b32 s67, 0
    v_mov_b32 v6, v%d
    v_mov_b32 v7, v%d
    """ % (XB, XB, OFF["FLK"], KA0, VA0))
    for r in range(32): a("v_mov_b32 v%d, 0" % (OA + r))
    for r in range(8): a("v_mov_b32 v%d, 0" % (S1 + 8 + r))
    for r in range(4): a("v_mov_b32 v%d, 0" % (VB + 12 + r))
    if OPT.get("prio", 1): a("s_cmp_lt_u32 s3, 4\ns_cbranch_scc1 L_mha_np\ns_setprio 1\nL_mha_np:")
    a("s_waitcnt lgkmcnt(0)\ns_barrier")
    k.mark()
    def group():
        a("""
        s_and_b32 s51, s50, 7
        s_lshl_b32 s51, s51, 13
        s_mov_b32 m0, s49
        s_add_u32 s51, s51, s48
        buffer_load_dwordx4 v9, s[8:11], s51 offen sc1 lds
        s_add_u32 m0, s49, 0x10000
        s_add_u32 s51, s51, 0x%x
        buffer_load_dwordx4 v9, s[8:11], s51 offen sc1 lds
        s_add_u32 s49, s49, 8192
        s_add_u32 s50, s50, 1
        """ % (OFF["VF"] - OFF["KF"]))
    def off(t): return (t >> 2) * 8192 + (t & 3) * 1024
    def rdk(i, o): a("ds_read_b128 %s, v6 offset:%d" % (R(KB + 4 * i, 4), o))
    def rdv(i, f, o): a("ds_read_b128 %s, v7 offset:%d" % (R(VB + 8 * i + 4 * f, 4), o))
    def qk(S, i, q): a("v_mfma_f32_32x32x16_bf16 %s, %s, %s, %s" % (R(S, 16), R(KB + 4 * i, 4), R(Q + 4 * q, 4), R(CM + 16 * q, 16)))
    def pv(i, f, S, q): a("v_smfmac_f32_32x32x32_bf16 %s, %s, %s, v%d" % (R(OA + 16 * q, 16), R(VB + 8 * i + 4 * f, 4), R(S + 8 * f, 8), IDX))
    def ex(S, lo, hi):
        for r in range(lo, hi): a("v_exp_f32 v%d, v%d" % (S + r, S + r))
    a("ds_read_b128 %s, v4" % R(Q, 4))
    for g in range(4): a("ds_read_b128 %s, v4 offset:8192" % R(CM + 4 * g, 4))
    rdk(0, 0)
    a("ds_read_b128 %s, v5" % R(Q + 4, 4))
    for g in range(4): a("ds_read_b128 %s, v5 offset:8192" % R(CM + 16 + 4 * g, 4))
    rdv(0, 0, 0); rdv(0, 1, 512); rdk(1, 1024)
    a("s_waitcnt lgkmcnt(8)")
    qk(S0, 0, 0)
    a("s_waitcnt lgkmcnt(3)")
    k.mark()
    def body(x=False, hooks={}, loop=False, last=False):
        for u in range(8):
            t, q = u >> 1, u & 1
            Sc, Sn = (S0, S1) if q == 0 else (S1, S0)
            ex(Sc, 0, 2)
            pv((t - 1 + q) & 1, 1, Sn, 1 - q)
            if u in hooks: hooks[u]()
            nv = not (last and t == 3); nk = not (last and t >= 2)
            if q == 0 and nv:
                rdv((t + 1) & 1, 0, off(t + 1)); rdv((t + 1) & 1, 1, off(t + 1) + 512)
            ex(Sc, 2, 5)
            if not (last and u == 7): qk(Sn, (t + q) & 1, 1 - q)
            if q == 0 and nk: rdk(t & 1, off(t + 2))
            ex(Sc, 5, 10)
            if q == 0: a("s_waitcnt lgkmcnt(%d)" % (2 * nv + nk))
            pv(t & 1, 0, Sc, q)
            if u == 7 and not last:
                a("v_add_u32 v6, 8192, v6\nv_add_u32 v7, v%d, v7" % VINC)
            if u == 7 and loop:
                a("s_add_u32 s63, s63, 1\ns_cmp_lt_u32 s63, 8")
            if x:
                ex(Sc, 10, 14)
                a("s_waitcnt vmcnt(14)")
                a("v_mfma_f32_32x32x16_bf16 %s, %s, %s, %s" % (R(A3, 16), R(AW + 4 * u, 4), R(AW + 32 + 4 * u, 4), R(A3, 16)))
                a("buffer_load_dwordx4 %s, v%d, s[20:23], s%d offen offset:%d" % (R(AW + 4 * u, 4), AL, 76 + (u >> 2), 1024 * (u & 3)))
                a("buffer_load_dwordx4 %s, v150, s[8:11], s%d offen offset:%d" % (R(AW + 32 + 4 * u, 4), 78 + (u >> 2), 1024 * (u & 3)))
                ex(Sc, 14, 16)
            else:
                ex(Sc, 10, 16)
    def h_flag(): a("s_waitcnt vmcnt(0)\nbuffer_store_dword v1, v0, s[8:11], s57 offen sc1")
    def h_poll(): a("buffer_load_dword v2, v8, s[8:11], s56 offen sc1")
    def h_chk():
        a("s_waitcnt vmcnt(0)\nv_cmp_ne_u32 vcc, 1, v2\ns_nop 1\ns_cbranch_vccnz L_mha_nr")
        group(); group()
        a("s_mov_b32 s67, 1\nL_mha_nr:")
    def h_sync(n, g):
        def f():
            a("s_waitcnt vmcnt(%d)\ns_barrier" % n)
            for _ in range(g): group()
        return f
    def h_ids():
        a("""
        s_lshl_b32 s72, s43, 3
        s_lshr_b32 s73, s42, 2
        s_add_u32 s72, s72, s73         ; row tile of the output projection
        s_and_b32 s73, s42, 3
        s_lshl_b32 s73, s73, 2
        s_and_b32 s74, s3, 3
        s_add_u32 s73, s73, s74         ; column tile
        s_lshl_b32 s74, s73, 15
        s_lshl_b32 s75, s41, 14
        s_add_u32 s74, s74, s75         ; weight offset: tile*32K + kh*16K
        s_lshl_b32 s71, s72, 15
        s_add_u32 s71, s71, 0x%x        ; UB row tile
        s_add_u32 s78, s71, s75
        s_add_u32 s76, s74, 0x%x
        s_add_u32 s77, s76, 4096
        s_add_u32 s79, s78, 4096
        s_lshl_b32 s75, s41, 8
        v_xor_b32 v%d, s75, v9
        v_mov_b32 v150, v9
        s_lshl_b32 s75, s73, 11
        s_add_u32 s71, s71, s75
        s_lshl_b32 s75, s41, 10
        s_add_u32 s71, s71, s75
        buffer_load_dwordx4 %s, v9, s[8:11], s71 offen
        """ % (OFF["UB"], TOFF["T2"], AL, R(RS, 4)))
    def h_x2():
        for r in (76, 77, 78, 79): a("s_add_u32 s%d, s%d, 8192" % (r, r))
    def h_w():
        a("""
        s_setprio 0
        s_lshl_b32 s75, s66, 19
        s_add_u32 s76, s74, s75
        s_add_u32 s76, s76, 0x%x
        s_add_u32 s78, s76, 8192
        s_mov_b64 s[20:21], s[8:9]
        s_mov_b32 s22, s10
        v_mov_b32 v150, v%d
        s_add_u32 s77, s76, 4096
        s_add_u32 s79, s78, 4096
        """ % (OFF["WOP"], AL))
    assert OFF["WOF"] - OFF["WOP"] == 1 << 19
    body(hooks={OPT.get("hf", 0): h_flag, OPT.get("hp", 4): h_poll, OPT.get("hc", 7): h_chk}, last=True)
    a("v_add_u32 v6, 8192, v6\nv_add_u32 v7, v%d, v7" % VINC)
    a("s_cmp_eq_u32 s67, 1\ns_cbranch_scc0 L_mha_spin0")
    a("L_mha_rdy:")
    if OPT.get("mk") == 1: k.mark(0)
    a("s_waitcnt vmcnt(2)\ns_barrier")
    if OPT.get("mk") == 1: k.mark(1)
    rdk(0, 0); rdv(0, 0, 0); rdv(0, 1, 512); rdk(1, 1024)
    group()
    a("s_waitcnt lgkmcnt(3)")
    qk(S0, 0, 0)
    if OPT.get("kv2", 1):
        body(hooks={2: group, 4: h_sync(4, 1), 6: group})
        if OPT.get("mk") == 1: k.mark(2)
        body(hooks={0: group, 4: h_sync(0, 0)})
        body(hooks={0: h_ids})
    else:
        body(hooks={4: h_sync(2, 1)})
        body(hooks={0: group, 2: group, 4: h_sync(4, 1)})
        body(hooks={0: h_ids, 4: h_sync(0, 0)})
    a("s_cmp_eq_u32 s66, 0\ns_cbranch_scc0 L_mha_x45")
    body(); body()
    a("L_mha_i6:")
    if OPT.get("mk") == 1: k.mark(3)
    body(x=True, hooks={0: h_w})
    body(last=True)
    a("L_mha_fin:")
    k.nm = 5
    pv(1, 1, S1, 1)
    k.mark()
    a("s_waitcnt lgkmcnt(0)")
    a("v_mov_b32 v5, 0x4e800000")
    a("v_cmp_nlt_f32 vcc, v%d, v5" % (OA + 8))
    a("v_cmp_nlt_f32 s[68:69], v%d, v5" % (OA + 24))
    a("s_or_b64 vcc, vcc, s[68:69]")
    a("s_cmp_eq_u32 s62, 0\ns_cbranch_scc0 L_mha_out")
    a("s_cbranch_vccnz L_mha_slow")
    a("L_mha_out:")
    a("""
    s_mul_i32 s52, s3, 2560
    s_add_u32 s52, s52, 0x%x
    v_add_u32 v6, s52, v9
    v_lshrrev_b32 v4, 1, v9
    v_add_u32 v10, s52, v4
    s_xor_b32 s53, s3, 4
    s_mul_i32 s53, s53, 2560
    s_add_u32 s53, s53, 0x%x
    v_add_u32 v7, s53, v9
    v_add_u32 v11, s53, v4
    v_mov_b32 v%d, v%d
    ds_write_b128 v6, %s
    ds_write_b128 v6, %s offset:1024
    ds_write_b64 v10, %s offset:2048
    s_lshl_b32 s46, s44, 15
    s_lshl_b32 s47, s42, 10
    s_add_u32 s46, s46, s47
    s_add_u32 s46, s46, s65
    s_add_u32 s46, s46, 0x%x
    s_waitcnt lgkmcnt(0)
    s_barrier
    ds_read_b64 v[56:57], v11 offset:2048
    ds_read_b128 v[48:51], v7
    ds_read_b128 v[52:55], v7 offset:1024
    s_waitcnt lgkmcnt(2)
    v_min_f32 v4, v%d, v57
    v_sub_f32 v5, v4, v%d
    v_sub_f32 v4, v4, v57
    v_exp_f32 v10, v5
    v_exp_f32 v4, v4
    v_mul_f32 v5, v10, v%d
    v_fmac_f32 v5, v4, v56
    v_rcp_f32 v5, v5
    v_mul_f32 v10, v10, v5
    v_mul_f32 v4, v4, v5
    s_waitcnt lgkmcnt(0)
    """ % (XB, XB, OA + 25, CM + 16, R(OA + 16, 4), R(OA + 20, 4), R(OA + 24, 2), OFF["OF"], CM, CM, OA + 8))
    for r in range(8):
        a("v_mul_f32 v%d, v10, v%d" % (OA + r, OA + r))
        a("v_fmac_f32 v%d, v4, v%d" % (OA + r, 48 + r))
    for r in range(4): a("v_cvt_pk_bf16_f32 v%d, v%d, v%d" % (OA + r, OA + 2 * r, OA + 2 * r + 1))
    a("buffer_store_dwordx4 %s, v9, s[8:11], s46 offen sc1" % R(OA, 4))
    if OPT.get("mk") == 2: k.mark(0)
    a("""
    s_lshl_b32 s46, s72, 15
    s_lshl_b32 s52, s3, 12
    s_add_u32 s46, s46, s52
    s_add_u32 s46, s46, s65
    s_add_u32 s46, s46, 0x%x
    v_add_u32 v6, s52, v9
    s_lshl_b32 s53, s41, 14
    v_add_u32 v7, s53, v9
    v_and_b32 v5, 3, v%%d
    v_lshlrev_b32 v5, 10, v5
    s_mov_b32 s70, 0
    s_waitcnt vmcnt(0)
L_mha_ol:
    """ % OFF["OF"] % LN)
    if OPT.get("mk") == 2: a.raw("    s_cmp_eq_u32 s70, 0\n    s_cbranch_scc0 L_mk1"); k.mark(1); a.raw("L_mk1:")
    for i in range(4): a("buffer_load_dwordx4 %s, v9, s[8:11], s46 offen offset:%d sc1" % (R(48 + 4 * i, 4), 1024 * i))
    a("s_add_u32 s70, s70, 1\ns_waitcnt vmcnt(0)")
    a("v_max3_u32 v4, v48, v49, v50")
    for r in range(51, 63, 2): a("v_max3_u32 v4, v4, v%d, v%d" % (r, r + 1))
    a("v_max_u32 v4, v4, v63\nv_cmp_eq_u32 vcc, -1, v4")
    a("s_cmp_gt_u32 s70, 0x40000\ns_cbranch_scc1 L_mha_ol1\ns_cbranch_vccnz L_mha_ol")
    a("L_mha_ol1:")
    if G.STAMP: a("s_mov_b32 s95, s70")
    if OPT.get("mk") == 2: k.mark(2)
    for i in range(4): a("ds_write_b128 v6, %s offset:%d" % (R(48 + 4 * i, 4), 1024 * i))
    a("s_cmp_eq_u32 s66, 0\ns_cbranch_scc0 L_mha_i2")
    for p in range(4):
        a("v_lshlrev_b32 v%d, 16, v%d\nv_and_b32 v%d, 0xffff0000, v%d" % (A3 + 2 * p, RS + p, A3 + 2 * p + 1, RS + p))
    a("L_mha_i2:")
    a("s_waitcnt lgkmcnt(0)\ns_barrier")
    k.mark(6)
    for t in range(16):
        if t == 15: a("s_waitcnt lgkmcnt(14)")
        a("ds_read_b128 %s, v7 offset:%d" % (R(48 + 4 * t, 4), 1024 * t))
    for t in range(16):
        a("s_waitcnt lgkmcnt(%d)" % min(14, 15 - t))
        a("v_mfma_f32_32x32x16_bf16 %s, %s, %s, %s" % (R(A3, 16), R(AW + 4 * t, 4), R(48 + 4 * t, 4), R(A3, 16)))
    if OPT.get("mk") == 2: k.mark(3)
    a("""
    s_lshl_b32 s52, s3, 11
    s_add_u32 s52, s52, 0x8000
    v_add_u32 v6, s52, v9
    v_xor_b32 v7, 0x2000, v6
    v_and_b32 v2, 31, v%d
    ds_write_b128 v6, %s
    ds_write_b128 v6, %s offset:1024
    s_waitcnt lgkmcnt(0)
    s_barrier
    ds_read_b128 v[48:51], v7
    ds_read_b128 v[52:55], v7 offset:1024
    s_cmp_eq_u32 s66, 0
    s_cbranch_scc0 L_mha_f2
    ; layer 1: slot k = 16ct + 8f + 4h + jj ; UC address k*8192 + r*4
    s_lshl_b32 s40, s73, 17
    s_lshl_b32 s46, s41, 16
    s_add_u32 s40, s40, s46
    s_lshl_b32 s46, s72, 7
    s_add_u32 s40, s40, s46
    s_add_u32 s52, s40, 0x%x
    s_add_u32 s53, s52, 8192
    s_add_u32 s54, s52, 16384
    s_add_u32 s55, s52, 24576
    s_add_u32 s46, s46, 0x%x
    v_lshlrev_b32 v5, 15, v3
    v_lshl_add_u32 v5, v2, 2, v5
    v_lshlrev_b32 v6, 2, v2
    s_add_u32 s40, s73, s41
    v_add_u32 v4, s40, v3
    v_cmp_eq_u32 vcc, 0, v4
    s_waitcnt lgkmcnt(0)
    """ % (LN, R(A3 + 8, 4), R(A3 + 12, 4), OFF["UC"], OFF["SSQ2"]))
    for r in range(8): a("v_add_f32 v%d, v%d, v%d" % (A3 + r, A3 + r, 48 + r))
    for p in range(4):
        a("v_cvt_pk_bf16_f32 v%d, v%d, v%d" % (56 + p, A3 + 2 * p, A3 + 2 * p + 1))
        a("buffer_store_dword v%d, v5, s[8:11], s%d offen" % (56 + p, 52 + p))
    a("v_cndmask_b32 v7, v%d, v4, vcc\nv_mul_f32 v7, v7, v7\nv_mul_f32 v8, v%d, v%d" % (A3 + 1, A3, A3))
    for r in range(2, 8): a("v_fmac_f32 v%d, v%d, v%d" % (7 + (r & 1), A3 + r, A3 + r))
    a("""
    v_add_f32 v7, v7, v8
    v_mov_b32 v8, v7
    v_permlane32_swap_b32 v7, v8
    v_add_f32 v7, v7, v8
    s_mov_b32 exec_hi, 0
    buffer_atomic_add_f32 v7, v6, s[8:11], s46 offen
    s_endpgm
L_mha_f2:
    ; layer 2: transpose through LDS to 256-byte row segments
    s_and_b32 s40, s3, 3
    s_lshl_b32 s40, s40, 6
    s_lshl_b32 s46, s41, 4
    s_add_u32 s40, s40, s46
    s_add_u32 s40, s40, 0xC000
    s_movk_i32 s46, 272
    v_mul_lo_u32 v5, v2, s46
    v_lshl_add_u32 v5, v3, 5, v5
    v_add_u32 v5, s40, v5
    v_lshrrev_b32 v4, 4, v%(LN)d
    s_lshl_b32 s40, s3, 2
    v_add_u32 v4, s40, v4               ; row m of the tile
    v_and_b32 v8, 15, v%(LN)d
    v_lshlrev_b32 v8, 4, v8
    v_mad_u32_u24 v6, v4, s46, v8
    v_add_u32 v6, 0xC000, v6
    v_and_b32 v7, 15, v4
    v_lshl_add_u32 v7, v7, 10, v8
    v_lshrrev_b32 v4, 4, v4
    v_lshl_add_u32 v7, v4, 19, v7
    s_and_b32 s40, s72, 1
    s_lshl_b32 s40, s40, 20
    s_bfe_u32 s46, s72, 0x30001
    s_lshl_b32 s46, s46, 16
    s_add_u32 s40, s40, s46
    s_lshr_b32 s46, s72, 4
    s_lshl_b32 s46, s46, 14
    s_add_u32 s40, s40, s46
    s_and_b32 s46, s42, 3
    s_lshl_b32 s46, s46, 8
    s_add_u32 s40, s40, s46
    s_waitcnt lgkmcnt(0)
    """ % dict(LN=LN))
    for r in range(8): a("v_add_f32 v%d, v%d, v%d" % (A3 + r, A3 + r, 48 + r))
    for p in range(4): a("v_cvt_pk_bf16_f32 v%d, v%d, v%d" % (56 + p, A3 + 2 * p, A3 + 2 * p + 1))
    a("""
    ds_write_b128 v5, v[56:59]
    s_waitcnt lgkmcnt(0)
    s_barrier
    ds_read_b128 v[60:63], v6
    s_waitcnt lgkmcnt(0)
    buffer_store_dwordx4 v[60:63], v7, s[12:15], s40 offen
    """)
    a("L_mha_end:")
    a("s_endpgm")
    a("L_mha_spin0:")
    a("s_mov_b32 s70, 0")
    a("L_mha_spin:")
    a("buffer_load_dword v2, v8, s[8:11], s56 offen sc1\ns_add_u32 s70, s70, 1\ns_waitcnt vmcnt(0)\nv_cmp_ne_u32 vcc, 1, v2")
    a("s_cmp_gt_u32 s70, 0x40000\ns_cbranch_scc1 L_mha_go\ns_cbranch_vccnz L_mha_spin")
    a("L_mha_go:")
    group(); group()
    a("s_branch L_mha_rdy")
    a("L_mha_x45:")
    body(x=True)
    body(x=True, hooks={0: h_x2})
    a("s_branch L_mha_i6")
    a("L_mha_slow:")
    a("s_mov_b32 s62, 16\ns_mov_b32 s63, 0\nv_mov_b32 v6, v%d\nv_mov_b32 v4, 0xff800000\nv_mov_b32 v5, 0xff800000" % KA0)
    for r in range(32): a("v_mov_b32 v%d, 0" % (OA + r))
    a("L_mha_maxloop:")
    for i in range(4):
        a("ds_read_b128 %s, v6 offset:%d" % (R(KB, 4), 1024 * i))
        a("s_waitcnt lgkmcnt(0)")
        a("v_mfma_f32_32x32x16_bf16 %s, %s, %s, 0" % (R(S0, 16), R(KB, 4), R(Q, 4)))
        a("v_mfma_f32_32x32x16_bf16 %s, %s, %s, 0" % (R(S1, 16), R(KB, 4), R(Q + 4, 4)))
        for x, S in ((4, S0), (5, S1)):
            for r in range(0, 16, 2): a("v_max3_f32 v%d, v%d, v%d, v%d" % (x, x, S + r, S + r + 1))
    a("v_add_u32 v6, 8192, v6")
    a("s_add_u32 s63, s63, 1\ns_cmp_lt_u32 s63, 8\ns_cbranch_scc1 L_mha_maxloop")
    a("v_mov_b32 v6, v%d\nv_mov_b32 v7, v%d" % (KA0, VA0))
    rdk(0, 0); rdv(0, 0, 0); rdv(0, 1, 512); rdk(1, 1024)
    a("v_mov_b32 v10, v4\nv_mov_b32 v11, v5\nv_permlane32_swap_b32 v4, v10\nv_permlane32_swap_b32 v5, v11")
    a("v_max_f32 v4, v4, v10\nv_max_f32 v5, v5, v11")
    for r in range(16): a("v_sub_f32 v%d, 0, v4\nv_sub_f32 v%d, 0, v5" % (CM + r, CM + 16 + r))
    for r in range(8): a("v_mov_b32 v%d, 0" % (S1 + 8 + r))
    for r in range(4): a("v_mov_b32 v%d, 0" % (VB + 12 + r))
    a("s_waitcnt lgkmcnt(0)")
    qk(S0, 0, 0)
    a("s_mov_b32 s63, 0\ns_nop 7\ns_nop 3")
    a("L_mha_loop:")
    body(loop=True)
    a("s_cbranch_scc1 L_mha_loop")
    a("s_branch L_mha_fin")
    lds = XB + 8 * 2560
    return (k, 256, 512, lds), (k2, 256, 512, lds)
```

```python
def k_prep(G):
    K, R, OFF, TOFF, SIZE, srd_load, srd_tab, lane_setup, OPT, fbits, LOG2E = G.K, G.R, G.OFF, G.TOFF, G.SIZE, G.srd_load, G.srd_tab, G.lane_setup, G.OPT, G.fbits, G.LOG2E
    ACC = 16; ACW = 32; TF = 112; BX = 48; BW = 80
    HL = 0x20000; AS = 9216
    NT = 'nt ' if OPT.get('nt', 3) & 1 else ''
    NTW = 'nt ' if OPT.get('nt', 3) & 2 else ''
    k = K("prep_kernel", 240); a = k.a
    a("s_cmp_ge_u32 s2, 256\ns_cbranch_scc1 L_prep_end")
    a("s_load_dwordx4 s[72:75], s[0:1], 0\ns_load_dwordx2 s[76:77], s[0:1], 16\ns_load_dwordx4 s[12:15], s[0:1], 32")
    srd_load(a, 8, "ws")
    lane_setup(a)
    a("""
    s_and_b32 s40, s2, 7
    s_lshr_b32 s41, s2, 3
    s_and_b32 s42, s41, 7           ; cb
    s_lshl_b32 s43, s40, 2
    s_lshr_b32 s48, s41, 3
    s_add_u32 s43, s43, s48         ; rb
    s_lshl_b32 s48, s48, 1
    s_add_u32 s51, s42, s48         ; rot
    s_mov_b32 s23, 0x00020000
    s_cmp_ge_u32 s3, 4
    s_cbranch_scc1 L_prep_help
    s_lshr_b32 s57, s3, 1           ; wm
    s_and_b32 s58, s3, 1            ; wn
    s_lshl_b32 s44, s42, 1
    s_add_u32 s44, s44, s57         ; c tile
    s_lshl_b32 s46, s43, 1
    s_add_u32 s46, s46, s58
    s_lshl_b32 s50, s44, 15
    """)
    a("""
    v_and_b32 v4, 0x13, v1
    v_and_b32 v5, 4, v1
    v_lshl_or_b32 v4, v5, 1, v4
    v_bfe_u32 v5, v1, 3, 1
    v_lshl_or_b32 v4, v5, 2, v4
    s_lshl_b32 s40, s44, 5
    v_add_u32 v4, s40, v4           ; c
    v_lshrrev_b32 v5, 1, v4         ; kk
    v_and_b32 v6, 1, v4
    v_lshlrev_b32 v6, 7, v6         ; ph
    v_mov_b32 v7, 256
    v_cmp_eq_u32 vcc, 0, v4
    v_cndmask_b32 v5, v5, v7, vcc
    v_mov_b32 v7, 64
    v_cmp_gt_u32 vcc, 2, v4
    v_cndmask_b32 v6, v6, v7, vcc
    v_lshlrev_b32 v7, 3, v3
    v_mad_u32_u24 v6, v5, v7, v6
    v_cvt_f32_u32 v7, v5
    v_mul_f32 v7, 0x3b000000, v7
    v_lshlrev_b32 v11, 31, v5
    v_ashrrev_i32 v11, 31, v11
    v_and_b32 v12, v5, v4
    v_lshrrev_b32 v13, 1, v5
    v_xor_b32 v12, v12, v13
    v_lshlrev_b32 v12, 31, v12
    v_ashrrev_i32 v12, 31, v12
    v_and_b32 v11, 0x80008000, v11
    v_and_b32 v12, 0x80008000, v12
    v_xor_b32 v13, v11, v12
    """)
    for c in range(2):
        a("s_add_u32 s53, s51, %d\ns_lshl_b32 s53, s53, 6" % c)
        for t in range(4):
            if t: a("s_add_u32 s53, s53, 16")
            a("v_mad_u32_u24 v10, v5, s53, v6\nv_and_b32 v10, 511, v10\nv_cvt_f32_u32 v10, v10\nv_mul_f32 v48, 0x3b000000, v10")
            for j in range(1, 8): a("v_fmamk_f32 v%d, v7, 0x%x, v48" % (48 + j, fbits(j)))
            for j in range(8): a("v_cos_f32 v%d, v%d" % (48 + j, 48 + j))
            d = TF + 16 * c + 4 * t
            for j in range(4): a("v_cvt_pk_bf16_f32 v%d, v%d, v%d" % (d + j, 48 + 2 * j, 49 + 2 * j))
            for j in range(4): a("v_xor_b32 v%d, v11, v%d" % (d + 64 + j, d + j))
            for j in range(4): a("v_xor_b32_dpp v%d, v%d, v12 quad_perm:[0,1,3,2] row_mask:0xf bank_mask:0xf" % (d + 32 + j, d + j))
            for j in range(4): a("v_xor_b32_dpp v%d, v%d, v13 quad_perm:[0,1,3,2] row_mask:0xf bank_mask:0xf" % (d + 96 + j, d + j))
    k.mark(0)
    a("""
    s_lshl_b32 s49, s58, 12
    v_bfe_u32 v5, v1, 1, 3
    v_xor_b32 v5, v5, v3
    v_lshlrev_b32 v7, 7, v2
    v_add_u32 v7, s49, v7
    v_lshl_add_u32 v10, v5, 4, v7
    v_xor_b32 v11, 32, v10
    v_xor_b32 v12, 64, v10
    v_xor_b32 v13, 96, v10
    v_bfe_u32 v4, v1, 2, 2
    v_lshl_add_u32 v4, v3, 3, v4
    v_lshlrev_b32 v4, 7, v4         ; (8h + r)*128
    v_bfe_u32 v5, v1, 3, 1
    v_xor_b32 v5, s58, v5
    v_lshl_add_u32 v4, v5, 6, v4
    v_bfe_u32 v6, v1, 4, 1
    v_lshl_add_u32 v4, v6, 5, v4
    v_and_b32 v5, 3, v1
    v_lshl_add_u32 v14, v5, 3, v4
    s_waitcnt lgkmcnt(0)
    """)
    G.uc_addr(a)
    k.mark(5)
    a("s_cmp_ge_u32 s43, 24\ns_cbranch_scc1 L_prep_o")
    def mainloop(tr):
        n = 12 if tr else 8
        def reads(ch, t):
            so = (ch & 3) * 16384; s = 16 * (ch & 1)
            a("ds_read_b128 %s, v%d offset:%d" % (R(BX + s + 4 * t, 4), 10 + t, so))
            if tr:
                a("ds_read_b64_tr_b16 %s, v14 offset:%d" % (R(BW + s + 4 * t, 2), so + 8192 + t * 2048))
                a("ds_read_b64_tr_b16 %s, v14 offset:%d" % (R(BW + s + 4 * t + 2, 2), so + 8192 + t * 2048 + 512))
            else:
                a("ds_read_b128 %s, v%d offset:%d" % (R(BW + s + 4 * t, 4), 10 + t, so + 8192))
        def mf(ch, t, half):
            s = 16 * (ch & 1)
            z = ch == 0 and t == 0
            T = R(TF + 16 * ch + 4 * t, 4)
            W = R(BW + s + 4 * t, 4)
            if half == 0: a("v_mfma_f32_32x32x16_bf16 %s, %s, %s, %s" % (R(ACC, 16), T, R(BX + s + 4 * t, 4), "0" if z else R(ACC, 16)))
            else: a("v_mfma_f32_32x32x16_bf16 %s, %s, %s, %s" % (R(ACW, 16), T if tr else W, W if tr else T, "0" if z else R(ACW, 16)))
        for ch in range(8):
            if ch == 4:
                for v in range(10, 15): a("v_add_u32 v%d, 0x10000, v%d" % (v, v))
            a("s_waitcnt lgkmcnt(0)")
            if ch: mf(ch - 1, 0, 0); mf(ch - 1, 0, 1)
            a("s_barrier")
            if ch == 0: k.mark(1)
            if ch == 4: k.mark(2)
            for i in range(6):
                if i < 4: reads(ch, i)
                if ch: mf(ch - 1, 1 + i // 2, i & 1)
        k.mark(3)
        for t in range(4):
            a("s_waitcnt lgkmcnt(%d)" % ((n // 4) * (3 - t)))
            mf(7, t, 0); mf(7, t, 1)
    AC_ = ACW
    mainloop(True)
    a("""
    s_lshr_b32 s47, s46, 4          ; part
    s_and_b32 s41, s46, 15
    s_mul_i32 s41, s41, 98304
    s_add_u32 s41, s41, 0x%x
    s_cmp_eq_u32 s47, 0
    s_mov_b32 s50, 0x3d800000
    s_cselect_b32 s50, 0x%x, s50
    s_lshl_b32 s40, s44, 11
    s_lshl_b32 s48, s47, 8
    s_add_u32 s40, s40, s48         ; Q/K: ct*2048 + part*256
    s_lshl_b32 s48, s44, 10
    s_add_u32 s48, s48, 32768       ; V: 32768 + ct*1024
    s_cmp_eq_u32 s47, 2
    s_cselect_b32 s40, s48, s40
    s_cselect_b32 s48, 9, 10
    s_cselect_b32 s47, 8, 9
    s_add_u32 s40, s40, s41
    s_lshl_b32 s48, 1, s48
    s_add_u32 s41, s40, s48
    v_and_b32 v7, 15, v1
    v_lshlrev_b32 v9, 4, v7
    v_lshlrev_b32 v7, s47, v3
    v_add_u32 v9, v9, v7
    s_mov_b32 s48, 49152
    v_mad_u32_u24 v9, v6, s48, v9
    v_add_u32 v4, s44, v3
    v_cmp_eq_u32 vcc, 0, v4
    v_cndmask_b32 v%d, v%d, v4, vcc
    """ % (OFF["WP"], fbits(0.25 * LOG2E / 16), AC_ + 1, AC_ + 1))
    a("L_prep_out:")
    for r in range(16): a("v_mul_f32 v%d, 0x3d800000, v%d" % (ACC + r, ACC + r))
    for p in range(8): a("v_cvt_pk_bf16_f32 v%d, v%d, v%d" % (48 + p, ACC + 2 * p, ACC + 2 * p + 1))
    for p in range(8): a("buffer_store_dword v%d, v5, s[8:11], s%d offen" % (48 + p, 64 + p))
    for r in range(16): a("v_mul_f32 v%d, s50, v%d" % (AC_ + r, AC_ + r))
    for r in range(8): a("v_cvt_pk_bf16_f32 v%d, v%d, v%d" % (56 + r, AC_ + 2 * r, AC_ + 2 * r + 1))
    a("buffer_store_dwordx4 v[56:59], v9, s[8:11], s40 offen\nbuffer_store_dwordx4 v[60:63], v9, s[8:11], s41 offen")
    a("s_endpgm")
    a("L_prep_o:")
    mainloop(False)
    a("s_sub_u32 s46, s46, 48\ns_lshl_b32 s40, s44, 15\ns_lshl_b32 s41, s46, 11\ns_add_u32 s40, s40, s41\ns_add_u32 s40, s40, 0x%x\ns_add_u32 s41, s40, 1024" % OFF["WOP"])
    a("s_mov_b32 s50, 0x3d800000\ns_nop 7\ns_branch L_prep_out")
    a("L_prep_help:")
    a("s_cmp_ge_u32 s3, 6\ns_cbranch_scc1 L_prep_h67")
    a("""
    v_lshrrev_b32 v4, 3, v1
    v_lshrrev_b32 v7, 4, v1
    v_xor_b32 v7, v7, v1
    v_and_b32 v7, 7, v7
    v_lshlrev_b32 v7, 4, v7
    v_lshl_add_u32 v12, v4, 10, v7
    v_xor_b32 v13, 64, v12
    v_add_u32 v13, 8192, v13
    s_movk_i32 s54, 128
    s_mov_b32 s52, 0
    s_cmp_eq_u32 s3, 5
    s_cbranch_scc1 L_prep_w
    s_and_b32 s40, s43, 7
    s_lshl_b32 s40, s40, 16
    s_lshr_b32 s41, s43, 3
    s_lshl_b32 s41, s41, 14
    s_add_u32 s50, s40, s41
    s_mov_b32 s55, 0x80000
    s_mov_b32 s59, 0x100000
    s_mov_b32 s22, 0x%x
    s_waitcnt lgkmcnt(0)
    s_mov_b64 s[20:21], s[72:73]
    s_branch L_prep_go
L_prep_w:
    s_movk_i32 s52, 8192
    s_cmp_lt_u32 s43, 24
    s_cbranch_scc1 L_prep_q
    s_sub_u32 s50, s43, 24
    s_lshl_b32 s50, s50, 16
    s_movk_i32 s55, 16384
    s_mov_b32 s59, 32768
    s_mov_b32 s22, 0x%x
    s_waitcnt lgkmcnt(0)
    s_mov_b64 s[20:21], s[14:15]
    s_branch L_prep_go
L_prep_q:
    s_movk_i32 s40, 3072
    v_mul_lo_u32 v12, v4, s40
    v_lshrrev_b32 v7, 2, v1
    v_and_b32 v7, 4, v7
    v_xor_b32 v7, v7, v1
    v_and_b32 v7, 7, v7
    v_lshl_add_u32 v12, v7, 4, v12
    v_add_u32 v13, %d, v12
    s_lshl_b32 s50, s43, 7
    s_mov_b32 s54, %d
    s_mov_b32 s55, %d
    s_mov_b32 s59, %d
    s_mov_b32 s22, 0x%x
    s_waitcnt lgkmcnt(0)
    s_mov_b64 s[20:21], s[12:13]
L_prep_go:
    s_setprio 3
    """ % (SIZE["x"], SIZE["wo"], 8 * 3072, 64 * 3072, 16 * 3072, 32 * 3072, SIZE["wqkv"]))
    k.mark(0)
    LP = OPT.get("lpre", 4)
    lm = []
    def issue(ch):
        a("s_add_u32 s53, s51, %d\ns_and_b32 s53, s53, 7\ns_mul_i32 s53, s53, s54\ns_add_u32 s60, s53, s50" % ch)
        a("s_add_u32 s61, s60, s55\ns_add_u32 s62, s60, s59\ns_add_u32 s63, s61, s59")
        for i in range(8):
            a("s_add_u32 m0, s52, %d" % (ch * 16384 + i * 1024))
            a("buffer_load_dwordx4 v%d, s[20:23], s%d offen %slds" % (12 + (i & 1), 60 + (i >> 1), NT if ch < OPT.get("ntch", 1) else ""))
        lm.append(a.vm - 1)
    L0 = OPT.get("l0", 2)
    for ch in range(L0): issue(ch)
    k.mark(1)
    for ch in range(8):
        a.wait_vm(lm[ch])
        if ch == 0: k.mark(2)
        if ch == 0 and len(lm) < 2: issue(1)
        a("s_barrier")
        while len(lm) < min(8, ch + 1 + LP): issue(len(lm))
    a("s_endpgm")
    a("L_prep_h67:")
    if OPT.get("nohelp"): a("s_endpgm")
    a("s_cmp_eq_u32 s3, 7\ns_cbranch_scc1 L_prep_stat")
    a("""
    s_lshl_b32 s44, s40, 5
    s_add_u32 s44, s44, s41
    s_and_b32 s47, s44, 1
    s_lshr_b32 s44, s44, 1
    s_mul_i32 s45, s44, 8224
    s_add_u32 s46, s45, 4096
    s_add_u32 s48, s45, 8192
    s_mov_b32 s18, 0x%x
    s_mov_b32 s19, 0x00020000
    s_mov_b32 s22, 0x%x
    s_waitcnt lgkmcnt(0)
    s_mov_b64 s[16:17], s[74:75]
    s_mov_b64 s[20:21], s[76:77]
    """ % (SIZE["wr"], SIZE["wi"]))
    for arr in range(2):
        srd = "s[16:19]" if arr == 0 else "s[20:23]"
        for hf in range(2):
            a("s_mov_b32 m0, %d" % (HL + AS * arr + 4096 * hf))
            for i in range(4): a("buffer_load_dwordx4 v9, %s, s%d offen offset:%d %slds" % (srd, 45 + hf, 1024 * i, NTW))
        a("s_mov_b32 m0, %d\ns_mov_b64 exec, 3" % (HL + AS * arr + 8192))
        a("buffer_load_dwordx4 v9, %s, s48 offen lds" % srd)
        a("s_mov_b64 exec, -1")
    a("""
    s_mov_b32 s49, %d
    v_lshrrev_b32 v4, 2, v1
    s_lshl_b32 s47, s47, 7
    v_add_u32 v4, s47, v4           ; slot k of group 0
    v_and_b32 v8, 3, v1
    s_movk_i32 s48, 2056
    v_mul_lo_u32 v10, v8, s48
    v_lshlrev_b32 v5, 1, v4
    v_mov_b32 v6, 512
    v_cmp_eq_u32 vcc, 0, v4
    v_cndmask_b32 v6, v5, v6, vcc
    v_add3_u32 v5, v5, v10, s49
    v_add3_u32 v6, v6, v10, s49
    v_lshlrev_b32 v7, 13, v4
    v_lshl_add_u32 v7, v8, 4, v7
    s_lshl_b32 s44, s44, 6
    s_add_u32 s44, s44, 0x%x
    s_setprio 3
    """ % (HL, OFF["WT"]))
    k.mark(1)
    HW = OPT.get("hw", 3)
    for _ in range(HW): a("s_barrier")
    a("s_waitcnt vmcnt(0)")
    k.mark(2)
    nb = HW
    for g in range(8):
        if g and g % 2 == 0 and nb < 8:
            a("s_barrier"); nb += 1
        for o in range(4):
            a("ds_read_u16 v%d, v%d offset:%d" % (64 + o, 6 if g == 0 else 5, g * 32 + o * 514))
            a("ds_read_u16 v%d, v%d offset:%d" % (72 + o, 6 if g == 0 else 5, AS + g * 32 + o * 514))
        a("s_waitcnt lgkmcnt(0)")
        b = 80 + 4 * (g & 3)
        for o in range(4): a("v_lshl_or_b32 v%d, v%d, 16, v%d" % (b + o, 72 + o, 64 + o))
        a("buffer_store_dwordx4 %s, v7, s[8:11], s44 offen" % R(b, 4))
        if g < 7: a("s_add_u32 s44, s44, 0x20000")
    if G.STAMP:
        for _ in range(8 - nb): a("s_barrier")
    a("s_endpgm")
    a("L_prep_stat:")
    a("""
    s_lshl_b32 s40, s42, 10
    v_add_u32 v7, s40, v9
    v_mov_b32 v20, 0
    v_lshlrev_b32 v21, 2, v1
    v_lshrrev_b32 v6, 3, v1
    v_lshlrev_b32 v6, 2, v6
    s_lshl_b32 s44, s43, 8
    s_lshl_b32 s45, s42, 5
    s_add_u32 s44, s44, s45
    s_add_u32 s43, s44, 0x%x
    s_add_u32 s44, s44, 0x%x
    s_lshl_b32 s45, s2, 7
    s_add_u32 s45, s45, 0x%x
    s_lshl_b32 s47, s2, 9
    s_add_u32 s47, s47, PSQOFF
    v_mov_b32 v22, -1
    v_mov_b32 v23, -1
    v_lshlrev_b32 v24, 3, v1
    v_mov_b32 v10, 0
    v_mov_b32 v11, 0
    s_waitcnt lgkmcnt(0)
    buffer_store_dword v20, v6, s[8:11], s44 offen
    s_mov_b32 exec_hi, 0
    buffer_store_dword v20, v21, s[8:11], s45 offen
    s_mov_b32 exec_hi, -1
    buffer_store_dwordx2 v[22:23], v24, s[8:11], s47 offen
    s_mov_b32 s46, 0
    s_setprio 2
L_prep_sl:
    s_barrier
    ds_read_b128 v[64:67], v7
    v_add_u32 v7, 16384, v7
    s_add_u32 s46, s46, 1
    s_waitcnt lgkmcnt(0)
    """.replace("PSQOFF", "0x%x" % OFF["PSQ"]) % (OFF["SSQ0"], OFF["SSQ2"], OFF["FLK"]))
    for r in range(4):
        a("v_and_b32 v4, 0xffff0000, v%d\nv_lshlrev_b32 v5, 16, v%d" % (64 + r, 64 + r))
        a("v_fmac_f32 v10, v4, v4\nv_add_f32 v11, v11, v4\nv_fmac_f32 v10, v5, v5\nv_add_f32 v11, v11, v5")
    a("s_cmp_lt_u32 s46, 8\ns_cbranch_scc1 L_prep_sl")
    for m in ("quad_perm:[1,0,3,2]", "quad_perm:[2,3,0,1]", "row_half_mirror"):
        a("v_add_f32_dpp v10, v10, v10 %s row_mask:0xf bank_mask:0xf" % m)
        a("v_add_f32_dpp v11, v11, v11 %s row_mask:0xf bank_mask:0xf" % m)
    a("v_mul_f32 v12, 0x%x, v11" % fbits(-1.0 / 512))
    a("v_fma_f32 v13, v12, v11, v10")
    a("buffer_store_dword v13, v6, s[8:11], s43 offen")
    a("L_prep_end:")
    a("s_endpgm")
    return k, 256, 512, HL + 18432
```

```python
import sys, math
import numpy as np
from asmlib import Asm
from layouts3 import *

NAME = "interleave_layers__spectral_gfnet__softmax_full_mha__prompt"
KA = dict(x=0, wr=8, wi=16, wqkv=32, wo=40, out=48, dbg=56, ws=64)
SIZE = dict(x=2097152, wr=1052672, wi=1052672, wqkv=1572864, wo=524288, out=2097152, ws=WS_USED)
TOFF = dict(T1=0, T2=0x80000, M1=0x100000, M2=0x102000)
TSIZE = 0x10A000
LOG2E = 1.4426950408889634
STAMP = False
OPT = {}
def fbits(x): return int(np.float32(x).view(np.uint32))
def R(b, n): return "v[%d:%d]" % (b, b + n - 1)

class K:
    def __init__(self, name, vgpr, sgpr=96):
        self.name = name; self.vgpr = vgpr; self.sgpr = sgpr
        self.a = Asm()
        self.a.raw(".text\n.globl %s\n.p2align 8\n.type %s,@function" % (name, name))
        self.a(name + ":")
        self.nm = 0
        if STAMP:
            self.a.raw("    s_memrealtime s[84:85]\n    s_memtime s[86:87]\n    v_lshrrev_b32 v4, 6, v0\n    s_nop 1\n    v_readfirstlane_b32 s94, v4\n    s_mov_b32 s95, 0")
            self.a.raw("    s_waitcnt lgkmcnt(0)\n" + "\n".join("    s_mov_b32 s%d, s86" % (24 + 2 * i) for i in range(8)))
    def mark(self, i=None):
        if STAMP:
            if i is None: i = self.nm
            self.nm = i + 1
            assert i < 7
            self.a.raw("    s_memtime s[%d:%d]" % (24 + 2 * i, 25 + 2 * i))
    def text(self):
        t = self.a.text()
        if STAMP and "s_endpgm" in t:
            t = t.replace("    s_endpgm", "    s_branch %s_stamp" % self.name)
            t += """%s_stamp:
    s_memtime s[38:39]
    s_waitcnt vmcnt(0) lgkmcnt(0)
    s_memrealtime s[88:89]
    s_memtime s[90:91]
    s_load_dwordx2 s[80:81], s[0:1], 64
    s_load_dwordx2 s[92:93], s[0:1], 56
    s_mov_b32 s82, 0x4000000
    s_mov_b32 s83, 0x00020000
    s_waitcnt lgkmcnt(0)
    s_lshr_b32 s92, s92, 9
    s_and_b32 s92, s92, 63
    s_lshl_b32 s92, s92, 20
    s_lshl_b32 s93, s2, 10
    s_add_u32 s92, s92, s93
    s_lshl_b32 s93, s94, 6
    s_add_u32 s92, s92, s93
    s_add_u32 s92, s92, 0x2000000
    s_sub_u32 s90, s90, s86
    s_mov_b64 exec, 1
    v_mov_b32 v0, 0
    v_mov_b32 v4, s84
    v_mov_b32 v5, s88
    v_mov_b32 v6, s90
    v_mov_b32 v7, s95
    buffer_store_dwordx4 v[4:7], v0, s[80:83], s92 offen
""" % self.name
            for i in range(8): t += "    s_sub_u32 s%d, s%d, s86\n    v_mov_b32 v%d, s%d\n" % (24 + 2 * i, 24 + 2 * i, 8 + i, 24 + 2 * i)
            t += "    buffer_store_dwordx4 v[8:11], v0, s[80:83], s92 offen offset:16\n    buffer_store_dwordx4 v[12:15], v0, s[80:83], s92 offen offset:32\n    s_endpgm\n"
        return t
    def desc(self):
        return """.section .rodata,"a"
.p2align 6
.amdhsa_kernel %s
  .amdhsa_next_free_vgpr %d
  .amdhsa_next_free_sgpr %d
  .amdhsa_accum_offset %d
  .amdhsa_group_segment_fixed_size 0
  .amdhsa_kernarg_size 72
  .amdhsa_user_sgpr_count 2
  .amdhsa_user_sgpr_kernarg_segment_ptr 1
  .amdhsa_system_sgpr_workgroup_id_x 1
.end_amdhsa_kernel
""" % (self.name, self.vgpr, self.sgpr, (self.vgpr + 3) // 4 * 4)

def srd_load(a, s, what):
    a("s_load_dwordx2 s[%d:%d], s[0:1], %d" % (s, s + 1, KA[what]))
    a("s_mov_b32 s%d, 0x%x" % (s + 2, SIZE[what]))
    a("s_mov_b32 s%d, 0x00020000" % (s + 3))
def srd_tab(a, s):
    a("s_getpc_b64 s[%d:%d]" % (s, s + 1))
    a.raw("    s_add_u32 s%d, s%d, tables@rel32@lo+4" % (s, s))
    a.raw("    s_addc_u32 s%d, s%d, tables@rel32@hi+12" % (s + 1, s + 1))
    a("s_mov_b32 s%d, 0x%x" % (s + 2, TSIZE))
    a("s_mov_b32 s%d, 0x00020000" % (s + 3))
def lane_setup(a):
    a("""
    v_lshrrev_b32 v4, 6, v0
    v_and_b32 v1, 63, v0
    v_readfirstlane_b32 s3, v4
    v_and_b32 v2, 31, v0
    v_lshrrev_b32 v3, 5, v1
    v_lshlrev_b32 v9, 4, v1
    """)

ACC = 16
def g64_ids(a):
    a("""
    s_and_b32 s40, s2, 7
    s_lshr_b32 s41, s2, 3
    s_and_b32 s42, s40, 1
    s_lshl_b32 s42, s42, 2
    s_and_b32 s47, s41, 3
    s_add_u32 s42, s42, s47         ; cb
    s_lshr_b32 s43, s40, 1
    s_lshl_b32 s43, s43, 3
    s_lshr_b32 s48, s41, 2
    s_add_u32 s43, s43, s48         ; rb
    s_lshl_b32 s47, s47, 1
    s_add_u32 s51, s47, s48
    s_lshr_b32 s40, s3, 1
    s_and_b32 s41, s3, 1
    s_lshl_b32 s44, s42, 1
    s_add_u32 s44, s44, s40
    s_lshl_b32 s46, s43, 1
    s_add_u32 s46, s46, s41
    s_lshl_b32 s52, s3, 15
    s_lshl_b32 s40, s40, 15
    v_add_u32 v10, s40, v9
    s_lshl_b32 s40, s41, 15
    s_add_u32 s49, s40, 0x10000
    s_cmp_lt_u32 s3, 2
    s_cselect_b32 s45, s42, s43
    s_lshl_b32 s45, s45, 1
    s_add_u32 s45, s45, s41
    s_cmp_lt_u32 s3, 2
    """)
def g64_issue(a, ch, general, base="s50"):
    a("s_add_u32 s53, s51, %d\ns_and_b32 s53, s53, 7" % ch)
    if general:
        a("s_lshl_b32 s53, s53, s54\ns_add_u32 s53, s53, %s\ns_add_u32 s56, s53, s55" % base)
        for i in range(4):
            a("s_add_u32 m0, s52, %d" % (ch * 4096 + i * 1024))
            a("buffer_load_dwordx4 v%d, s[20:23], s%d offen lds" % (12 + (i >> 1), 53 if i % 2 == 0 else 56))
    else:
        a("s_lshl_b32 s53, s53, 12\ns_add_u32 m0, s52, %d\ns_add_u32 s53, s53, %s" % (ch * 4096, base))
        for i in range(4):
            a("buffer_load_dwordx4 v9, s[20:23], s53 offen offset:%d lds" % (i * 1024))
def g64_compute(a, ch, rowB, first, hook=None):
    for t in range(4):
        a("ds_read_b128 %s, v10 offset:%d" % (R(32 + 8 * t, 4), ch * 4096 + t * 1024))
        if rowB: a("ds_read_b128 %s, v%d offset:%d" % (R(36 + 8 * t, 4), 14 + (t & 1), ch * 4096 + (t >> 1) * 1024))
        else:    a("ds_read_b128 %s, v11 offset:%d" % (R(36 + 8 * t, 4), ch * 4096 + t * 1024))
    for t in range(4):
        a("s_waitcnt lgkmcnt(%d)" % (6 - 2 * t))
        a("v_mfma_f32_32x32x16_bf16 %s, %s, %s, %s" % (R(ACC, 16), R(32 + 8 * t, 4), R(36 + 8 * t, 4), "0" if (first and t == 0) else R(ACC, 16)))
        if hook: hook(36 + 8 * t)
PRE = 4
def g64_run(k, general, rowB, marks, hook=None, first=True):
    a = k.a
    for ch in range(8):
        a.wait_vm(marks[ch]); a("s_barrier")
        if ch == 0: k.mark()
        if ch + PRE < 8:
            g64_issue(a, ch + PRE, general); marks.append(a.vm - 1)
        g64_compute(a, ch, rowB, first and ch == 0, hook)
    k.mark()

def uc_store(a):
    for p in range(8): a("v_cvt_pk_bf16_f32 v%d, v%d, v%d" % (32 + p, ACC + 2 * p, ACC + 2 * p + 1))
    for p in range(8): a("buffer_store_dword v%d, v5, s[8:11], s%d offen" % (32 + p, 64 + p))
def uc_addr(a):
    a("s_lshl_b32 s40, s44, 17\ns_lshl_b32 s41, s46, 7\ns_add_u32 s40, s40, s41\ns_add_u32 s64, s40, 0x%x" % OFF["UC"])
    for p in range(1, 8): a("s_add_u32 s%d, s64, %d" % (64 + p, (8 * (p >> 2) + (p & 3)) * 8192))
    a("v_lshlrev_b32 v5, 15, v3\nv_lshl_add_u32 v5, v2, 2, v5")
def ssq_addr(a, dst):
    a("s_lshl_b32 %s, s46, 7\nv_lshlrev_b32 v6, 2, v2" % dst)

def rowmajor_addrs(a, rowstride_shift, rh_stride, bbase):
    a("""
    v_lshrrev_b32 v4, 2, v1
    v_lshrrev_b32 v7, 4, v1
    v_xor_b32 v7, v7, v1
    v_and_b32 v7, 3, v7
    v_lshlrev_b32 v7, 4, v7
    v_lshl_add_u32 v12, v4, %d, v7
    v_add_u32 v13, 0x%x, v12
    v_bfe_u32 v4, v1, 2, 2
    v_xor_b32 v4, v4, v3            ; h ^ x
    v_and_b32 v7, 15, v1
    v_lshlrev_b32 v7, 6, v7
    v_bfe_u32 v8, v1, 4, 1
    v_lshl_add_u32 v7, v8, 11, v7
    v_add_u32 v7, %s, v7
    v_lshl_add_u32 v14, v4, 4, v7
    v_xor_b32 v15, 32, v14
    """ % (rowstride_shift, rh_stride, bbase))

def k_oproj():
    k = K("oproj_kernel", 80); a = k.a
    a("s_cmp_ge_u32 s2, 256\ns_cbranch_scc1 L_op_end")
    srd_load(a, 8, "ws"); srd_load(a, 20, "ws")
    lane_setup(a)
    g64_ids(a)
    a("""
    s_cselect_b32 s50, 0x%x, 0x%x
    s_lshl_b32 s40, s45, 15
    s_add_u32 s50, s50, s40
    v_add_u32 v11, s49, v9
    s_lshl_b32 s40, s46, 15
    s_lshl_b32 s41, s44, 11
    s_add_u32 s40, s40, s41
    s_add_u32 s57, s40, 0x%x
    s_waitcnt lgkmcnt(0)
    """ % (0, OFF["OF"] - OFF["WOP"], OFF["UB"]))
    a("s_add_u32 s50, s50, 0x%x" % OFF["WOP"])
    k.mark()
    marks = []
    for ch in range(PRE):
        g64_issue(a, ch, False); marks.append(a.vm - 1)
        if ch == 1:
            a("buffer_load_dwordx4 v[64:67], v9, s[8:11], s57 offen\nbuffer_load_dwordx4 v[68:71], v9, s[8:11], s57 offen offset:1024")
    k.mark()
    uc_addr(a); ssq_addr(a, "s57")
    g64_run(k, False, False, marks)
    for p in range(8):
        a("v_lshlrev_b32 v32, 16, v%d\nv_and_b32 v33, 0xffff0000, v%d" % (64 + p, 64 + p))
        a("v_pk_add_f32 %s, %s, v[32:33]" % (R(ACC + 2 * p, 2), R(ACC + 2 * p, 2)))
    uc_store(a)
    a("v_add_u32 v4, s44, v3\nv_cmp_eq_u32 vcc, 0, v4\nv_cndmask_b32 v7, v%d, v4, vcc" % (ACC + 1))
    a("v_mul_f32 v7, v7, v7\nv_mul_f32 v8, v%d, v%d" % (ACC, ACC))
    for r in range(2, 16): a("v_fmac_f32 v%d, v%d, v%d" % (7 + (r & 1), ACC + r, ACC + r))
    a("""
    v_add_f32 v7, v7, v8
    v_mov_b32 v8, v7
    v_permlane32_swap_b32 v7, v8
    v_add_f32 v7, v7, v8
    s_add_u32 s41, s57, 0x%x
    s_mov_b32 exec_hi, 0
    buffer_atomic_add_f32 v7, v6, s[8:11], s41 offen
    """ % OFF["SSQ2"])
    a("L_op_end:")
    a("s_endpgm")
    return k, 256, 256, 131072

def k_final():
    k = K("final_kernel", 80); a = k.a
    a("s_cmp_ge_u32 s2, 256\ns_cbranch_scc1 L_fin_end")
    srd_load(a, 8, "ws"); srd_load(a, 12, "out"); srd_tab(a, 16)
    lane_setup(a)
    g64_ids(a)
    a("""
    s_cselect_b32 s50, 0x%x, 0
    s_cselect_b32 s58, 0, 0x%x
    s_add_u32 s50, s50, s58
    s_lshl_b32 s40, s45, 15
    s_add_u32 s50, s50, s40
    s_cmp_lt_u32 s3, 2
    s_cselect_b32 s58, 0, 0x%x
    s_add_u32 s58, s58, s40
    s_add_u32 s58, s58, 0x%x
    v_add_u32 v11, s49, v9
    s_cmp_lt_u32 s3, 2
    s_waitcnt lgkmcnt(0)
    s_cselect_b64 s[20:21], s[16:17], s[8:9]
    s_cselect_b32 s22, s18, s10
    s_mov_b32 s23, 0x00020000
    """ % (TOFF["T2"], OFF["UB"], OFF["OF"] + LAYER - OFF["WOF"], OFF["WOF"]))
    k.mark()
    marks = []
    for ch in range(PRE):
        g64_issue(a, ch, False); marks.append(a.vm - 1)
    k.mark()
    a("""
    s_and_b32 s40, s46, 1
    s_lshl_b32 s40, s40, 20
    s_lshr_b32 s41, s46, 1
    s_and_b32 s41, s41, 7
    s_lshl_b32 s41, s41, 16
    s_add_u32 s40, s40, s41
    s_lshr_b32 s41, s46, 4
    s_lshl_b32 s41, s41, 14
    s_add_u32 s40, s40, s41
    s_lshl_b32 s41, s44, 6
    s_add_u32 s57, s40, s41
    v_and_b32 v5, 15, v1
    v_lshlrev_b32 v5, 10, v5
    v_bfe_u32 v4, v1, 4, 1
    v_lshl_add_u32 v5, v4, 19, v5
    v_lshl_add_u32 v5, v3, 5, v5
    """)
    for ch in range(16):
        a.wait_vm(marks[ch]); a("s_barrier")
        if ch == 0: k.mark()
        n = ch + PRE
        if n == 8: a("s_mov_b64 s[20:21], s[8:9]\ns_mov_b32 s22, s10")
        if n < 16:
            g64_issue(a, n & 7, False, "s50" if n < 8 else "s58"); marks.append(a.vm - 1)
        g64_compute(a, ch & 7, False, ch == 0)
    k.mark()
    for p in range(8): a("v_cvt_pk_bf16_f32 v%d, v%d, v%d" % (32 + p, ACC + 2 * p, ACC + 2 * p + 1))
    a("buffer_store_dwordx4 v[32:35], v5, s[12:15], s57 offen\nbuffer_store_dwordx4 v[36:39], v5, s[12:15], s57 offen offset:16")
    a("L_fin_end:")
    a("s_endpgm")
    return k, 256, 256, 131072

def wprep_roles(k):
    a = k.a
    TF = 48; AC = 24
    a("L_wp:")
    srd_load(a, 20, "wo")
    a("""
    s_sub_u32 s44, s2, 256
    s_lshl_b32 s52, s3, 13
    v_lshrrev_b32 v4, 2, v1
    v_lshlrev_b32 v12, 10, v4
    v_and_b32 v4, 3, v1
    v_lshl_add_u32 v12, v4, 4, v12
    s_lshl_b32 s46, s3, 17
    s_lshl_b32 s41, s44, 6
    s_add_u32 s46, s46, s41
    v_bfe_u32 v4, v1, 2, 2
    v_lshl_add_u32 v4, v3, 2, v4
    v_lshlrev_b32 v4, 6, v4         ; (4h + r)*64
    v_and_b32 v5, 1, v1
    v_lshl_add_u32 v4, v5, 5, v4    ; 16*(cq&1) elements
    v_bfe_u32 v5, v1, 4, 1
    v_lshl_add_u32 v4, v5, 4, v4    ; 8*(G&1)
    v_bfe_u32 v5, v1, 1, 1
    v_lshl_add_u32 v4, v5, 3, v4    ; 4*(cq>>1)
    v_add_u32 v13, s52, v4
    s_lshl_b32 s40, s44, 15
    s_add_u32 s40, s40, s52
    s_add_u32 s40, s40, 0x%x
    s_add_u32 s41, s40, 4096
    s_waitcnt lgkmcnt(0)
    """ % OFF["WOF"])
    for i in range(8):
        a("s_add_u32 m0, s52, %d" % (i * 1024))
        a("buffer_load_dwordx4 v12, s[20:23], s46 offen lds")
        if i < 7: a("s_add_u32 s46, s46, %d" % (16 * 1024))
    a("s_waitcnt vmcnt(0)")
    for i in range(8):
        a("ds_read_b64_tr_b16 %s, v13 offset:%d" % (R(48 + 4 * i, 2), i * 1024))
        a("ds_read_b64_tr_b16 %s, v13 offset:%d" % (R(50 + 4 * i, 2), i * 1024 + 512))
        if i == 3 or i == 7:
            a("s_waitcnt lgkmcnt(0)")
            for x in range(i - 3, i + 1):
                a("buffer_store_dwordx4 %s, v9, s[8:11], s%d offen offset:%d" % (R(48 + 4 * x, 4), 40 + (x >> 2), 1024 * (x & 3)))
    a("s_endpgm")

def k_col():
    k2 = K("col2_kernel", 192); a = k2.a
    a("s_mov_b32 s47, 0x%x\ns_movk_i32 s61, 256\ns_mov_b32 s62, 0x%x\ns_branch L_col" % (OFF["SSQ2"], OFF["OF"] + LAYER))
    k = K("col1_kernel", 192); a = k.a
    a("s_mov_b32 s47, 0x%x\ns_movk_i32 s61, 272\ns_mov_b32 s62, 0x%x" % (OFF["SSQ0"], OFF["OF"]))
    a("L_col:")
    X1, X2, X3 = 0, 8704, 17408
    RAW, SQ, UO, M1, M2, TWF, TWI, WW, WU, BUF = 16, 24, 32, 48, 80, 112, 128, 144, 176, 144
    WW = 16
    WW = 184
    WU = 176
    a("s_cmp_ge_u32 s2, s61\ns_cbranch_scc1 L_col_end")
    srd_load(a, 8, "ws"); srd_tab(a, 16)
    lane_setup(a)
    a("s_cmp_ge_u32 s2, 256\ns_cbranch_scc1 L_wp")
    a("s_mov_b32 s48, %d\ns_mov_b32 s49, %d" % (TOFF["M1"], TOFF["M1"] + 4096))
    for f in range(8): a("buffer_load_dwordx4 %s, v9, s[16:19], s%d offen offset:%d" % (R(M1 + 4 * f, 4), 48 + (f >> 2), 1024 * (f & 3)))
    a("""
    s_and_b32 s42, s2, 7
    s_lshr_b32 s43, s2, 3
    s_lshl_b32 s42, s42, 5
    s_add_u32 s42, s42, s43         ; slot k
    v_and_b32 v5, 15, v1            ; b_l
    v_lshrrev_b32 v6, 4, v1         ; q
    v_lshlrev_b32 v7, 2, v1
    s_lshl_b32 s44, s3, 11          ; w*2048
    s_lshl_b32 s45, s42, 13
    s_add_u32 s45, s45, s44         ; k*8192 + w*2048
    s_add_u32 s54, s45, 0x%x
    s_add_u32 s45, s45, 0x%x
    s_add_u32 s47, s47, s44
    s_lshl_b32 s50, s3, 13
    s_add_u32 s50, s50, %d
    s_add_u32 s51, s50, 4096
    s_waitcnt lgkmcnt(0)
    """ % (OFF["WT"], OFF["UC"], TOFF["M2"]))
    k.mark()
    for v in range(8): a("buffer_load_dword v%d, v7, s[8:11], s47 offen offset:%d" % (SQ + v, 256 * v))
    for v in range(8): a("buffer_load_dword v%d, v7, s[8:11], s45 offen offset:%d" % (RAW + v, 256 * v))
    m_in = a.vm - 1
    a("""
    s_lshl_b32 s56, s3, 4
    v_add_u32 v10, s56, v5
    v_cvt_f32_u32 v10, v10
    v_mul_f32 v10, 0x3a000000, v10      ; b/2048
    v_lshlrev_b32 v11, 3, v6
    v_cvt_f32_u32 v11, v11
    v_mul_f32 v11, v10, v11
    """)
    for i in range(8):
        a("v_fmamk_f32 v12, v10, 0x%x, v11" % fbits(i))
        a("v_cos_f32 v%d, v12\nv_sin_f32 v%d, v12" % (TWF + 2 * i, TWF + 2 * i + 1))
    for f in range(8): a("buffer_load_dwordx4 %s, v9, s[16:19], s%d offen offset:%d" % (R(M2 + 4 * f, 4), 50 + (f >> 2), 1024 * (f & 3)))
    a("v_lshlrev_b32 v15, 8, v3\nv_lshl_add_u32 v15, v2, 2, v15")
    for i in range(8): a("buffer_load_dword v%d, v15, s[8:11], s54 offen offset:%d" % (WW + i, 128 * (4 * (i >> 1) + (i & 1))))
    m_w = a.vm - 1
    k.mark()
    a("""
    v_cvt_f32_u32 v10, v2
    v_mul_f32 v10, 0x3a000000, v10
    v_lshlrev_b32 v11, 1, v3
    v_add_u32 v11, s56, v11
    v_cvt_f32_u32 v11, v11
    v_mul_f32 v11, v10, v11
    s_mov_b32 s58, 0x3a000000
    s_mov_b32 s59, 0x3a000000
    """)
    for g in range(4):
        for e in range(2):
            i = 2 * g + e
            a("v_fmamk_f32 v12, v10, 0x%x, v11" % fbits(4 * g + e))
            a("v_cos_f32 v%d, v12\nv_sin_f32 v%d, v12" % (TWI + 2 * i, TWI + 2 * i + 1))
    for i in range(8): a("v_pk_mul_f32 %s, %s, s[58:59]" % (R(TWI + 2 * i, 2), R(TWI + 2 * i, 2)))
    a("""
    s_movk_i32 s57, 2176
    v_mul_lo_u32 v10, v6, s57           ; 8q*272
    v_lshl_add_u32 v10, v5, 2, v10
    s_lshl_b32 s58, s3, 6
    v_add_u32 v10, s58, v10             ; X1 write
    s_movk_i32 s57, 272
    v_mul_lo_u32 v11, v2, s57
    v_lshl_add_u32 v12, v3, 3, v11
    v_add_u32 v12, s58, v12             ; X2 write
    v_lshl_add_u32 v11, v3, 4, v11      ; X1/X2 read
    s_mul_i32 s58, s3, 2304
    s_movk_i32 s57, 288
    v_mul_lo_u32 v13, v3, s57
    v_lshl_add_u32 v13, v2, 2, v13
    v_add_u32 v13, s58, v13             ; X3 write
    s_movk_i32 s57, 144
    v_mul_lo_u32 v14, v5, s57
    v_add_u32 v14, s58, v14
    v_lshl_add_u32 v14, v6, 5, v14      ; X3 read: (16w+b_l)*144 + q*32
    s_lshr_b32 s40, s42, 2
    s_lshl_b32 s40, s40, 9
    s_and_b32 s41, s42, 3
    s_lshl_b32 s41, s41, 2
    s_add_u32 s40, s40, s41
    s_lshl_b32 s41, s3, 19
    s_add_u32 s40, s40, s41
    s_add_u32 s40, s40, 0x%x
    v_lshlrev_b32 v8, 15, v3
    v_lshl_add_u32 v8, v2, 4, v8        ; UB: (lane>>5)*32768 + m*16
    s_mov_b32 s60, 0x%x
    v_mov_b32 v4, 0x%x
    """ % (OFF["UB"], fbits(1.0 / 512), fbits(1e-5)))
    a("""
    s_lshl_b32 s63, s2, 13
    s_add_u32 s62, s62, s63
    s_add_u32 s62, s62, s44
    v_mov_b32 v176, -1
    v_mov_b32 v177, -1
    v_mov_b32 v178, -1
    v_mov_b32 v179, -1
    s_and_b32 s63, s2, 1
    s_lshl_b32 s63, s63, 5
    s_add_u32 s63, s63, s43
    s_lshl_b32 s63, s63, 2
    s_add_u32 s63, s63, s3
    s_mul_i32 s63, s63, 6144
    s_add_u32 s63, s63, 0x%x
    s_add_u32 s64, s63, 4096
    v_lshlrev_b32 v180, 6, v1
    """ % OFF["WP"])
    def side():
        a("buffer_load_dword v181, v180, s[8:11], s63 offen")
        a("s_mov_b32 exec_hi, 0\nbuffer_load_dword v182, v180, s[8:11], s64 offen\ns_mov_b32 exec_hi, -1")
        a("buffer_store_dwordx4 v[176:179], v9, s[8:11], s62 offen sc1\nbuffer_store_dwordx4 v[176:179], v9, s[8:11], s62 offen offset:1024 sc1")
    k.mark()
    a.wait_vm(m_in - 8)
    for i in range(8): a("v_fma_f32 v%d, v%d, s60, v4" % (SQ + i, SQ + i))
    for i in range(8): a("v_rsq_f32 v%d, v%d" % (SQ + i, SQ + i))
    a.wait_vm(m_in)
    k.mark()
    T0 = BUF
    for v in range(8):
        a("v_and_b32 v%d, 0xffff0000, v%d\nv_lshlrev_b32 v%d, 16, v%d" % (UO + 2 * v, RAW + v, UO + 2 * v + 1, RAW + v))
        s = v & 1
        a("v_pk_mul_f32 %s, %s, %s op_sel:[0,%d] op_sel_hi:[1,%d]" % (R(T0 + 2 * v, 2), R(UO + 2 * v, 2), R(SQ + v - s, 2), s, s))
    a("s_cmp_eq_u32 s42, 0\ns_cbranch_scc0 L_col_n0")
    for v in range(8): a("v_mov_b32 v%d, 0" % (T0 + 2 * v))
    a("L_col_n0:")
    for v in range(8): a("v_cvt_pk_bf16_f32 v%d, v%d, v%d" % (SQ + v, T0 + 2 * v + 1, T0 + 2 * v))
    for t in range(2):
        for tau in range(4):
            d = R(T0 + 4 * tau, 4)
            a("v_mfma_f32_16x16x32_bf16 %s, %s, %s, %s" % (d, R(M1 + 4 * (2 * tau + t), 4), R(SQ + 4 * t, 4), "0" if t == 0 else d))
    T1_ = BUF + 16
    for i in range(8):
        y, tw, t = R(T0 + 2 * i, 2), R(TWF + 2 * i, 2), R(T1_ + 2 * i, 2)
        a("v_pk_mul_f32 %s, %s, %s op_sel:[0,0] op_sel_hi:[1,0]" % (t, y, tw))
        a("v_pk_fma_f32 %s, %s, %s, %s op_sel:[1,1,0] op_sel_hi:[0,1,1] neg_hi:[1,0,0]" % (t, y, tw, t))
        a("v_cvt_pk_bf16_f32 v%d, v%d, v%d" % (SQ + i, T1_ + 2 * i, T1_ + 2 * i + 1))
        a("ds_write_b32 v10, v%d offset:%d" % (SQ + i, X1 + i * 272))
    a("s_waitcnt lgkmcnt(0)\ns_barrier")
    k.mark()
    for t in range(8): a("ds_read_b128 %s, v11 offset:%d" % (R(BUF + 4 * t, 4), X1 + 32 * t))
    a.wait_vm(m_w)
    AC = TWF
    for t in range(8):
        a("s_waitcnt lgkmcnt(%d)" % (7 - t))
        a("v_mfma_f32_32x32x16_bf16 %s, %s, %s, %s" % (R(AC, 16), R(M2 + 4 * t, 4), R(BUF + 4 * t, 4), "0" if t == 0 else R(AC, 16)))
        if t == 1: side()
    for i in range(8):
        a("v_lshlrev_b32 v%d, 16, v%d\nv_and_b32 v%d, 0xffff0000, v%d" % (T0 + 2 * i, WW + i, T0 + 2 * i + 1, WW + i))
    for i in range(8):
        y, w, t = R(AC + 2 * i, 2), R(T0 + 2 * i, 2), R(T1_ + 2 * i, 2)
        a("v_pk_mul_f32 %s, %s, %s op_sel:[0,0] op_sel_hi:[1,0] neg_hi:[1,0]" % (t, y, w))
        a("v_pk_fma_f32 %s, %s, %s, %s op_sel:[1,1,0] op_sel_hi:[0,1,1] neg_lo:[1,0,0] neg_hi:[1,0,0]" % (t, y, w, t))
        a("v_cvt_pk_bf16_f32 v%d, v%d, v%d" % (SQ + i, T1_ + 2 * i, T1_ + 2 * i + 1))
        if i & 1: a("ds_write_b64 v12, %s offset:%d" % (R(SQ + i - 1, 2), X2 + 16 * (i >> 1)))
    a("s_waitcnt lgkmcnt(0)\ns_barrier")
    k.mark()
    for t in range(8): a("ds_read_b128 %s, v11 offset:%d" % (R(BUF + 4 * t, 4), X2 + 32 * t))
    for t in range(8):
        a("s_waitcnt lgkmcnt(%d)" % (7 - t))
        a("v_mfma_f32_32x32x16_bf16 %s, %s, %s, %s" % (R(AC, 16), R(M2 + 4 * t, 4), R(BUF + 4 * t, 4), "0" if t == 0 else R(AC, 16)))
    for i in range(8):
        y, tw, t = R(AC + 2 * i, 2), R(TWI + 2 * i, 2), R(T0 + 2 * i, 2)
        a("v_pk_mul_f32 %s, %s, %s op_sel:[0,1] op_sel_hi:[0,0]" % (t, y, tw))
        a("v_pk_fma_f32 %s, %s, %s, %s op_sel:[1,0,0] op_sel_hi:[1,1,1] neg_lo:[1,0,0]" % (t, y, tw, t))
        a("v_cvt_pk_bf16_f32 v%d, v%d, v%d" % (SQ + i, T0 + 2 * i, T0 + 2 * i + 1))
        a("ds_write_b32 v13, v%d offset:%d" % (SQ + i, X3 + (4 * (i >> 1) + (i & 1)) * 144))
    a("s_waitcnt lgkmcnt(0)")
    for t in range(2): a("ds_read_b128 %s, v14 offset:%d" % (R(BUF + 4 * t, 4), X3 + 16 * t))
    a("s_waitcnt lgkmcnt(0)")
    k.mark()
    for t in range(2):
        for tau in range(4):
            d = R(UO + 4 * tau, 4)
            a("v_mfma_f32_16x16x32_bf16 %s, %s, %s, %s" % (d, R(M1 + 4 * (2 * tau + t), 4), R(BUF + 4 * t, 4), d))
    a("s_cmp_eq_u32 s42, 0\ns_cbranch_scc0 L_col_n1")
    for v in range(8): a("v_and_b32 v%d, 0xffff0000, v%d" % (UO + 2 * v, RAW + v))
    a("L_col_n1:")
    for v in range(8):
        a("v_cvt_pk_bf16_f32 v%d, v%d, v%d" % (SQ + v, UO + 2 * v + 1, UO + 2 * v))
        a("buffer_store_dword v%d, v8, s[8:11], s40 offen" % (SQ + v))
        if v < 7: a("s_add_u32 s40, s40, 0x10000")
    a("L_col_end:")
    a("s_endpgm")
    wprep_roles(k)
    return (k, 272, 256, 32768), (k2, 256, 256, 32768)

from prep4 import k_prep
from mha5 import k_mha


def hexdump(arr):
    u = np.ascontiguousarray(arr).reshape(-1).view(np.uint64)
    return "\n".join(".quad " + ",".join("0x%x" % v for v in u[i:i + 8]) for i in range(0, len(u), 8)) + "\n"

def tables():
    s = '.section .rodata,"a"\n.p2align 12\n'
    c = cos512()
    for i in range(512): s += ".set C%d, 0x%04x\n" % (i, c[i])
    s += r""".altmacro
.macro E8 a,b,c,d,e,f,g,h
.short C\a,C\b,C\c,C\d,C\e,C\f,C\g,C\h
.endm
.macro F8 p,k
E8 %((\p)&511),%((\p+\k)&511),%((\p+2*\k)&511),%((\p+3*\k)&511),%((\p+4*\k)&511),%((\p+5*\k)&511),%((\p+6*\k)&511),%((\p+7*\k)&511)
.endm
.macro G8 i0,i1,p,d
E8 %((\i0)&511),%((\i1)&511),%((\p+\d)&511),%((\p+\d+128)&511),%((\p+2*\d)&511),%((\p+2*\d+128)&511),%((\p+3*\d)&511),%((\p+3*\d+128)&511)
.endm
.type tables,@object
tables:
.set n, 0
.rept 32768
.set cc, ((n>>11)<<5) + (n&19) + ((n&4)<<1) + ((n&8)>>1)
.set dd, (((n>>6)&31)<<4) + (((n>>5)&1)<<3)
.set lt2, ((cc-2)>>63)&1
.set kk, (cc>>1) + 256*(((cc-1)>>63)&1)
.set pp, kk*dd + lt2*64 + (1-lt2)*128*(cc&1)
F8 pp, kk
.set n, n+1
.endr
.set n, 0
.rept 32768
.set dd, ((n>>11)<<5) + (((n>>2)&1)<<4) + (((n>>3)&3)<<2) + (n&3)
.set kk, (((n>>6)&31)<<3) + (((n>>5)&1)<<2)
.set z, ((kk-1)>>63)&1
.set pp, kk*dd
.set i0, z*(256*dd+64) + (1-z)*pp
.set i1, z*64 + (1-z)*(pp+128)
G8 i0, i1, pp, dd
.set n, n+1
.endr
.noaltmacro
"""
    s += hexdump(tab_M1()) + hexdump(tab_M2())
    return s

def build(order=None):
    c1, c2 = k_col()
    me = sys.modules[__name__]
    m1, m2 = k_mha(me)
    ks = dict(prep=k_prep(me), col2=c2, col1=c1, mha2=m2, mha1=m1)
    order = order or ["prep", "col1", "mha1", "col2", "mha2"]
    ref = open("cdna_kernels/%s.s.ref" % NAME).read().split("\n")
    head = "\n".join(l for l in ref[:10]) + "\n"
    for o in order:
        k, g, b, lds = ks[o]
        head += "; @launch kernel=%s grid=(%d,1,1) block=(%d,1,1) lds=%d\n" % (k.name, g, b, lds)
    s = head + '.amdgcn_target "amdgcn-amd-amdhsa--gfx950"\n'
    for k, *_ in ks.values(): s += k.text()
    for k, *_ in ks.values(): s += k.desc()
    s += tables()
    return s

if __name__ == "__main__":
    out = sys.argv[1] if len(sys.argv) > 1 else "cdna_kernels/%s.s" % NAME
    STAMP = len(sys.argv) > 2 and "stamp" in sys.argv[2]
    for kv in sys.argv[3:]:
        key, val = kv.split("="); OPT[key] = int(val)
    open(out, "w").write(build())
    print("wrote", out)
```

```python
def k_mha(G):
    K, R, OFF, TOFF, srd_load, srd_tab, lane_setup, OPT, fbits, LAYER = G.K, G.R, G.OFF, G.TOFF, G.srd_load, G.srd_tab, G.lane_setup, G.OPT, G.fbits, G.LAYER
    NV = 240
    k2 = K("mha2_kernel", NV)
    k2.a("s_mov_b32 s65, 0x%x\ns_mov_b32 s66, 1\ns_branch L_mha" % LAYER)
    k = K("mha1_kernel", NV); a = k.a
    a("s_mov_b32 s65, 0\ns_mov_b32 s66, 0")
    a("L_mha:")
    IDX = 12; KA0 = 13; VA0 = 14; VINC = 15
    Q = 16; KB = 24; VB = 32; S0, S1, CM, OA = 48, 64, 80, 112
    RS = 144; AL = 148; LN = 149; AW = 152; A3 = 216
    CB = 0x20000; BN = 0x21000; XB = 0x22400; WL = 0x2000
    a("s_cmp_ge_u32 s2, 256\ns_cbranch_scc1 L_mha_end")
    srd_load(a, 8, "ws"); srd_load(a, 12, "out"); srd_tab(a, 20)
    lane_setup(a)
    a("""
    s_and_b32 s40, s2, 7
    s_lshr_b32 s41, s2, 3
    s_and_b32 s42, s40, 1
    s_lshl_b32 s42, s42, 4
    s_and_b32 s47, s41, 15
    s_add_u32 s42, s42, s47         ; head
    s_lshr_b32 s43, s40, 1
    s_lshl_b32 s43, s43, 1
    s_lshr_b32 s48, s41, 4
    s_add_u32 s43, s43, s48         ; qb
    s_lshl_b32 s48, s48, 2
    s_add_u32 s51, s47, s48         ; rot (chunks of 4 k-steps)
    s_lshl_b32 s44, s43, 3
    s_add_u32 s44, s44, s3          ; projection row tile
    s_lshl_b32 s45, s44, 15
    s_add_u32 s45, s45, 0x%x        ; UB tile
    s_mul_i32 s46, s42, 49152
    s_add_u32 s46, s46, 0x%x        ; W' of the head
    s_add_u32 s47, s51, s3
    s_and_b32 s47, s47, 7
    s_lshl_b32 s48, s47, 12
    s_add_u32 s48, s48, s46
    s_lshl_b32 s49, s47, 11
    s_add_u32 s49, s49, s46
    s_add_u32 s49, s49, 32768
    s_lshl_b32 s52, s3, 12
    s_lshl_b32 s53, s3, 11
    s_add_u32 m0, s52, 0x%x
    v_lshlrev_b32 v5, 4, v2
    s_waitcnt lgkmcnt(0)
    """ % (OFF["UB"], OFF["WP"], WL))
    k.mark()
    UF = AW; AQK = 80; AV = 96; WB = 16; RING = 16
    def ureg(t):
        i = t % RING
        return UF + 4 * i
    um = []
    def uload(t):
        if t % 4 == 0:
            a("s_add_u32 s54, s51, %d\ns_and_b32 s54, s54, 7\ns_lshl_b32 s54, s54, 12\ns_add_u32 s54, s54, s45" % (t >> 2))
        a("buffer_load_dwordx4 %s, v9, s[8:11], s54 offen offset:%d" % (R(ureg(t), 4), 1024 * (t & 3)))
        um.append(a.vm - 1)
    for t in range(OPT.get("ub", 0)): uload(t)
    for i in range(4): a("buffer_load_dwordx4 v9, s[8:11], s48 offen offset:%d lds" % (1024 * i))
    a("s_add_u32 m0, s53, 0x%x" % (WL + 32768))
    for i in range(2): a("buffer_load_dwordx4 v9, s[8:11], s49 offen offset:%d lds" % (1024 * i))
    m_w = a.vm - 1
    UPRE = OPT.get("upre", 8)
    while len(um) < OPT.get("u0", 3): uload(len(um))
    a("""
    v_mov_b32 v%(LN)d, v1
    v_lshlrev_b32 v150, 2, v2               ; partial-sum store offset m*4
    v_lshl_add_u32 v151, v3, 9, v150        ; partial-sum load offset h*512 + m*4
    s_lshl_b32 s58, s44, 10
    s_lshl_b32 s59, s66, 16
    s_add_u32 s58, s58, s59
    s_add_u32 s58, s58, 0x%(psq)x
    s_and_b32 s59, s51, 7
    s_lshl_b32 s59, s59, 7
    s_add_u32 s59, s59, s58
    v_mov_b32 v148, v5
    v_and_b32 v5, 15, v1
    v_lshlrev_b32 v5, 4, v5
    v_lshl_add_u32 v5, v3, 8, v5            ; h*256 + (m&15)*16
    v_add_u32 v7, 0x%(wv)x, v5              ; W'v read address
    v_add_u32 v6, 0x%(wl)x, v9              ; W'qk read address
    s_lshr_b32 s41, s3, 2                   ; kh
    s_lshl_b32 s55, s41, 12
    v_add_u32 v%(KA0)d, s55, v9
    s_add_u32 s55, s55, 0x10000
    v_add_u32 v4, s55, v5
    v_and_b32 v10, 27, v2
    v_cmp_eq_u32 vcc, 16, v10
    v_mov_b32 v10, 0x%(cb1)x
    v_mov_b32 v11, 0x%(cb0)x
    v_cndmask_b32 v10, v10, v11, vcc
    v_cmp_gt_u32 s[60:61], 16, v2
    v_mov_b32 v11, 0
    v_mov_b32 v%(IDX)d, 8192
    v_cndmask_b32 v%(VA0)d, v10, v4, s[60:61]
    v_cndmask_b32 v%(VINC)d, v11, v%(IDX)d, s[60:61]
    v_mov_b32 v%(IDX)d, 0xdddddddd
    v_lshrrev_b32 v4, 1, v1
    v_and_b32 v10, 7, v4
    v_lshrrev_b32 v4, 3, v4
    v_lshlrev_b32 v10, 9, v10
    v_lshl_add_u32 v4, v4, 13, v10
    v_and_b32 v10, 1, v1
    v_lshl_add_u32 v4, v10, 4, v4
    v_add_u32 v4, 0x%(cb0)x, v4
    v_add_u32 v10, -1, v10
    v_and_b32 v16, 0x3f803f80, v10
    v_mov_b32 v17, v16
    v_mov_b32 v18, v16
    v_mov_b32 v19, v16
    s_mov_b64 exec, 0xfffff
    ds_write_b128 v4, v[16:19]
    s_mov_b64 exec, -1
    v_mov_b32 v10, 0
    v_mov_b32 v11, 0
    """ % dict(KA0=KA0, VA0=VA0, VINC=VINC, IDX=IDX, cb0=CB, cb1=CB + 16, wl=WL, wv=WL + 32768, LN=LN, psq=OFF["PSQ"]))
    for r in range(16): a("v_mov_b32 v%d, 0" % (A3 + r))
    for r in range(32): a("v_mov_b32 v%d, 0" % (OA + r))
    for r in range(8): a("v_mov_b32 v%d, 0" % (S1 + 8 + r))
    a("""
    s_lshl_b32 s48, s3, 8
    s_add_u32 s48, s48, 0x%x
    v_lshl_add_u32 v64, v1, 2, s48  ; rinv write
    v_lshl_add_u32 v65, v3, 4, s48
    v_bfe_u32 v4, v1, 4, 1
    v_lshl_add_u32 v65, v4, 6, v65  ; rinv read (lanes m>=16 take rows 16..31)
    v_lshl_add_u32 v66, v4, 9, v5   ; V offset f*512 + h*256 + dim*16
    s_lshl_b32 s48, s42, 16
    s_add_u32 s48, s48, s65
    s_add_u32 s48, s48, 0x%x        ; K base of the head
    s_lshl_b32 s62, s44, 10
    s_add_u32 s62, s62, s48
    s_add_u32 s63, s62, 0x%x
    s_lshl_b32 s52, s3, 10
    v_and_b32 v67, 0x33, v1
    v_and_b32 v4, 4, v1
    v_lshl_or_b32 v67, v4, 1, v67
    v_and_b32 v4, 8, v1
    v_lshrrev_b32 v4, 1, v4
    v_or_b32 v67, v67, v4
    v_lshlrev_b32 v67, 4, v67       ; swap23(lane)*16
    v_add_u32 v68, s52, v67
    s_add_u32 s53, s52, 0x10000
    v_add_u32 v69, s53, v66
    s_add_u32 s53, s52, 0x%x
    v_add_u32 v70, s53, v9
    s_and_b32 s40, s3, 3
    s_lshl_b32 s40, s40, 1
    s_add_u32 s40, s40, s41         ; local q tile
    s_lshl_b32 s44, s43, 3
    s_add_u32 s44, s44, s40         ; output row tile
    s_lshl_b32 s40, s40, 10
    v_add_u32 v71, s40, v9
    v_xor_b32 v5, 1024, v71
    v_add_u32 v71, 0x%x, v71
    v_add_u32 v5, 0x%x, v5
    s_add_u32 s48, s48, s52         ; K base + w*1024
    s_add_u32 s49, s52, 8192        ; LDS offset of the next group
    s_add_u32 s50, s43, 1           ; next block
    s_lshl_b32 s56, s42, 8
    s_lshl_b32 s57, s3, 5
    s_add_u32 s56, s56, s57
    s_lshl_b32 s57, s66, 13
    s_add_u32 s56, s56, s57
    s_add_u32 s56, s56, 0x%x        ; flags of (head, w)
    s_lshl_b32 s57, s43, 2
    s_add_u32 s57, s57, s56         ; own flag
    s_mov_b32 s67, 0
    """ % (BN, OFF["KF"], OFF["VF"] - OFF["KF"], XB, XB, XB, OFF["FLK"]))
    a.wait_vm(m_w, "lgkmcnt(0)"); a("s_barrier")
    k.mark()
    def wrd(t):
        b = WB + 8 * (t & 3)
        a("ds_read_b128 %s, v6 offset:%d" % (R(b, 4), t * 1024))
        a("ds_read_b128 %s, v7 offset:%d" % (R(b + 4, 4), t * 512))
    for t in range(3): wrd(t)
    while len(um) < OPT.get("u1", 6): uload(len(um))
    def sq(r):
        a("v_and_b32 v4, 0xffff0000, v%d\nv_lshlrev_b32 v0, 16, v%d\nv_fmac_f32 v10, v4, v4\nv_fmac_f32 v11, v0, v0" % (r, r))
    for t in range(32):
        u = ureg(t); b = WB + 8 * (t & 3); z = t == 0
        if t + 3 < 32: wrd(t + 3)
        a.wait_vm(um[t], "lgkmcnt(%d)" % (2 * min(3, 31 - t) + (3 if t > OPT.get("psc", 29) else 0)))
        a("v_mfma_f32_32x32x16_bf16 %s, %s, %s, %s" % (R(AQK, 16), R(b, 4), R(u, 4), "0" if z else R(AQK, 16)))
        if len(um) < min(32, t + UPRE): uload(len(um))
        a("v_mfma_f32_32x32x16_bf16 %s, %s, %s, %s" % (R(AV, 16), R(u, 4), R(b + 4, 4), "0" if z else R(AV, 16)))
        if t == 3:
            a("s_cmp_lt_u32 s42, 8\ns_cbranch_scc0 L_mha_nsq")
            for r in range(16): sq(UF + r)
            a("v_add_f32 v10, v10, v11\nv_mov_b32 v11, v10\nv_permlane32_swap_b32 v10, v11\nv_add_f32 v10, v10, v11\ns_mov_b32 exec_hi, 0")
            a("buffer_store_dword v10, v150, s[8:11], s59 offen sc1")
            a.vm -= 1
            a("s_mov_b64 exec, -1")
            a("L_mha_nsq:")
        if len(um) < min(32, t + 1 + UPRE): uload(len(um))
        if OPT.get("p1bar") and t % OPT["p1bar"] == OPT["p1bar"] - 1 and t < 30: a("s_barrier")
        if OPT.get("p1pr", 1) and t in (0, 8, 16, 24): a("s_setprio %d" % (3 - t // 8))
        if t == OPT.get("pst", 20):
            a("buffer_load_dword v8, v148, s[8:11], s45 offen")
            for i in range(4): a("buffer_load_dword v%d, v151, s[8:11], s58 offen offset:%d sc1" % (RS + i, 128 * i))
            m_ps = a.vm - 1
        if t == OPT.get("psc", 29):
            a.wait_vm(m_ps)
            a("""
            v_or3_b32 v4, v144, v145, v146
            v_or_b32 v4, v4, v147
            v_cmp_gt_i32 vcc, 0, v4
            v_and_b32 v8, 0xffff0000, v8
            s_nop 0
            s_cbranch_vccnz L_mha_ps
L_mha_ps1:
            v_add_f32 v10, v144, v145
            v_add_f32 v11, v146, v147
            v_add_f32 v10, v10, v11
            v_mov_b32 v11, v10
            v_permlane32_swap_b32 v10, v11
            v_add_f32 v10, v10, v11
            v_fma_f32 v10, -v8, v8, v10
            v_mov_b32 v11, 0x%x
            v_fmac_f32 v11, 0x%x, v10
            v_rsq_f32 v10, v11
            s_nop 0
            ds_write_b32 v64, v10
            ds_read_b128 v[48:51], v65
            ds_read_b128 v[52:55], v65 offset:32
            """ % (fbits(1e-5), fbits(1.0 / 512)))
    k.mark()
    a("v_and_b32 v8, 7, v1\nv_lshlrev_b32 v8, 2, v8\nv_mov_b32 v0, 0\nv_mov_b32 v1, 1\nv_mov_b32 v6, v%d\nv_mov_b32 v7, v%d" % (KA0, VA0))
    for r in range(4): a("v_mov_b32 v%d, 0" % (VB + 12 + r))
    for r in range(8, 16): a("v_mul_f32 v%d, v10, v%d" % (AQK + r, AQK + r))
    for r in range(4): a("v_cvt_pk_bf16_f32 v%d, v%d, v%d" % (56 + r, AQK + 8 + 2 * r, AQK + 9 + 2 * r))
    a("buffer_store_dwordx4 v[56:59], v67, s[8:11], s62 offen sc1")
    a("ds_write_b128 v68, v[56:59]")
    for r in range(8): a("v_cndmask_b32 v%d, v%d, v%d, s[60:61]" % (AV + r, AV + 8 + r, AV + r))
    a("s_waitcnt lgkmcnt(1)")
    for r in range(8): a("v_mul_f32 v%d, v%d, v%d" % (AV + r, AV + r, 48 + r))
    for r in range(4): a("v_cvt_pk_bf16_f32 v%d, v%d, v%d" % (60 + r, AV + 2 * r, AV + 1 + 2 * r))
    a("buffer_store_dwordx4 v[60:63], v66, s[8:11], s63 offen sc1")
    a("ds_write_b128 v69, v[60:63]")
    for r in range(8): a("v_mul_f32 v%d, v10, v%d" % (AQK + r, AQK + r))
    for r in range(4): a("v_cvt_pk_bf16_f32 v%d, v%d, v%d" % (48 + r, AQK + 2 * r, AQK + 1 + 2 * r))
    a("ds_write_b128 v70, v[48:51]")
    a("v_mul_f32 v52, v%d, v%d\nv_mul_f32 v53, v%d, v%d" % (AQK, AQK + 8, AQK + 1, AQK + 9))
    for r in range(2, 8): a("v_fmac_f32 v%d, v%d, v%d" % (52 + (r & 1), AQK + r, AQK + 8 + r))
    a("v_add_f32 v52, v52, v53\nv_mov_b32 v53, v52\nv_permlane32_swap_b32 v52, v53")
    a("v_sub_f32_e64 v54, -v52, v53\nv_sub_f32_e64 v55, -v52, v53\nv_mov_b32 v52, v54\nv_mov_b32 v53, v54")
    a("ds_write_b128 v70, v[52:55] offset:8192")
    a("v_mov_b32 v4, v71\ns_mov_b32 s62, 0")
    if OPT.get("prio", 1): a("s_cmp_lt_u32 s3, 4\ns_cbranch_scc1 L_mha_np\ns_setprio 1\nL_mha_np:")
    a("s_waitcnt lgkmcnt(0)\ns_barrier")
    k.mark()
    def group():
        a("""
        s_and_b32 s51, s50, 7
        s_lshl_b32 s51, s51, 13
        s_mov_b32 m0, s49
        s_add_u32 s51, s51, s48
        buffer_load_dwordx4 v9, s[8:11], s51 offen sc1 lds
        s_add_u32 m0, s49, 0x10000
        s_add_u32 s51, s51, 0x%x
        buffer_load_dwordx4 v9, s[8:11], s51 offen sc1 lds
        s_add_u32 s49, s49, 8192
        s_add_u32 s50, s50, 1
        """ % (OFF["VF"] - OFF["KF"]))
    def off(t): return (t >> 2) * 8192 + (t & 3) * 1024
    def rdk(i, o): a("ds_read_b128 %s, v6 offset:%d" % (R(KB + 4 * i, 4), o))
    def rdv(i, f, o): a("ds_read_b128 %s, v7 offset:%d" % (R(VB + 8 * i + 4 * f, 4), o))
    def qk(S, i, q): a("v_mfma_f32_32x32x16_bf16 %s, %s, %s, %s" % (R(S, 16), R(KB + 4 * i, 4), R(Q + 4 * q, 4), R(CM + 16 * q, 16)))
    def pv(i, f, S, q): a("v_smfmac_f32_32x32x32_bf16 %s, %s, %s, v%d" % (R(OA + 16 * q, 16), R(VB + 8 * i + 4 * f, 4), R(S + 8 * f, 8), IDX))
    def ex(S, lo, hi):
        for r in range(lo, hi): a("v_exp_f32 v%d, v%d" % (S + r, S + r))
    a("ds_read_b128 %s, v4" % R(Q, 4))
    for g in range(4): a("ds_read_b128 %s, v4 offset:8192" % R(CM + 4 * g, 4))
    rdk(0, 0)
    a("ds_read_b128 %s, v5" % R(Q + 4, 4))
    for g in range(4): a("ds_read_b128 %s, v5 offset:8192" % R(CM + 16 + 4 * g, 4))
    rdv(0, 0, 0); rdv(0, 1, 512); rdk(1, 1024)
    a("s_waitcnt lgkmcnt(8)")
    qk(S0, 0, 0)
    a("s_waitcnt lgkmcnt(3)")
    k.mark()
    def body(x=False, hooks={}, loop=False, last=False):
        for u in range(8):
            t, q = u >> 1, u & 1
            Sc, Sn = (S0, S1) if q == 0 else (S1, S0)
            ex(Sc, 0, 2)
            pv((t - 1 + q) & 1, 1, Sn, 1 - q)
            if u in hooks: hooks[u]()
            nv = not (last and t == 3); nk = not (last and t >= 2)
            if q == 0 and nv:
                rdv((t + 1) & 1, 0, off(t + 1)); rdv((t + 1) & 1, 1, off(t + 1) + 512)
            ex(Sc, 2, 5)
            if not (last and u == 7): qk(Sn, (t + q) & 1, 1 - q)
            if q == 0 and nk: rdk(t & 1, off(t + 2))
            ex(Sc, 5, 10)
            if q == 0: a("s_waitcnt lgkmcnt(%d)" % (2 * nv + nk))
            pv(t & 1, 0, Sc, q)
            if u == 7 and not last:
                a("v_add_u32 v6, 8192, v6\nv_add_u32 v7, v%d, v7" % VINC)
            if u == 7 and loop:
                a("s_add_u32 s63, s63, 1\ns_cmp_lt_u32 s63, 8")
            if x:
                ex(Sc, 10, 14 if x == 2 else 10)
                if x == 2:
                    a("s_waitcnt vmcnt(14)")
                    a("v_mfma_f32_32x32x16_bf16 %s, %s, %s, %s" % (R(A3, 16), R(AW + 4 * u, 4), R(AW + 32 + 4 * u, 4), R(A3, 16)))
                a("buffer_load_dwordx4 %s, v%d, s[20:23], s%d offen offset:%d" % (R(AW + 4 * u, 4), AL, 76 + (u >> 2), 1024 * (u & 3)))
                a("buffer_load_dwordx4 %s, v150, s[8:11], s%d offen offset:%d" % (R(AW + 32 + 4 * u, 4), 78 + (u >> 2), 1024 * (u & 3)))
                ex(Sc, 14 if x == 2 else 10, 16)
            else:
                ex(Sc, 10, 16)
    def h_flag(): a("s_waitcnt vmcnt(0)\nbuffer_store_dword v1, v0, s[8:11], s57 offen sc1")
    def h_poll(): a("buffer_load_dword v2, v8, s[8:11], s56 offen sc1")
    def h_chk(i, first, again):
        def f():
            if not first: a("s_cmp_eq_u32 s67, 1\ns_cbranch_scc1 L_mha_nr%d" % i)
            a("s_waitcnt vmcnt(0)\nv_cmp_ne_u32 vcc, 1, v2\ns_nop 1\ns_cbranch_vccnz L_mha_re%d" % i)
            group(); group()
            a("s_mov_b32 s67, 1")
            if again:
                a("L_mha_nr%d:" % i)
                late.append(i)
            else:
                a("L_mha_re%d:\nL_mha_nr%d:" % (i, i))
        return f
    late = []
    def h_sync(n, g):
        def f():
            a("s_waitcnt vmcnt(%d)\ns_barrier" % n)
            for _ in range(g): group()
        return f
    def h_ids():
        a("""
        s_lshl_b32 s72, s43, 3
        s_lshr_b32 s73, s42, 2
        s_add_u32 s72, s72, s73         ; row tile of the output projection
        s_and_b32 s73, s42, 3
        s_lshl_b32 s73, s73, 2
        s_and_b32 s74, s3, 3
        s_add_u32 s73, s73, s74         ; column tile
        s_lshl_b32 s74, s73, 15
        s_lshl_b32 s75, s41, 14
        s_add_u32 s74, s74, s75         ; weight offset: tile*32K + kh*16K
        s_lshl_b32 s71, s72, 15
        s_add_u32 s71, s71, 0x%x        ; UB row tile
        s_add_u32 s78, s71, s75
        s_add_u32 s76, s74, 0x%x
        s_add_u32 s77, s76, 4096
        s_add_u32 s79, s78, 4096
        s_lshl_b32 s75, s41, 8
        v_xor_b32 v%d, s75, v9
        v_mov_b32 v150, v9
        s_lshl_b32 s75, s73, 11
        s_add_u32 s71, s71, s75
        s_lshl_b32 s75, s41, 10
        s_add_u32 s71, s71, s75
        buffer_load_dwordx4 %s, v9, s[8:11], s71 offen
        """ % (OFF["UB"], TOFF["T2"], AL, R(RS, 4)))
    def h_x2():
        for r in (76, 77, 78, 79): a("s_add_u32 s%d, s%d, 8192" % (r, r))
    def h_w():
        a("""
        s_setprio 0
        s_lshl_b32 s75, s66, 19
        s_add_u32 s76, s74, s75
        s_add_u32 s76, s76, 0x%x
        s_add_u32 s78, s76, 8192
        s_mov_b64 s[20:21], s[8:9]
        s_mov_b32 s22, s10
        v_mov_b32 v150, v%d
        s_add_u32 s77, s76, 4096
        s_add_u32 s79, s78, 4096
        """ % (OFF["WOP"], AL))
    assert OFF["WOF"] - OFF["WOP"] == 1 << 19
    hk = {OPT.get("hf", 0): h_flag, OPT.get("hp", 3): h_poll}
    cs = [OPT.get("hc", 5)] + ([OPT.get("hc2", 7)] if OPT.get("hc2", 7) else [])
    for i, c in enumerate(cs): hk[c] = h_chk(i, i == 0, i + 1 < len(cs))
    body(hooks=hk, last=True)
    a("v_add_u32 v6, 8192, v6\nv_add_u32 v7, v%d, v7" % VINC)
    a("s_cmp_eq_u32 s67, 1\ns_cbranch_scc0 L_mha_spin0")
    a("L_mha_rdy:")
    if OPT.get("mk") == 1: k.mark(0)
    a("s_waitcnt vmcnt(%d)\ns_barrier" % (0 if OPT.get("kv2", 1) == 2 else 2))
    if OPT.get("mk") == 1: k.mark(1)
    rdk(0, 0); rdv(0, 0, 0); rdv(0, 1, 512); rdk(1, 1024)
    group()
    a("s_waitcnt lgkmcnt(3)")
    qk(S0, 0, 0)
    if OPT.get("kv2", 1) == 2:
        body(hooks={2: group, 4: group, 6: group})
        body(hooks={0: group, 4: h_sync(0, 0)})
        body(hooks={0: h_ids})
    elif OPT.get("kv2", 1):
        body(hooks={2: group, 4: h_sync(4, 1), 6: group})
        if OPT.get("mk") == 1: k.mark(2)
        body(hooks={0: group, 4: h_sync(0, 0)})
        body(hooks={0: h_ids})
    else:
        body(hooks={4: h_sync(2, 1)})
        body(hooks={0: group, 2: group, 4: h_sync(4, 1)})
        body(hooks={0: h_ids, 4: h_sync(0, 0)})
    a("s_cmp_eq_u32 s66, 0\ns_cbranch_scc0 L_mha_x45")
    def h_sent():
        a("""
        v_mov_b32 v232, -1
        v_mov_b32 v233, -1
        v_mov_b32 v234, -1
        v_mov_b32 v235, -1
        s_lshl_b32 s75, s2, 13
        s_add_u32 s75, s75, s52
        s_add_u32 s75, s75, 0x%x
        buffer_store_dwordx4 v[232:235], v9, s[8:11], s75 offen sc1
        """ % (OFF["OF"] + LAYER))
    def h_pf():
        a("""
        s_mul_i32 s75, s3, 6144
        s_add_u32 s75, s75, s46
        v_lshlrev_b32 v236, 2, v9
        buffer_load_dword v237, v236, s[8:11], s75 offen
        s_add_u32 s75, s75, 2048
        buffer_load_dword v238, v236, s[8:11], s75 offen
        """)
    body(hooks={0: h_sent}); body(hooks={6: h_pf} if OPT.get("mpf", 1) else {})
    body(x=1, hooks={0: h_w})
    a("L_mha_i7:")
    if OPT.get("mk") == 1: k.mark(3)
    body(last=True)
    a("L_mha_fin:")
    k.nm = 5
    pv(1, 1, S1, 1)
    k.mark()
    a("s_waitcnt lgkmcnt(0)")
    a("v_mov_b32 v5, 0x4e800000")
    a("v_cmp_nlt_f32 vcc, v%d, v5" % (OA + 8))
    a("v_cmp_nlt_f32 s[68:69], v%d, v5" % (OA + 24))
    a("s_or_b64 vcc, vcc, s[68:69]")
    a("s_cmp_eq_u32 s62, 0\ns_cbranch_scc0 L_mha_out")
    a("s_cbranch_vccnz L_mha_slow")
    a("L_mha_out:")
    a("""
    s_mul_i32 s52, s3, 2560
    s_add_u32 s52, s52, 0x%x
    v_add_u32 v6, s52, v9
    v_lshrrev_b32 v4, 1, v9
    v_add_u32 v10, s52, v4
    s_xor_b32 s53, s3, 4
    s_mul_i32 s53, s53, 2560
    s_add_u32 s53, s53, 0x%x
    v_add_u32 v7, s53, v9
    v_add_u32 v11, s53, v4
    v_mov_b32 v%d, v%d
    ds_write_b128 v6, %s
    ds_write_b128 v6, %s offset:1024
    ds_write_b64 v10, %s offset:2048
    s_lshl_b32 s46, s44, 15
    s_lshl_b32 s47, s42, 10
    s_add_u32 s46, s46, s47
    s_add_u32 s46, s46, s65
    s_add_u32 s46, s46, 0x%x
    s_waitcnt lgkmcnt(0)
    s_barrier
    ds_read_b64 v[56:57], v11 offset:2048
    ds_read_b128 v[48:51], v7
    ds_read_b128 v[52:55], v7 offset:1024
    s_waitcnt lgkmcnt(2)
    v_min_f32 v4, v%d, v57
    v_sub_f32 v5, v4, v%d
    v_sub_f32 v4, v4, v57
    v_exp_f32 v10, v5
    v_exp_f32 v4, v4
    v_mul_f32 v5, v10, v%d
    v_fmac_f32 v5, v4, v56
    v_rcp_f32 v5, v5
    v_mul_f32 v10, v10, v5
    v_mul_f32 v4, v4, v5
    s_waitcnt lgkmcnt(0)
    """ % (XB, XB, OA + 25, CM + 16, R(OA + 16, 4), R(OA + 20, 4), R(OA + 24, 2), OFF["OF"], CM, CM, OA + 8))
    for r in range(8):
        a("v_mul_f32 v%d, v10, v%d" % (OA + r, OA + r))
        a("v_fmac_f32 v%d, v4, v%d" % (OA + r, 48 + r))
    for r in range(4): a("v_cvt_pk_bf16_f32 v%d, v%d, v%d" % (OA + r, OA + 2 * r, OA + 2 * r + 1))
    a("buffer_store_dwordx4 %s, v9, s[8:11], s46 offen %s" % (R(OA, 4), {0: "sc1", 1: "sc0 sc1", 2: "sc1 nt"}[OPT.get("ost", 0)]))
    if OPT.get("mk") == 2: k.mark(0)
    a("""
    s_lshl_b32 s46, s72, 15
    s_lshl_b32 s52, s3, 12
    s_add_u32 s46, s46, s52
    s_add_u32 s46, s46, s65
    s_add_u32 s46, s46, 0x%x
    v_add_u32 v6, s52, v9
    s_lshl_b32 s53, s41, 14
    v_add_u32 v7, s53, v9
    v_and_b32 v5, 3, v%%d
    v_lshlrev_b32 v5, 10, v5
    s_mov_b32 s70, 0
    s_waitcnt vmcnt(0)
L_mha_ol:
    """ % OFF["OF"] % LN)
    if OPT.get("mk") == 2: a.raw("    s_cmp_eq_u32 s70, 0\n    s_cbranch_scc0 L_mk1"); k.mark(1); a.raw("L_mk1:")
    for i in range(4): a("buffer_load_dwordx4 %s, v9, s[8:11], s46 offen offset:%d sc1" % (R(48 + 4 * i, 4), 1024 * i))
    a("s_add_u32 s70, s70, 1\ns_waitcnt vmcnt(0)")
    a("v_max3_u32 v4, v48, v49, v50")
    for r in range(51, 63, 2): a("v_max3_u32 v4, v4, v%d, v%d" % (r, r + 1))
    a("v_max_u32 v4, v4, v63\nv_cmp_eq_u32 vcc, -1, v4")
    a("s_cmp_gt_u32 s70, 0x40000\ns_cbranch_scc1 L_mha_ol1\ns_cbranch_vccnz L_mha_ol")
    a("L_mha_ol1:")
    if G.STAMP: a("s_mov_b32 s95, s70")
    if OPT.get("mk") == 2: k.mark(2)
    for i in range(4): a("ds_write_b128 v6, %s offset:%d" % (R(48 + 4 * i, 4), 1024 * i))
    a("s_cmp_eq_u32 s66, 0\ns_cbranch_scc0 L_mha_i2")
    for p in range(4):
        a("v_lshlrev_b32 v%d, 16, v%d\nv_and_b32 v%d, 0xffff0000, v%d" % (A3 + 2 * p, RS + p, A3 + 2 * p + 1, RS + p))
    a("L_mha_i2:")
    a("s_waitcnt lgkmcnt(0)\ns_barrier")
    k.mark(6)
    for t in range(16):
        if t == 15: a("s_waitcnt lgkmcnt(14)")
        a("ds_read_b128 %s, v7 offset:%d" % (R(48 + 4 * t, 4), 1024 * t))
    for t in range(16):
        a("s_waitcnt lgkmcnt(%d)" % min(14, 15 - t))
        a("v_mfma_f32_32x32x16_bf16 %s, %s, %s, %s" % (R(A3, 16), R(AW + 4 * t, 4), R(48 + 4 * t, 4), R(A3, 16)))
    if OPT.get("mk") == 2: k.mark(3)
    a("""
    s_lshl_b32 s52, s3, 11
    s_add_u32 s52, s52, 0x8000
    v_add_u32 v6, s52, v9
    v_xor_b32 v7, 0x2000, v6
    v_and_b32 v2, 31, v%d
    ds_write_b128 v6, %s
    ds_write_b128 v6, %s offset:1024
    s_waitcnt lgkmcnt(0)
    s_barrier
    ds_read_b128 v[48:51], v7
    ds_read_b128 v[52:55], v7 offset:1024
    s_cmp_eq_u32 s66, 0
    s_cbranch_scc0 L_mha_f2
    ; layer 1: slot k = 16ct + 8f + 4h + jj ; UC address k*8192 + r*4
    s_lshl_b32 s40, s73, 17
    s_lshl_b32 s46, s41, 16
    s_add_u32 s40, s40, s46
    s_lshl_b32 s46, s72, 7
    s_add_u32 s40, s40, s46
    s_add_u32 s52, s40, 0x%x
    s_add_u32 s53, s52, 8192
    s_add_u32 s54, s52, 16384
    s_add_u32 s55, s52, 24576
    s_add_u32 s46, s46, 0x%x
    v_lshlrev_b32 v5, 15, v3
    v_lshl_add_u32 v5, v2, 2, v5
    v_lshlrev_b32 v6, 2, v2
    s_add_u32 s40, s73, s41
    v_add_u32 v4, s40, v3
    v_cmp_eq_u32 vcc, 0, v4
    s_waitcnt lgkmcnt(0)
    """ % (LN, R(A3 + 8, 4), R(A3 + 12, 4), OFF["UC"], OFF["SSQ2"]))
    for r in range(8): a("v_add_f32 v%d, v%d, v%d" % (A3 + r, A3 + r, 48 + r))
    for p in range(4):
        a("v_cvt_pk_bf16_f32 v%d, v%d, v%d" % (56 + p, A3 + 2 * p, A3 + 2 * p + 1))
        a("buffer_store_dword v%d, v5, s[8:11], s%d offen" % (56 + p, 52 + p))
    a("v_cndmask_b32 v7, v%d, v4, vcc\nv_mul_f32 v7, v7, v7\nv_mul_f32 v8, v%d, v%d" % (A3 + 1, A3, A3))
    for r in range(2, 8): a("v_fmac_f32 v%d, v%d, v%d" % (7 + (r & 1), A3 + r, A3 + r))
    a("""
    v_add_f32 v7, v7, v8
    v_mov_b32 v8, v7
    v_permlane32_swap_b32 v7, v8
    v_add_f32 v7, v7, v8
    s_mov_b32 exec_hi, 0
    buffer_atomic_add_f32 v7, v6, s[8:11], s46 offen
    s_endpgm
L_mha_f2:
    ; layer 2: transpose through LDS to 256-byte row segments
    s_and_b32 s40, s3, 3
    s_lshl_b32 s40, s40, 6
    s_lshl_b32 s46, s41, 4
    s_add_u32 s40, s40, s46
    s_add_u32 s40, s40, 0xC000
    s_movk_i32 s46, 272
    v_mul_lo_u32 v5, v2, s46
    v_lshl_add_u32 v5, v3, 5, v5
    v_add_u32 v5, s40, v5
    v_lshrrev_b32 v4, 4, v%(LN)d
    s_lshl_b32 s40, s3, 2
    v_add_u32 v4, s40, v4               ; row m of the tile
    v_and_b32 v8, 15, v%(LN)d
    v_lshlrev_b32 v8, 4, v8
    v_mad_u32_u24 v6, v4, s46, v8
    v_add_u32 v6, 0xC000, v6
    v_and_b32 v7, 15, v4
    v_lshl_add_u32 v7, v7, 10, v8
    v_lshrrev_b32 v4, 4, v4
    v_lshl_add_u32 v7, v4, 19, v7
    s_and_b32 s40, s72, 1
    s_lshl_b32 s40, s40, 20
    s_bfe_u32 s46, s72, 0x30001
    s_lshl_b32 s46, s46, 16
    s_add_u32 s40, s40, s46
    s_lshr_b32 s46, s72, 4
    s_lshl_b32 s46, s46, 14
    s_add_u32 s40, s40, s46
    s_and_b32 s46, s42, 3
    s_lshl_b32 s46, s46, 8
    s_add_u32 s40, s40, s46
    s_waitcnt lgkmcnt(0)
    """ % dict(LN=LN))
    for r in range(8): a("v_add_f32 v%d, v%d, v%d" % (A3 + r, A3 + r, 48 + r))
    for p in range(4): a("v_cvt_pk_bf16_f32 v%d, v%d, v%d" % (56 + p, A3 + 2 * p, A3 + 2 * p + 1))
    a("""
    ds_write_b128 v5, v[56:59]
    s_waitcnt lgkmcnt(0)
    s_barrier
    ds_read_b128 v[60:63], v6
    s_waitcnt lgkmcnt(0)
    buffer_store_dwordx4 v[60:63], v7, s[12:15], s40 offen
    """)
    a("L_mha_end:")
    a("s_endpgm")
    a("""
L_mha_ps:
    s_mov_b32 s70, 0
L_mha_ps2:
    buffer_load_dword v144, v151, s[8:11], s58 offen sc1
    buffer_load_dword v145, v151, s[8:11], s58 offen offset:128 sc1
    buffer_load_dword v146, v151, s[8:11], s58 offen offset:256 sc1
    buffer_load_dword v147, v151, s[8:11], s58 offen offset:384 sc1
    s_add_u32 s70, s70, 1
    s_waitcnt vmcnt(0)
    v_or3_b32 v4, v144, v145, v146
    v_or_b32 v4, v4, v147
    v_cmp_gt_i32 vcc, 0, v4
    s_cmp_gt_u32 s70, 0x40000
    s_cbranch_scc1 L_mha_ps1
    s_cbranch_vccnz L_mha_ps2
    s_branch L_mha_ps1
    """)
    for i in late:
        a("L_mha_re%d:\nbuffer_load_dword v2, v8, s[8:11], s56 offen sc1\ns_branch L_mha_nr%d" % (i, i))
    a("L_mha_spin0:")
    a("s_mov_b32 s70, 0")
    a("L_mha_spin:")
    a("buffer_load_dword v2, v8, s[8:11], s56 offen sc1\ns_add_u32 s70, s70, 1\ns_waitcnt vmcnt(0)\nv_cmp_ne_u32 vcc, 1, v2")
    a("s_cmp_gt_u32 s70, 0x40000\ns_cbranch_scc1 L_mha_go\ns_cbranch_vccnz L_mha_spin")
    a("L_mha_go:")
    group(); group()
    a("s_branch L_mha_rdy")
    a("L_mha_x45:")
    body(x=1)
    body(x=2, hooks={0: h_x2})
    body(x=2, hooks={0: h_w})
    a("s_branch L_mha_i7")
    a("L_mha_slow:")
    a("s_mov_b32 s62, 16\ns_mov_b32 s63, 0\nv_mov_b32 v6, v%d\nv_mov_b32 v4, 0xff800000\nv_mov_b32 v5, 0xff800000" % KA0)
    for r in range(32): a("v_mov_b32 v%d, 0" % (OA + r))
    a("L_mha_maxloop:")
    for i in range(4):
        a("ds_read_b128 %s, v6 offset:%d" % (R(KB, 4), 1024 * i))
        a("s_waitcnt lgkmcnt(0)")
        a("v_mfma_f32_32x32x16_bf16 %s, %s, %s, 0" % (R(S0, 16), R(KB, 4), R(Q, 4)))
        a("v_mfma_f32_32x32x16_bf16 %s, %s, %s, 0" % (R(S1, 16), R(KB, 4), R(Q + 4, 4)))
        for x, S in ((4, S0), (5, S1)):
            for r in range(0, 16, 2): a("v_max3_f32 v%d, v%d, v%d, v%d" % (x, x, S + r, S + r + 1))
    a("v_add_u32 v6, 8192, v6")
    a("s_add_u32 s63, s63, 1\ns_cmp_lt_u32 s63, 8\ns_cbranch_scc1 L_mha_maxloop")
    a("v_mov_b32 v6, v%d\nv_mov_b32 v7, v%d" % (KA0, VA0))
    rdk(0, 0); rdv(0, 0, 0); rdv(0, 1, 512); rdk(1, 1024)
    a("v_mov_b32 v10, v4\nv_mov_b32 v11, v5\nv_permlane32_swap_b32 v4, v10\nv_permlane32_swap_b32 v5, v11")
    a("v_max_f32 v4, v4, v10\nv_max_f32 v5, v5, v11")
    for r in range(16): a("v_sub_f32 v%d, 0, v4\nv_sub_f32 v%d, 0, v5" % (CM + r, CM + 16 + r))
    for r in range(8): a("v_mov_b32 v%d, 0" % (S1 + 8 + r))
    for r in range(4): a("v_mov_b32 v%d, 0" % (VB + 12 + r))
    a("s_waitcnt lgkmcnt(0)")
    qk(S0, 0, 0)
    a("s_mov_b32 s63, 0\ns_nop 7\ns_nop 3")
    a("L_mha_loop:")
    body(loop=True)
    a("s_cbranch_scc1 L_mha_loop")
    a("s_branch L_mha_fin")
    lds = XB + 8 * 2560
    return (k, 256, 512, lds), (k2, 256, 512, lds)
```

```python
def k_prep(G):
    K, R, OFF, TOFF, SIZE, srd_load, srd_tab, lane_setup, OPT, fbits, LOG2E = G.K, G.R, G.OFF, G.TOFF, G.SIZE, G.srd_load, G.srd_tab, G.lane_setup, G.OPT, G.fbits, G.LOG2E
    ACC = 16; ACW = 32; TF = 112; BX = 48; BW = 80
    HL = 0x20000; AS = 9216
    NT = 'nt ' if OPT.get('nt', 3) & 1 else ''
    NTW = 'nt ' if OPT.get('nt', 3) & 2 else ''
    k = K("prep_kernel", 240); a = k.a
    a("s_cmp_ge_u32 s2, 256\ns_cbranch_scc1 L_prep_end")
    a("s_load_dwordx4 s[72:75], s[0:1], 0\ns_load_dwordx2 s[76:77], s[0:1], 16\ns_load_dwordx4 s[12:15], s[0:1], 32")
    srd_load(a, 8, "ws")
    lane_setup(a)
    a("""
    s_and_b32 s40, s2, 7
    s_lshr_b32 s41, s2, 3
    s_and_b32 s42, s41, 7           ; cb
    s_lshl_b32 s43, s40, 2
    s_lshr_b32 s48, s41, 3
    s_add_u32 s43, s43, s48         ; rb
    s_lshl_b32 s48, s48, 1
    s_add_u32 s51, s42, s48         ; rot
    s_mov_b32 s23, 0x00020000
    s_cmp_ge_u32 s3, 4
    s_cbranch_scc1 L_prep_help
    s_lshr_b32 s57, s3, 1           ; wm
    s_and_b32 s58, s3, 1            ; wn
    s_lshl_b32 s44, s42, 1
    s_add_u32 s44, s44, s57         ; c tile
    s_lshl_b32 s46, s43, 1
    s_add_u32 s46, s46, s58
    s_lshl_b32 s50, s44, 15
    """)
    a("""
    v_and_b32 v4, 0x13, v1
    v_and_b32 v5, 4, v1
    v_lshl_or_b32 v4, v5, 1, v4
    v_bfe_u32 v5, v1, 3, 1
    v_lshl_or_b32 v4, v5, 2, v4
    s_lshl_b32 s40, s44, 5
    v_add_u32 v4, s40, v4           ; c
    v_lshrrev_b32 v5, 1, v4         ; kk
    v_and_b32 v6, 1, v4
    v_lshlrev_b32 v6, 7, v6         ; ph
    v_mov_b32 v7, 256
    v_cmp_eq_u32 vcc, 0, v4
    v_cndmask_b32 v5, v5, v7, vcc
    v_mov_b32 v7, 64
    v_cmp_gt_u32 vcc, 2, v4
    v_cndmask_b32 v6, v6, v7, vcc
    v_lshlrev_b32 v7, 3, v3
    v_mad_u32_u24 v6, v5, v7, v6
    v_cvt_f32_u32 v7, v5
    v_mul_f32 v7, 0x3b000000, v7
    v_lshlrev_b32 v11, 31, v5
    v_ashrrev_i32 v11, 31, v11
    v_and_b32 v12, v5, v4
    v_lshrrev_b32 v13, 1, v5
    v_xor_b32 v12, v12, v13
    v_lshlrev_b32 v12, 31, v12
    v_ashrrev_i32 v12, 31, v12
    v_and_b32 v11, 0x80008000, v11
    v_and_b32 v12, 0x80008000, v12
    v_xor_b32 v13, v11, v12
    """)
    for c in range(2):
        a("s_add_u32 s53, s51, %d\ns_lshl_b32 s53, s53, 6" % c)
        for t in range(4):
            if t: a("s_add_u32 s53, s53, 16")
            a("v_mad_u32_u24 v10, v5, s53, v6\nv_and_b32 v10, 511, v10\nv_cvt_f32_u32 v10, v10\nv_mul_f32 v48, 0x3b000000, v10")
            for j in range(1, 8): a("v_fmamk_f32 v%d, v7, 0x%x, v48" % (48 + j, fbits(j)))
            for j in range(8): a("v_cos_f32 v%d, v%d" % (48 + j, 48 + j))
            d = TF + 16 * c + 4 * t
            for j in range(4): a("v_cvt_pk_bf16_f32 v%d, v%d, v%d" % (d + j, 48 + 2 * j, 49 + 2 * j))
            for j in range(4): a("v_xor_b32 v%d, v11, v%d" % (d + 64 + j, d + j))
            for j in range(4): a("v_xor_b32_dpp v%d, v%d, v12 quad_perm:[0,1,3,2] row_mask:0xf bank_mask:0xf" % (d + 32 + j, d + j))
            for j in range(4): a("v_xor_b32_dpp v%d, v%d, v13 quad_perm:[0,1,3,2] row_mask:0xf bank_mask:0xf" % (d + 96 + j, d + j))
    k.mark(0)
    a("""
    s_lshl_b32 s49, s58, 12
    v_bfe_u32 v5, v1, 1, 3
    v_xor_b32 v5, v5, v3
    v_lshlrev_b32 v7, 7, v2
    v_add_u32 v7, s49, v7
    v_lshl_add_u32 v10, v5, 4, v7
    v_xor_b32 v11, 32, v10
    v_xor_b32 v12, 64, v10
    v_xor_b32 v13, 96, v10
    v_bfe_u32 v4, v1, 2, 2
    v_lshl_add_u32 v4, v3, 3, v4
    v_lshlrev_b32 v4, 7, v4         ; (8h + r)*128
    v_bfe_u32 v5, v1, 3, 1
    v_xor_b32 v5, s58, v5
    v_lshl_add_u32 v4, v5, 6, v4
    v_bfe_u32 v6, v1, 4, 1
    v_lshl_add_u32 v4, v6, 5, v4
    v_and_b32 v5, 3, v1
    v_lshl_add_u32 v14, v5, 3, v4
    s_waitcnt lgkmcnt(0)
    """)
    G.uc_addr(a)
    k.mark(5)
    a("s_cmp_ge_u32 s43, 24\ns_cbranch_scc1 L_prep_o")
    def mainloop(tr):
        n = 12 if tr else 8
        def reads(ch, t):
            so = (ch & 3) * 16384; s = 16 * (ch & 1)
            a("ds_read_b128 %s, v%d offset:%d" % (R(BX + s + 4 * t, 4), 10 + t, so))
            if tr:
                a("ds_read_b64_tr_b16 %s, v14 offset:%d" % (R(BW + s + 4 * t, 2), so + 8192 + t * 2048))
                a("ds_read_b64_tr_b16 %s, v14 offset:%d" % (R(BW + s + 4 * t + 2, 2), so + 8192 + t * 2048 + 512))
            else:
                a("ds_read_b128 %s, v%d offset:%d" % (R(BW + s + 4 * t, 4), 10 + t, so + 8192))
        def mf(ch, t, half):
            s = 16 * (ch & 1)
            z = ch == 0 and t == 0
            T = R(TF + 16 * ch + 4 * t, 4)
            W = R(BW + s + 4 * t, 4)
            if half == 0: a("v_mfma_f32_32x32x16_bf16 %s, %s, %s, %s" % (R(ACC, 16), T, R(BX + s + 4 * t, 4), "0" if z else R(ACC, 16)))
            else: a("v_mfma_f32_32x32x16_bf16 %s, %s, %s, %s" % (R(ACW, 16), T if tr else W, W if tr else T, "0" if z else R(ACW, 16)))
        for ch in range(8):
            if ch == 4:
                for v in range(10, 15): a("v_add_u32 v%d, 0x10000, v%d" % (v, v))
            a("s_waitcnt lgkmcnt(0)")
            if ch: mf(ch - 1, 0, 0); mf(ch - 1, 0, 1)
            a("s_barrier")
            if ch == 0: k.mark(1)
            if ch == 4: k.mark(2)
            for i in range(6):
                if i < 4: reads(ch, i)
                if ch: mf(ch - 1, 1 + i // 2, i & 1)
        k.mark(3)
        for t in range(4):
            a("s_waitcnt lgkmcnt(%d)" % ((n // 4) * (3 - t)))
            mf(7, t, 0); mf(7, t, 1)
    AC_ = ACW
    mainloop(True)
    a("""
    s_lshr_b32 s47, s46, 4          ; part
    s_and_b32 s41, s46, 15
    s_mul_i32 s41, s41, 98304
    s_add_u32 s41, s41, 0x%x
    s_cmp_eq_u32 s47, 0
    s_mov_b32 s50, 0x3d800000
    s_cselect_b32 s50, 0x%x, s50
    s_lshl_b32 s40, s44, 11
    s_lshl_b32 s48, s47, 8
    s_add_u32 s40, s40, s48         ; Q/K: ct*2048 + part*256
    s_lshl_b32 s48, s44, 10
    s_add_u32 s48, s48, 32768       ; V: 32768 + ct*1024
    s_cmp_eq_u32 s47, 2
    s_cselect_b32 s40, s48, s40
    s_cselect_b32 s48, 9, 10
    s_cselect_b32 s47, 8, 9
    s_add_u32 s40, s40, s41
    s_lshl_b32 s48, 1, s48
    s_add_u32 s41, s40, s48
    v_and_b32 v7, 15, v1
    v_lshlrev_b32 v9, 4, v7
    v_lshlrev_b32 v7, s47, v3
    v_add_u32 v9, v9, v7
    s_mov_b32 s48, 49152
    v_mad_u32_u24 v9, v6, s48, v9
    v_add_u32 v4, s44, v3
    v_cmp_eq_u32 vcc, 0, v4
    v_cndmask_b32 v%d, v%d, v4, vcc
    """ % (OFF["WP"], fbits(0.25 * LOG2E / 16), AC_ + 1, AC_ + 1))
    a("L_prep_out:")
    for r in range(16): a("v_mul_f32 v%d, 0x3d800000, v%d" % (ACC + r, ACC + r))
    for p in range(8): a("v_cvt_pk_bf16_f32 v%d, v%d, v%d" % (48 + p, ACC + 2 * p, ACC + 2 * p + 1))
    for p in range(8): a("buffer_store_dword v%d, v5, s[8:11], s%d offen" % (48 + p, 64 + p))
    for r in range(16): a("v_mul_f32 v%d, s50, v%d" % (AC_ + r, AC_ + r))
    for r in range(8): a("v_cvt_pk_bf16_f32 v%d, v%d, v%d" % (56 + r, AC_ + 2 * r, AC_ + 2 * r + 1))
    a("buffer_store_dwordx4 v[56:59], v9, s[8:11], s40 offen\nbuffer_store_dwordx4 v[60:63], v9, s[8:11], s41 offen")
    a("s_endpgm")
    a("L_prep_o:")
    mainloop(False)
    a("s_sub_u32 s46, s46, 48\ns_lshl_b32 s40, s44, 15\ns_lshl_b32 s41, s46, 11\ns_add_u32 s40, s40, s41\ns_add_u32 s40, s40, 0x%x\ns_add_u32 s41, s40, 1024" % OFF["WOP"])
    a("s_mov_b32 s50, 0x3d800000\ns_nop 7\ns_branch L_prep_out")
    a("L_prep_help:")
    a("s_cmp_ge_u32 s3, 6\ns_cbranch_scc1 L_prep_h67")
    a("""
    v_lshrrev_b32 v4, 3, v1
    v_lshrrev_b32 v7, 4, v1
    v_xor_b32 v7, v7, v1
    v_and_b32 v7, 7, v7
    v_lshlrev_b32 v7, 4, v7
    v_lshl_add_u32 v12, v4, 10, v7
    v_xor_b32 v13, 64, v12
    v_add_u32 v13, 8192, v13
    s_movk_i32 s54, 128
    s_mov_b32 s52, 0
    s_cmp_eq_u32 s3, 5
    s_cbranch_scc1 L_prep_w
    s_and_b32 s40, s43, 7
    s_lshl_b32 s40, s40, 16
    s_lshr_b32 s41, s43, 3
    s_lshl_b32 s41, s41, 14
    s_add_u32 s50, s40, s41
    s_mov_b32 s55, 0x80000
    s_mov_b32 s59, 0x100000
    s_mov_b32 s22, 0x%x
    s_waitcnt lgkmcnt(0)
    s_mov_b64 s[20:21], s[72:73]
    s_branch L_prep_go
L_prep_w:
    s_movk_i32 s52, 8192
    s_cmp_lt_u32 s43, 24
    s_cbranch_scc1 L_prep_q
    s_sub_u32 s50, s43, 24
    s_lshl_b32 s50, s50, 16
    s_movk_i32 s55, 16384
    s_mov_b32 s59, 32768
    s_mov_b32 s22, 0x%x
    s_waitcnt lgkmcnt(0)
    s_mov_b64 s[20:21], s[14:15]
    s_branch L_prep_go
L_prep_q:
    s_movk_i32 s40, 3072
    v_mul_lo_u32 v12, v4, s40
    v_lshrrev_b32 v7, 2, v1
    v_and_b32 v7, 4, v7
    v_xor_b32 v7, v7, v1
    v_and_b32 v7, 7, v7
    v_lshl_add_u32 v12, v7, 4, v12
    v_add_u32 v13, %d, v12
    s_lshl_b32 s50, s43, 7
    s_mov_b32 s54, %d
    s_mov_b32 s55, %d
    s_mov_b32 s59, %d
    s_mov_b32 s22, 0x%x
    s_waitcnt lgkmcnt(0)
    s_mov_b64 s[20:21], s[12:13]
L_prep_go:
    s_setprio 3
    """ % (SIZE["x"], SIZE["wo"], 8 * 3072, 64 * 3072, 16 * 3072, 32 * 3072, SIZE["wqkv"]))
    k.mark(0)
    LP = OPT.get("lpre", 4)
    lm = []
    def issue(ch):
        a("s_add_u32 s53, s51, %d\ns_and_b32 s53, s53, 7\ns_mul_i32 s53, s53, s54\ns_add_u32 s60, s53, s50" % ch)
        a("s_add_u32 s61, s60, s55\ns_add_u32 s62, s60, s59\ns_add_u32 s63, s61, s59")
        for i in range(8):
            a("s_add_u32 m0, s52, %d" % (ch * 16384 + i * 1024))
            a("buffer_load_dwordx4 v%d, s[20:23], s%d offen %slds" % (12 + (i & 1), 60 + (i >> 1), NT if ch < OPT.get("ntch", 1) else ""))
        lm.append(a.vm - 1)
    L0 = OPT.get("l0", 2)
    for ch in range(L0): issue(ch)
    k.mark(1)
    for ch in range(8):
        a.wait_vm(lm[ch])
        if ch == 0: k.mark(2)
        if ch == 0 and len(lm) < 2: issue(1)
        a("s_barrier")
        while len(lm) < min(8, ch + 1 + LP): issue(len(lm))
    a("s_endpgm")
    a("L_prep_h67:")
    if OPT.get("nohelp"): a("s_endpgm")
    a("s_cmp_eq_u32 s3, 7\ns_cbranch_scc1 L_prep_stat")
    a("""
    s_lshl_b32 s44, s40, 5
    s_add_u32 s44, s44, s41
    s_and_b32 s47, s44, 1
    s_lshr_b32 s44, s44, 1
    s_mul_i32 s45, s44, 8224
    s_add_u32 s46, s45, 4096
    s_add_u32 s48, s45, 8192
    s_mov_b32 s18, 0x%x
    s_mov_b32 s19, 0x00020000
    s_mov_b32 s22, 0x%x
    s_waitcnt lgkmcnt(0)
    s_mov_b64 s[16:17], s[74:75]
    s_mov_b64 s[20:21], s[76:77]
    """ % (SIZE["wr"], SIZE["wi"]))
    for arr in range(2):
        srd = "s[16:19]" if arr == 0 else "s[20:23]"
        for hf in range(2):
            a("s_mov_b32 m0, %d" % (HL + AS * arr + 4096 * hf))
            for i in range(4): a("buffer_load_dwordx4 v9, %s, s%d offen offset:%d %slds" % (srd, 45 + hf, 1024 * i, NTW))
        a("s_mov_b32 m0, %d\ns_mov_b64 exec, 3" % (HL + AS * arr + 8192))
        a("buffer_load_dwordx4 v9, %s, s48 offen lds" % srd)
        a("s_mov_b64 exec, -1")
    a("""
    s_mov_b32 s49, %d
    v_lshrrev_b32 v4, 2, v1
    s_lshl_b32 s47, s47, 7
    v_add_u32 v4, s47, v4           ; slot k of group 0
    v_and_b32 v8, 3, v1
    s_movk_i32 s48, 2056
    v_mul_lo_u32 v10, v8, s48
    v_lshlrev_b32 v5, 1, v4
    v_mov_b32 v6, 512
    v_cmp_eq_u32 vcc, 0, v4
    v_cndmask_b32 v6, v5, v6, vcc
    v_add3_u32 v5, v5, v10, s49
    v_add3_u32 v6, v6, v10, s49
    v_lshlrev_b32 v7, 13, v4
    v_lshl_add_u32 v7, v8, 4, v7
    s_lshl_b32 s44, s44, 6
    s_add_u32 s44, s44, 0x%x
    s_setprio 3
    """ % (HL, OFF["WT"]))
    k.mark(1)
    HW = OPT.get("hw", 3)
    for _ in range(HW): a("s_barrier")
    a("s_waitcnt vmcnt(0)")
    k.mark(2)
    nb = HW
    for g in range(8):
        if g and g % 2 == 0 and nb < 8:
            a("s_barrier"); nb += 1
        for o in range(4):
            a("ds_read_u16 v%d, v%d offset:%d" % (64 + o, 6 if g == 0 else 5, g * 32 + o * 514))
            a("ds_read_u16 v%d, v%d offset:%d" % (72 + o, 6 if g == 0 else 5, AS + g * 32 + o * 514))
        a("s_waitcnt lgkmcnt(0)")
        b = 80 + 4 * (g & 3)
        for o in range(4): a("v_lshl_or_b32 v%d, v%d, 16, v%d" % (b + o, 72 + o, 64 + o))
        a("buffer_store_dwordx4 %s, v7, s[8:11], s44 offen" % R(b, 4))
        if g < 7: a("s_add_u32 s44, s44, 0x20000")
    a("s_cmp_lt_u32 s43, 24\ns_cbranch_scc1 L_prep_w6e")
    if nb < 8:
        a("s_barrier");
    a("""
    v_bfe_u32 v4, v1, 2, 2          ; r
    v_lshl_add_u32 v5, v3, 2, v4    ; 4h + r
    v_lshlrev_b32 v5, 7, v5
    v_lshrrev_b32 v4, 1, v4
    v_lshl_add_u32 v4, v3, 1, v4    ; 2h + (r>>1)
    v_and_b32 v6, 1, v1
    v_bfe_u32 v7, v1, 4, 1
    v_lshl_add_u32 v6, v6, 1, v7    ; 2(cq&1) + (G&1)
    v_xor_b32 v4, v4, v6
    v_lshl_add_u32 v5, v4, 4, v5
    v_bfe_u32 v4, v1, 1, 1
    v_lshl_add_u32 v5, v4, 3, v5
    s_and_b32 s44, s51, 7
    s_lshl_b32 s44, s44, 16
    s_sub_u32 s45, s43, 24
    s_lshl_b32 s45, s45, 12
    s_add_u32 s44, s44, s45
    s_add_u32 s44, s44, 0x%x
    s_add_u32 s45, s44, 32768
    """ % OFF["WOF"])
    for dl in range(2):
        for hl in range(4):
            for x2 in range(2):
                a("ds_read_b64_tr_b16 %s, v5 offset:%d" % (R(96 + 16 * dl + 4 * hl + 2 * x2, 2), 8192 + (16 * hl + 8 * x2) * 128 + (dl ^ x2) * 64))
        a("s_waitcnt lgkmcnt(0)")
        for hl in range(4):
            a("buffer_store_dwordx4 %s, v9, s[8:11], s%d offen offset:%d" % (R(96 + 16 * dl + 4 * hl, 4), 44 + dl, 1024 * hl))
    if G.STAMP:
        for _ in range(8 - nb - 1): a("s_barrier")
    a("s_endpgm")
    a("L_prep_w6e:")
    if G.STAMP:
        for _ in range(8 - nb): a("s_barrier")
    a("s_endpgm")
    a("L_prep_stat:")
    srd_tab(a, 16)
    a("s_mul_i32 s46, s41, 1280\ns_add_u32 s46, s46, %d\nv_lshlrev_b32 v25, 5, v1\nbuffer_load_dword v26, v25, s[16:19], s46 offen" % TOFF["M1"])
    a("""
    s_lshl_b32 s40, s42, 10
    v_add_u32 v7, s40, v9
    v_mov_b32 v20, 0
    v_lshlrev_b32 v21, 2, v1
    v_lshrrev_b32 v6, 3, v1
    v_lshlrev_b32 v6, 2, v6
    s_lshl_b32 s44, s43, 8
    s_lshl_b32 s45, s42, 5
    s_add_u32 s44, s44, s45
    s_add_u32 s43, s44, 0x%x
    s_add_u32 s44, s44, 0x%x
    s_lshl_b32 s45, s2, 7
    s_add_u32 s45, s45, 0x%x
    s_lshl_b32 s47, s2, 9
    s_add_u32 s47, s47, PSQOFF
    v_mov_b32 v22, -1
    v_mov_b32 v23, -1
    v_lshlrev_b32 v24, 3, v1
    v_mov_b32 v10, 0
    v_mov_b32 v11, 0
    s_waitcnt lgkmcnt(0)
    buffer_store_dword v20, v6, s[8:11], s44 offen
    s_mov_b32 exec_hi, 0
    buffer_store_dword v20, v21, s[8:11], s45 offen
    s_mov_b32 exec_hi, -1
    buffer_store_dwordx2 v[22:23], v24, s[8:11], s47 offen
    v_mov_b32 v28, -1
    v_mov_b32 v29, -1
    v_mov_b32 v30, -1
    v_mov_b32 v31, -1
    s_lshl_b32 s47, s2, 13
    s_add_u32 s47, s47, OFOFF
    s_add_u32 s48, s47, 4096
    s_mov_b32 s46, 0
    s_setprio 2
L_prep_sl:
    s_barrier
    ds_read_b128 v[64:67], v7
    buffer_store_dwordx4 v[28:31], v9, s[8:11], s47 offen SFL
    s_add_u32 s47, s47, 1024
    v_add_u32 v7, 16384, v7
    s_add_u32 s46, s46, 1
    s_waitcnt lgkmcnt(0)
    """.replace("PSQOFF", "0x%x" % OFF["PSQ"]).replace("SFL", "" if OPT.get("sfp") else "sc1").replace("OFOFF", "0x%x" % OFF["OF"]).replace("SENT", "\n".join("    buffer_store_dwordx4 v[28:31], v9, s[8:11], s%d offen offset:%d sc1" % (47 + (i >> 2), 1024 * (i & 3)) for i in range(8))) % (OFF["SSQ0"], OFF["SSQ2"], OFF["FLK"]))
    for r in range(4):
        a("v_and_b32 v4, 0xffff0000, v%d\nv_lshlrev_b32 v5, 16, v%d" % (64 + r, 64 + r))
        a("v_fmac_f32 v10, v4, v4\nv_add_f32 v11, v11, v4\nv_fmac_f32 v10, v5, v5\nv_add_f32 v11, v11, v5")
    a("s_cmp_lt_u32 s46, 8\ns_cbranch_scc1 L_prep_sl")
    for m in ("quad_perm:[1,0,3,2]", "quad_perm:[2,3,0,1]", "row_half_mirror"):
        a("v_add_f32_dpp v10, v10, v10 %s row_mask:0xf bank_mask:0xf" % m)
        a("v_add_f32_dpp v11, v11, v11 %s row_mask:0xf bank_mask:0xf" % m)
    a("v_mul_f32 v12, 0x%x, v11" % fbits(-1.0 / 512))
    a("v_fma_f32 v13, v12, v11, v10")
    a("buffer_store_dword v13, v6, s[8:11], s43 offen")
    a("L_prep_end:")
    a("s_endpgm")
    return k, 256, 512, HL + 18432
```

```python
import sys, math
import numpy as np
from asmlib import Asm
from layouts3 import *

NAME = "interleave_layers__spectral_gfnet__softmax_full_mha__prompt"
KA = dict(x=0, wr=8, wi=16, wqkv=32, wo=40, out=48, dbg=56, ws=64)
SIZE = dict(x=2097152, wr=1052672, wi=1052672, wqkv=1572864, wo=524288, out=2097152, ws=WS_USED)
TOFF = dict(T1=0, T2=0x80000, M1=0x100000, M2=0x102000)
TSIZE = 0x10A000
LOG2E = 1.4426950408889634
STAMP = False
OPT = {}
def fbits(x): return int(np.float32(x).view(np.uint32))
def R(b, n): return "v[%d:%d]" % (b, b + n - 1)

class K:
    def __init__(self, name, vgpr, sgpr=96):
        self.name = name; self.vgpr = vgpr; self.sgpr = sgpr
        self.a = Asm()
        self.a.raw(".text\n.globl %s\n.p2align 8\n.type %s,@function" % (name, name))
        self.a(name + ":")
        self.nm = 0
        if STAMP:
            self.a.raw("    s_memrealtime s[84:85]\n    s_memtime s[86:87]\n    v_lshrrev_b32 v4, 6, v0\n    s_nop 1\n    v_readfirstlane_b32 s94, v4\n    s_mov_b32 s95, 0")
            self.a.raw("    s_waitcnt lgkmcnt(0)\n" + "\n".join("    s_mov_b32 s%d, s86" % (24 + 2 * i) for i in range(8)))
    def mark(self, i=None):
        if STAMP:
            if i is None: i = self.nm
            self.nm = i + 1
            assert i < 7
            self.a.raw("    s_memtime s[%d:%d]" % (24 + 2 * i, 25 + 2 * i))
    def text(self):
        t = self.a.text()
        if STAMP and "s_endpgm" in t:
            t = t.replace("    s_endpgm", "    s_branch %s_stamp" % self.name)
            t += """%s_stamp:
    s_memtime s[38:39]
    s_waitcnt vmcnt(0) lgkmcnt(0)
    s_memrealtime s[88:89]
    s_memtime s[90:91]
    s_load_dwordx2 s[80:81], s[0:1], 64
    s_load_dwordx2 s[92:93], s[0:1], 56
    s_mov_b32 s82, 0x4000000
    s_mov_b32 s83, 0x00020000
    s_waitcnt lgkmcnt(0)
    s_lshr_b32 s92, s92, 9
    s_and_b32 s92, s92, 63
    s_lshl_b32 s92, s92, 20
    s_lshl_b32 s93, s2, 10
    s_add_u32 s92, s92, s93
    s_lshl_b32 s93, s94, 6
    s_add_u32 s92, s92, s93
    s_add_u32 s92, s92, 0x2000000
    s_sub_u32 s90, s90, s86
    s_mov_b64 exec, 1
    v_mov_b32 v0, 0
    v_mov_b32 v4, s84
    v_mov_b32 v5, s88
    v_mov_b32 v6, s90
    v_mov_b32 v7, s95
    buffer_store_dwordx4 v[4:7], v0, s[80:83], s92 offen
""" % self.name
            for i in range(8): t += "    s_sub_u32 s%d, s%d, s86\n    v_mov_b32 v%d, s%d\n" % (24 + 2 * i, 24 + 2 * i, 8 + i, 24 + 2 * i)
            t += "    buffer_store_dwordx4 v[8:11], v0, s[80:83], s92 offen offset:16\n    buffer_store_dwordx4 v[12:15], v0, s[80:83], s92 offen offset:32\n    s_endpgm\n"
        return t
    def desc(self):
        return """.section .rodata,"a"
.p2align 6
.amdhsa_kernel %s
  .amdhsa_next_free_vgpr %d
  .amdhsa_next_free_sgpr %d
  .amdhsa_accum_offset %d
  .amdhsa_group_segment_fixed_size 0
  .amdhsa_kernarg_size 72
  .amdhsa_user_sgpr_count 2
  .amdhsa_user_sgpr_kernarg_segment_ptr 1
  .amdhsa_system_sgpr_workgroup_id_x 1
.end_amdhsa_kernel
""" % (self.name, self.vgpr, self.sgpr, (self.vgpr + 3) // 4 * 4)

def srd_load(a, s, what):
    a("s_load_dwordx2 s[%d:%d], s[0:1], %d" % (s, s + 1, KA[what]))
    a("s_mov_b32 s%d, 0x%x" % (s + 2, SIZE[what]))
    a("s_mov_b32 s%d, 0x00020000" % (s + 3))
def srd_tab(a, s):
    a("s_getpc_b64 s[%d:%d]" % (s, s + 1))
    a.raw("    s_add_u32 s%d, s%d, tables@rel32@lo+4" % (s, s))
    a.raw("    s_addc_u32 s%d, s%d, tables@rel32@hi+12" % (s + 1, s + 1))
    a("s_mov_b32 s%d, 0x%x" % (s + 2, TSIZE))
    a("s_mov_b32 s%d, 0x00020000" % (s + 3))
def lane_setup(a):
    a("""
    v_lshrrev_b32 v4, 6, v0
    v_and_b32 v1, 63, v0
    v_readfirstlane_b32 s3, v4
    v_and_b32 v2, 31, v0
    v_lshrrev_b32 v3, 5, v1
    v_lshlrev_b32 v9, 4, v1
    """)

ACC = 16
def g64_ids(a):
    a("""
    s_and_b32 s40, s2, 7
    s_lshr_b32 s41, s2, 3
    s_and_b32 s42, s40, 1
    s_lshl_b32 s42, s42, 2
    s_and_b32 s47, s41, 3
    s_add_u32 s42, s42, s47         ; cb
    s_lshr_b32 s43, s40, 1
    s_lshl_b32 s43, s43, 3
    s_lshr_b32 s48, s41, 2
    s_add_u32 s43, s43, s48         ; rb
    s_lshl_b32 s47, s47, 1
    s_add_u32 s51, s47, s48         ; rot (mod 8 applied later)
    s_lshr_b32 s40, s3, 1
    s_and_b32 s41, s3, 1
    s_lshl_b32 s44, s42, 1
    s_add_u32 s44, s44, s40
    s_lshl_b32 s46, s43, 1
    s_add_u32 s46, s46, s41
    s_lshl_b32 s52, s3, 15
    s_lshl_b32 s40, s40, 15
    v_add_u32 v10, s40, v9
    s_lshl_b32 s40, s41, 15
    s_add_u32 s49, s40, 0x10000
    s_cmp_lt_u32 s3, 2
    s_cselect_b32 s45, s42, s43
    s_lshl_b32 s45, s45, 1
    s_add_u32 s45, s45, s41
    s_cmp_lt_u32 s3, 2
    """)
def g64_issue(a, ch, general, base="s50"):
    a("s_add_u32 s53, s51, %d\ns_and_b32 s53, s53, 7" % ch)
    if general:
        a("s_lshl_b32 s53, s53, s54\ns_add_u32 s53, s53, %s\ns_add_u32 s56, s53, s55" % base)
        for i in range(4):
            a("s_add_u32 m0, s52, %d" % (ch * 4096 + i * 1024))
            a("buffer_load_dwordx4 v%d, s[20:23], s%d offen lds" % (12 + (i >> 1), 53 if i % 2 == 0 else 56))
    else:
        a("s_lshl_b32 s53, s53, 12\ns_add_u32 m0, s52, %d\ns_add_u32 s53, s53, %s" % (ch * 4096, base))
        for i in range(4):
            a("buffer_load_dwordx4 v9, s[20:23], s53 offen offset:%d lds" % (i * 1024))
def g64_compute(a, ch, rowB, first, hook=None):
    for t in range(4):
        a("ds_read_b128 %s, v10 offset:%d" % (R(32 + 8 * t, 4), ch * 4096 + t * 1024))
        if rowB: a("ds_read_b128 %s, v%d offset:%d" % (R(36 + 8 * t, 4), 14 + (t & 1), ch * 4096 + (t >> 1) * 1024))
        else:    a("ds_read_b128 %s, v11 offset:%d" % (R(36 + 8 * t, 4), ch * 4096 + t * 1024))
    for t in range(4):
        a("s_waitcnt lgkmcnt(%d)" % (6 - 2 * t))
        a("v_mfma_f32_32x32x16_bf16 %s, %s, %s, %s" % (R(ACC, 16), R(32 + 8 * t, 4), R(36 + 8 * t, 4), "0" if (first and t == 0) else R(ACC, 16)))
        if hook: hook(36 + 8 * t)
PRE = 4
def g64_run(k, general, rowB, marks, hook=None, first=True):
    a = k.a
    for ch in range(8):
        a.wait_vm(marks[ch]); a("s_barrier")
        if ch == 0: k.mark()
        if ch + PRE < 8:
            g64_issue(a, ch + PRE, general); marks.append(a.vm - 1)
        g64_compute(a, ch, rowB, first and ch == 0, hook)
    k.mark()

def uc_store(a):
    for p in range(8): a("v_cvt_pk_bf16_f32 v%d, v%d, v%d" % (32 + p, ACC + 2 * p, ACC + 2 * p + 1))
    for p in range(8): a("buffer_store_dword v%d, v5, s[8:11], s%d offen" % (32 + p, 64 + p))
def uc_addr(a):
    a("s_lshl_b32 s40, s44, 17\ns_lshl_b32 s41, s46, 7\ns_add_u32 s40, s40, s41\ns_add_u32 s64, s40, 0x%x" % OFF["UC"])
    for p in range(1, 8): a("s_add_u32 s%d, s64, %d" % (64 + p, (8 * (p >> 2) + (p & 3)) * 8192))
    a("v_lshlrev_b32 v5, 15, v3\nv_lshl_add_u32 v5, v2, 2, v5")
def ssq_addr(a, dst):
    a("s_lshl_b32 %s, s46, 7\nv_lshlrev_b32 v6, 2, v2" % dst)

def rowmajor_addrs(a, rowstride_shift, rh_stride, bbase):
    a("""
    v_lshrrev_b32 v4, 2, v1
    v_lshrrev_b32 v7, 4, v1
    v_xor_b32 v7, v7, v1
    v_and_b32 v7, 3, v7
    v_lshlrev_b32 v7, 4, v7
    v_lshl_add_u32 v12, v4, %d, v7
    v_add_u32 v13, 0x%x, v12
    v_bfe_u32 v4, v1, 2, 2
    v_xor_b32 v4, v4, v3            ; h ^ x
    v_and_b32 v7, 15, v1
    v_lshlrev_b32 v7, 6, v7
    v_bfe_u32 v8, v1, 4, 1
    v_lshl_add_u32 v7, v8, 11, v7
    v_add_u32 v7, %s, v7
    v_lshl_add_u32 v14, v4, 4, v7
    v_xor_b32 v15, 32, v14
    """ % (rowstride_shift, rh_stride, bbase))

def k_oproj():
    k = K("oproj_kernel", 80); a = k.a
    a("s_cmp_ge_u32 s2, 256\ns_cbranch_scc1 L_op_end")
    srd_load(a, 8, "ws"); srd_load(a, 20, "ws")
    lane_setup(a)
    g64_ids(a)
    a("""
    s_cselect_b32 s50, 0x%x, 0x%x
    s_lshl_b32 s40, s45, 15
    s_add_u32 s50, s50, s40
    v_add_u32 v11, s49, v9
    s_lshl_b32 s40, s46, 15
    s_lshl_b32 s41, s44, 11
    s_add_u32 s40, s40, s41
    s_add_u32 s57, s40, 0x%x
    s_waitcnt lgkmcnt(0)
    """ % (0, OFF["OF"] - OFF["WOP"], OFF["UB"]))
    a("s_add_u32 s50, s50, 0x%x" % OFF["WOP"])
    k.mark()
    marks = []
    for ch in range(PRE):
        g64_issue(a, ch, False); marks.append(a.vm - 1)
        if ch == 1:
            a("buffer_load_dwordx4 v[64:67], v9, s[8:11], s57 offen\nbuffer_load_dwordx4 v[68:71], v9, s[8:11], s57 offen offset:1024")
    k.mark()
    uc_addr(a); ssq_addr(a, "s57")
    g64_run(k, False, False, marks)
    for p in range(8):
        a("v_lshlrev_b32 v32, 16, v%d\nv_and_b32 v33, 0xffff0000, v%d" % (64 + p, 64 + p))
        a("v_pk_add_f32 %s, %s, v[32:33]" % (R(ACC + 2 * p, 2), R(ACC + 2 * p, 2)))
    uc_store(a)
    a("v_add_u32 v4, s44, v3\nv_cmp_eq_u32 vcc, 0, v4\nv_cndmask_b32 v7, v%d, v4, vcc" % (ACC + 1))
    a("v_mul_f32 v7, v7, v7\nv_mul_f32 v8, v%d, v%d" % (ACC, ACC))
    for r in range(2, 16): a("v_fmac_f32 v%d, v%d, v%d" % (7 + (r & 1), ACC + r, ACC + r))
    a("""
    v_add_f32 v7, v7, v8
    v_mov_b32 v8, v7
    v_permlane32_swap_b32 v7, v8
    v_add_f32 v7, v7, v8
    s_add_u32 s41, s57, 0x%x
    s_mov_b32 exec_hi, 0
    buffer_atomic_add_f32 v7, v6, s[8:11], s41 offen
    """ % OFF["SSQ2"])
    a("L_op_end:")
    a("s_endpgm")
    return k, 256, 256, 131072

def k_final():
    k = K("final_kernel", 80); a = k.a
    a("s_cmp_ge_u32 s2, 256\ns_cbranch_scc1 L_fin_end")
    srd_load(a, 8, "ws"); srd_load(a, 12, "out"); srd_tab(a, 16)
    lane_setup(a)
    g64_ids(a)
    a("""
    s_cselect_b32 s50, 0x%x, 0
    s_cselect_b32 s58, 0, 0x%x
    s_add_u32 s50, s50, s58
    s_lshl_b32 s40, s45, 15
    s_add_u32 s50, s50, s40
    s_cmp_lt_u32 s3, 2
    s_cselect_b32 s58, 0, 0x%x
    s_add_u32 s58, s58, s40
    s_add_u32 s58, s58, 0x%x
    v_add_u32 v11, s49, v9
    s_cmp_lt_u32 s3, 2
    s_waitcnt lgkmcnt(0)
    s_cselect_b64 s[20:21], s[16:17], s[8:9]
    s_cselect_b32 s22, s18, s10
    s_mov_b32 s23, 0x00020000
    """ % (TOFF["T2"], OFF["UB"], OFF["OF"] + LAYER - OFF["WOF"], OFF["WOF"]))
    k.mark()
    marks = []
    for ch in range(PRE):
        g64_issue(a, ch, False); marks.append(a.vm - 1)
    k.mark()
    a("""
    s_and_b32 s40, s46, 1
    s_lshl_b32 s40, s40, 20
    s_lshr_b32 s41, s46, 1
    s_and_b32 s41, s41, 7
    s_lshl_b32 s41, s41, 16
    s_add_u32 s40, s40, s41
    s_lshr_b32 s41, s46, 4
    s_lshl_b32 s41, s41, 14
    s_add_u32 s40, s40, s41
    s_lshl_b32 s41, s44, 6
    s_add_u32 s57, s40, s41
    v_and_b32 v5, 15, v1
    v_lshlrev_b32 v5, 10, v5
    v_bfe_u32 v4, v1, 4, 1
    v_lshl_add_u32 v5, v4, 19, v5
    v_lshl_add_u32 v5, v3, 5, v5
    """)
    for ch in range(16):
        a.wait_vm(marks[ch]); a("s_barrier")
        if ch == 0: k.mark()
        n = ch + PRE
        if n == 8: a("s_mov_b64 s[20:21], s[8:9]\ns_mov_b32 s22, s10")
        if n < 16:
            g64_issue(a, n & 7, False, "s50" if n < 8 else "s58"); marks.append(a.vm - 1)
        g64_compute(a, ch & 7, False, ch == 0)
    k.mark()
    for p in range(8): a("v_cvt_pk_bf16_f32 v%d, v%d, v%d" % (32 + p, ACC + 2 * p, ACC + 2 * p + 1))
    a("buffer_store_dwordx4 v[32:35], v5, s[12:15], s57 offen\nbuffer_store_dwordx4 v[36:39], v5, s[12:15], s57 offen offset:16")
    a("L_fin_end:")
    a("s_endpgm")
    return k, 256, 256, 131072

def wprep_roles(k):
    a = k.a
    TF = 48; AC = 24
    a("L_wp:")
    srd_load(a, 20, "wo")
    a("""
    s_sub_u32 s44, s2, 256
    s_lshl_b32 s52, s3, 13
    v_lshrrev_b32 v4, 2, v1
    v_lshlrev_b32 v12, 10, v4
    v_and_b32 v4, 3, v1
    v_lshl_add_u32 v12, v4, 4, v12
    s_lshl_b32 s46, s3, 17
    s_lshl_b32 s41, s44, 6
    s_add_u32 s46, s46, s41
    v_bfe_u32 v4, v1, 2, 2
    v_lshl_add_u32 v4, v3, 2, v4
    v_lshlrev_b32 v4, 6, v4         ; (4h + r)*64
    v_and_b32 v5, 1, v1
    v_lshl_add_u32 v4, v5, 5, v4    ; 16*(cq&1) elements
    v_bfe_u32 v5, v1, 4, 1
    v_lshl_add_u32 v4, v5, 4, v4    ; 8*(G&1)
    v_bfe_u32 v5, v1, 1, 1
    v_lshl_add_u32 v4, v5, 3, v4    ; 4*(cq>>1)
    v_add_u32 v13, s52, v4
    s_lshl_b32 s40, s44, 15
    s_add_u32 s40, s40, s52
    s_add_u32 s40, s40, 0x%x
    s_add_u32 s41, s40, 4096
    s_waitcnt lgkmcnt(0)
    """ % OFF["WOF"])
    for i in range(8):
        a("s_add_u32 m0, s52, %d" % (i * 1024))
        a("buffer_load_dwordx4 v12, s[20:23], s46 offen lds")
        if i < 7: a("s_add_u32 s46, s46, %d" % (16 * 1024))
    a("s_waitcnt vmcnt(0)")
    for i in range(8):
        a("ds_read_b64_tr_b16 %s, v13 offset:%d" % (R(48 + 4 * i, 2), i * 1024))
        a("ds_read_b64_tr_b16 %s, v13 offset:%d" % (R(50 + 4 * i, 2), i * 1024 + 512))
        if i == 3 or i == 7:
            a("s_waitcnt lgkmcnt(0)")
            for x in range(i - 3, i + 1):
                a("buffer_store_dwordx4 %s, v9, s[8:11], s%d offen offset:%d" % (R(48 + 4 * x, 4), 40 + (x >> 2), 1024 * (x & 3)))
    a("s_endpgm")

def k_col():
    k2 = K("col2_kernel", 208); a = k2.a
    a("s_mov_b32 s47, 0x%x\ns_movk_i32 s61, 256\ns_mov_b32 s62, 0\ns_branch L_col" % OFF["SSQ2"])
    k = K("col1_kernel", 208); a = k.a
    a("s_mov_b32 s47, 0x%x\ns_movk_i32 s61, 256\ns_mov_b32 s62, 1" % OFF["SSQ0"])
    a("L_col:")
    X1, X2, X3 = 0, 8704, 17408
    RAW, SQ, UO, M1, M2, TWF, TWI, WW, WU, BUF = 16, 24, 32, 48, 80, 112, 128, 144, 176, 144
    WW = 16
    WW = 184
    WU = 176
    a("s_cmp_ge_u32 s2, s61\ns_cbranch_scc1 L_col_end")
    srd_load(a, 8, "ws"); srd_tab(a, 16)
    lane_setup(a)
    a("s_mov_b32 s48, %d\ns_mov_b32 s49, %d" % (TOFF["M1"], TOFF["M1"] + 4096))
    a("s_lshl_b32 s50, s3, 13\ns_add_u32 s50, s50, %d\ns_add_u32 s51, s50, 4096" % TOFF["M2"])
    for f in range(8): a("buffer_load_dwordx4 %s, v9, s[16:19], s%d offen offset:%d" % (R(M1 + 4 * f, 4), 48 + (f >> 2), 1024 * (f & 3)))
    def m2(lo, hi):
        for f in range(lo, hi): a("buffer_load_dwordx4 %s, v9, s[16:19], s%d offen offset:%d" % (R(M2 + 4 * f, 4), 50 + (f >> 2), 1024 * (f & 3)))
    a("""
    s_and_b32 s42, s2, 7
    s_lshr_b32 s43, s2, 3
    s_lshl_b32 s42, s42, 5
    s_add_u32 s42, s42, s43         ; slot k
    v_and_b32 v5, 15, v1            ; b_l
    v_lshrrev_b32 v6, 4, v1         ; q
    v_lshlrev_b32 v7, 2, v1
    s_lshl_b32 s44, s3, 11          ; w*2048
    s_lshl_b32 s45, s42, 13
    s_add_u32 s45, s45, s44         ; k*8192 + w*2048
    s_add_u32 s54, s45, 0x%x
    s_add_u32 s45, s45, 0x%x
    s_add_u32 s47, s47, s44
    v_lshlrev_b32 v15, 8, v3
    v_lshl_add_u32 v15, v2, 2, v15
    ; forward twiddles: b = 16w+b_l, j1 = 8q+v
    s_lshl_b32 s56, s3, 4
    v_add_u32 v10, s56, v5
    v_cvt_f32_u32 v10, v10
    v_mul_f32 v10, 0x3a000000, v10      ; b/2048
    v_lshlrev_b32 v11, 3, v6
    v_cvt_f32_u32 v11, v11
    v_mul_f32 v11, v10, v11
    """ % (OFF["WT"], OFF["UC"]))
    M2A = 0
    for i in range(8):
        if i == OPT.get("twa", 4):
            a("s_waitcnt lgkmcnt(0)")
            k.mark()
            for v in range(8): a("buffer_load_dword v%d, v7, s[8:11], s47 offen offset:%d" % (SQ + v, 256 * v))
            for v in range(8): a("buffer_load_dword v%d, v7, s[8:11], s45 offen offset:%d" % (RAW + v, 256 * v))
            m_in = a.vm - 1
            k.mark()
        a("v_fmamk_f32 v12, v10, 0x%x, v11" % fbits(i))
        a("v_cos_f32 v%d, v12\nv_sin_f32 v%d, v12" % (TWF + 2 * i, TWF + 2 * i + 1))
    a("""
    v_cvt_f32_u32 v10, v2
    v_mul_f32 v10, 0x3a000000, v10
    v_lshlrev_b32 v11, 1, v3
    v_add_u32 v11, s56, v11
    v_cvt_f32_u32 v11, v11
    v_mul_f32 v11, v10, v11
    s_mov_b32 s58, 0x3a000000
    s_mov_b32 s59, 0x3a000000
    """)
    for g in range(4):
        for e in range(2):
            i = 2 * g + e
            a("v_fmamk_f32 v12, v10, 0x%x, v11" % fbits(4 * g + e))
            a("v_cos_f32 v%d, v12\nv_sin_f32 v%d, v12" % (TWI + 2 * i, TWI + 2 * i + 1))
    for i in range(8): a("v_pk_mul_f32 %s, %s, s[58:59]" % (R(TWI + 2 * i, 2), R(TWI + 2 * i, 2)))
    a("""
    s_movk_i32 s57, 2176
    v_mul_lo_u32 v10, v6, s57           ; 8q*272
    v_lshl_add_u32 v10, v5, 2, v10
    s_lshl_b32 s58, s3, 6
    v_add_u32 v10, s58, v10             ; X1 write
    s_movk_i32 s57, 272
    v_mul_lo_u32 v11, v2, s57
    v_lshl_add_u32 v12, v3, 3, v11
    v_add_u32 v12, s58, v12             ; X2 write
    v_lshl_add_u32 v11, v3, 4, v11      ; X1/X2 read
    s_mul_i32 s58, s3, 2304
    s_movk_i32 s57, 288
    v_mul_lo_u32 v13, v3, s57
    v_lshl_add_u32 v13, v2, 2, v13
    v_add_u32 v13, s58, v13             ; X3 write
    s_movk_i32 s57, 144
    v_mul_lo_u32 v14, v5, s57
    v_add_u32 v14, s58, v14
    v_lshl_add_u32 v14, v6, 5, v14      ; X3 read: (16w+b_l)*144 + q*32
    s_lshr_b32 s40, s42, 2
    s_lshl_b32 s40, s40, 9
    s_and_b32 s41, s42, 3
    s_lshl_b32 s41, s41, 2
    s_add_u32 s40, s40, s41
    s_lshl_b32 s41, s3, 19
    s_add_u32 s40, s40, s41
    s_add_u32 s40, s40, 0x%x
    v_lshlrev_b32 v8, 15, v3
    v_lshl_add_u32 v8, v2, 4, v8        ; UB: (lane>>5)*32768 + m*16
    s_mov_b32 s60, 0x%x
    v_mov_b32 v4, 0x%x
    """ % (OFF["UB"], fbits(1.0 / 512), fbits(1e-5)))
    a("""
    s_and_b32 s63, s2, 1
    s_lshl_b32 s63, s63, 5
    s_add_u32 s63, s63, s43
    s_lshl_b32 s63, s63, 2
    s_add_u32 s63, s63, s3
    s_mul_i32 s63, s63, 6144
    s_add_u32 s63, s63, 0x%x
    s_add_u32 s64, s63, 4096
    v_lshlrev_b32 v180, 6, v1
    """ % OFF["WP"])
    def side():
        a("buffer_load_dword v181, v180, s[8:11], s63 offen")
        a("s_mov_b32 exec_hi, 0\nbuffer_load_dword v182, v180, s[8:11], s64 offen\ns_mov_b32 exec_hi, -1")
    def late():
        m2(M2A, 8)
        for i in range(8): a("buffer_load_dword v%d, v15, s[8:11], s54 offen offset:%d" % (WW + i, 128 * (4 * (i >> 1) + (i & 1))))
        return a.vm - 1
    if OPT.get("late", 0) == 0: m_w = late()
    k.mark()
    a.wait_vm(m_in - 8)
    for i in range(8): a("v_fma_f32 v%d, v%d, s60, v4" % (SQ + i, SQ + i))
    for i in range(8): a("v_rsq_f32 v%d, v%d" % (SQ + i, SQ + i))
    a.wait_vm(m_in)
    k.mark()
    T0 = BUF
    for v in range(8):
        a("v_and_b32 v%d, 0xffff0000, v%d\nv_lshlrev_b32 v%d, 16, v%d" % (UO + 2 * v, RAW + v, UO + 2 * v + 1, RAW + v))
        s = v & 1
        a("v_pk_mul_f32 %s, %s, %s op_sel:[0,%d] op_sel_hi:[1,%d]" % (R(T0 + 2 * v, 2), R(UO + 2 * v, 2), R(SQ + v - s, 2), s, s))
    a("s_cmp_eq_u32 s42, 0\ns_cbranch_scc1 L_col_z0")
    a("L_col_n0:")
    for v in range(8): a("v_cvt_pk_bf16_f32 v%d, v%d, v%d" % (SQ + v, T0 + 2 * v + 1, T0 + 2 * v))
    for t in range(2):
        for tau in range(4):
            d = R(T0 + 4 * tau, 4)
            a("v_mfma_f32_16x16x32_bf16 %s, %s, %s, %s" % (d, R(M1 + 4 * (2 * tau + t), 4), R(SQ + 4 * t, 4), "0" if t == 0 else d))
    if OPT.get("sd", 0) == 2: side()
    T1_ = BUF + 16
    for i in range(8):
        y, tw, t = R(T0 + 2 * i, 2), R(TWF + 2 * i, 2), R(T1_ + 2 * i, 2)
        a("v_pk_mul_f32 %s, %s, %s op_sel:[0,0] op_sel_hi:[1,0]" % (t, y, tw))
        a("v_pk_fma_f32 %s, %s, %s, %s op_sel:[1,1,0] op_sel_hi:[0,1,1] neg_hi:[1,0,0]" % (t, y, tw, t))
        a("v_cvt_pk_bf16_f32 v%d, v%d, v%d" % (SQ + i, T1_ + 2 * i, T1_ + 2 * i + 1))
        a("ds_write_b32 v10, v%d offset:%d" % (SQ + i, X1 + i * 272))
    a("s_waitcnt lgkmcnt(0)\ns_barrier")
    k.mark()
    for t in range(8): a("ds_read_b128 %s, v11 offset:%d" % (R(BUF + 4 * t, 4), X1 + 32 * t))
    a.wait_vm(m_w)
    AC = TWF
    for t in range(8):
        a("s_waitcnt lgkmcnt(%d)" % (7 - t))
        a("v_mfma_f32_32x32x16_bf16 %s, %s, %s, %s" % (R(AC, 16), R(M2 + 4 * t, 4), R(BUF + 4 * t, 4), "0" if t == 0 else R(AC, 16)))
        a("v_lshlrev_b32 v%d, 16, v%d\nv_and_b32 v%d, 0xffff0000, v%d" % (192 + 2 * t, WW + t, 193 + 2 * t, WW + t))
        if t == 7 and OPT.get("sd", 0) == 0: side()
    for i in range(8):
        y, w, t = R(AC + 2 * i, 2), R(192 + 2 * i, 2), R(T1_ + 2 * i, 2)
        a("v_pk_mul_f32 %s, %s, %s op_sel:[0,0] op_sel_hi:[1,0] neg_hi:[1,0]" % (t, y, w))
        a("v_pk_fma_f32 %s, %s, %s, %s op_sel:[1,1,0] op_sel_hi:[0,1,1] neg_lo:[1,0,0] neg_hi:[1,0,0]" % (t, y, w, t))
        a("v_cvt_pk_bf16_f32 v%d, v%d, v%d" % (SQ + i, T1_ + 2 * i, T1_ + 2 * i + 1))
        if i & 1: a("ds_write_b64 v12, %s offset:%d" % (R(SQ + i - 1, 2), X2 + 16 * (i >> 1)))
    a("s_waitcnt lgkmcnt(0)\ns_barrier")
    k.mark()
    for t in range(8): a("ds_read_b128 %s, v11 offset:%d" % (R(BUF + 4 * t, 4), X2 + 32 * t))
    for t in range(8):
        a("s_waitcnt lgkmcnt(%d)" % (7 - t))
        a("v_mfma_f32_32x32x16_bf16 %s, %s, %s, %s" % (R(AC, 16), R(M2 + 4 * t, 4), R(BUF + 4 * t, 4), "0" if t == 0 else R(AC, 16)))
        if t == 1 and OPT.get("sd", 0) == 1: side()
    for i in range(8):
        y, tw, t = R(AC + 2 * i, 2), R(TWI + 2 * i, 2), R(T0 + 2 * i, 2)
        a("v_pk_mul_f32 %s, %s, %s op_sel:[0,1] op_sel_hi:[0,0]" % (t, y, tw))
        a("v_pk_fma_f32 %s, %s, %s, %s op_sel:[1,0,0] op_sel_hi:[1,1,1] neg_lo:[1,0,0]" % (t, y, tw, t))
        a("v_cvt_pk_bf16_f32 v%d, v%d, v%d" % (SQ + i, T0 + 2 * i, T0 + 2 * i + 1))
        a("ds_write_b32 v13, v%d offset:%d" % (SQ + i, X3 + (4 * (i >> 1) + (i & 1)) * 144))
    a("s_waitcnt lgkmcnt(0)")
    for t in range(2): a("ds_read_b128 %s, v14 offset:%d" % (R(BUF + 4 * t, 4), X3 + 16 * t))
    a("s_waitcnt lgkmcnt(0)")
    k.mark()
    for t in range(2):
        for tau in range(4):
            d = R(UO + 4 * tau, 4)
            a("v_mfma_f32_16x16x32_bf16 %s, %s, %s, %s" % (d, R(M1 + 4 * (2 * tau + t), 4), R(BUF + 4 * t, 4), d))
    a("s_cmp_eq_u32 s42, 0\ns_cbranch_scc1 L_col_z1")
    a("L_col_n1:")
    for v in range(8):
        a("v_cvt_pk_bf16_f32 v%d, v%d, v%d" % (SQ + v, UO + 2 * v + 1, UO + 2 * v))
        a("buffer_store_dword v%d, v8, s[8:11], s40 offen" % (SQ + v))
        if v < 7: a("s_add_u32 s40, s40, 0x10000")
    a("L_col_end:")
    a("s_endpgm")
    a("L_col_z0:")
    for v in range(8): a("v_mov_b32 v%d, 0" % (T0 + 2 * v))
    a("s_branch L_col_n0")
    a("L_col_z1:")
    for v in range(8): a("v_and_b32 v%d, 0xffff0000, v%d" % (UO + 2 * v, RAW + v))
    a("s_branch L_col_n1")
    return (k, 256, 256, 32768), (k2, 256, 256, 32768)

from prep4 import k_prep
from mha6 import k_mha


def hexdump(arr):
    u = np.ascontiguousarray(arr).reshape(-1).view(np.uint64)
    return "\n".join(".quad " + ",".join("0x%x" % v for v in u[i:i + 8]) for i in range(0, len(u), 8)) + "\n"

def tables():
    s = '.section .rodata,"a"\n.p2align 12\n'
    c = cos512()
    for i in range(512): s += ".set C%d, 0x%04x\n" % (i, c[i])
    s += r""".altmacro
.macro E8 a,b,c,d,e,f,g,h
.short C\a,C\b,C\c,C\d,C\e,C\f,C\g,C\h
.endm
.macro F8 p,k
E8 %((\p)&511),%((\p+\k)&511),%((\p+2*\k)&511),%((\p+3*\k)&511),%((\p+4*\k)&511),%((\p+5*\k)&511),%((\p+6*\k)&511),%((\p+7*\k)&511)
.endm
.macro G8 i0,i1,p,d
E8 %((\i0)&511),%((\i1)&511),%((\p+\d)&511),%((\p+\d+128)&511),%((\p+2*\d)&511),%((\p+2*\d+128)&511),%((\p+3*\d)&511),%((\p+3*\d+128)&511)
.endm
.type tables,@object
tables:
.set n, 0
.rept 32768
.set cc, ((n>>11)<<5) + (n&19) + ((n&4)<<1) + ((n&8)>>1)
.set dd, (((n>>6)&31)<<4) + (((n>>5)&1)<<3)
.set lt2, ((cc-2)>>63)&1
.set kk, (cc>>1) + 256*(((cc-1)>>63)&1)
.set pp, kk*dd + lt2*64 + (1-lt2)*128*(cc&1)
F8 pp, kk
.set n, n+1
.endr
.set n, 0
.rept 32768
.set dd, ((n>>11)<<5) + (((n>>2)&1)<<4) + (((n>>3)&3)<<2) + (n&3)
.set kk, (((n>>6)&31)<<3) + (((n>>5)&1)<<2)
.set z, ((kk-1)>>63)&1
.set pp, kk*dd
.set i0, z*(256*dd+64) + (1-z)*pp
.set i1, z*64 + (1-z)*(pp+128)
G8 i0, i1, pp, dd
.set n, n+1
.endr
.noaltmacro
"""
    s += hexdump(tab_M1()) + hexdump(tab_M2())
    return s

def build(order=None):
    c1, c2 = k_col()
    me = sys.modules[__name__]
    m1, m2 = k_mha(me)
    ks = dict(prep=k_prep(me), col2=c2, col1=c1, mha2=m2, mha1=m1)
    order = order or ["prep", "col1", "mha1", "col2", "mha2"]
    ref = open("cdna_kernels/%s.s.ref" % NAME).read().split("\n")
    head = "\n".join(l for l in ref[:10]) + "\n"
    for o in order:
        k, g, b, lds = ks[o]
        head += "; @launch kernel=%s grid=(%d,1,1) block=(%d,1,1) lds=%d\n" % (k.name, g, b, lds)
    s = head + '.amdgcn_target "amdgcn-amd-amdhsa--gfx950"\n'
    for k, *_ in ks.values(): s += k.text()
    for k, *_ in ks.values(): s += k.desc()
    s += tables()
    return s

if __name__ == "__main__":
    out = sys.argv[1] if len(sys.argv) > 1 else "cdna_kernels/%s.s" % NAME
    STAMP = len(sys.argv) > 2 and "stamp" in sys.argv[2]
    for kv in sys.argv[3:]:
        key, val = kv.split("="); OPT[key] = int(val)
    open(out, "w").write(build())
    print("wrote", out)
```

```python
def k_prep(G):
    K, R, OFF, TOFF, SIZE, srd_load, srd_tab, lane_setup, OPT, fbits, LOG2E = G.K, G.R, G.OFF, G.TOFF, G.SIZE, G.srd_load, G.srd_tab, G.lane_setup, G.OPT, G.fbits, G.LOG2E
    ACC = 16; ACW = 32; TF = 112; BX = 48; BW = 80
    HL = 0x20000; AS = 9216
    NT = 'nt ' if OPT.get('nt', 3) & 1 else ''
    NTW = 'nt ' if OPT.get('nt', 3) & 2 else ''
    k = K("prep_kernel", 240); a = k.a
    a("s_cmp_ge_u32 s2, 256\ns_cbranch_scc1 L_prep_end")
    a("s_load_dwordx4 s[72:75], s[0:1], 0\ns_load_dwordx2 s[76:77], s[0:1], 16\ns_load_dwordx4 s[12:15], s[0:1], 32")
    srd_load(a, 8, "ws")
    lane_setup(a)
    a("""
    s_and_b32 s40, s2, 7
    s_lshr_b32 s41, s2, 3
    s_and_b32 s42, s41, 7           ; cb
    s_lshl_b32 s43, s40, 2
    s_lshr_b32 s48, s41, 3
    s_add_u32 s43, s43, s48         ; rb
    s_lshl_b32 s48, s48, 1
    s_add_u32 s51, s42, s48         ; rot
    s_mov_b32 s23, 0x00020000
    s_cmp_ge_u32 s3, 4
    s_cbranch_scc1 L_prep_help
    s_lshr_b32 s57, s3, 1           ; wm
    s_and_b32 s58, s3, 1            ; wn
    s_lshl_b32 s44, s42, 1
    s_add_u32 s44, s44, s57         ; c tile
    s_lshl_b32 s46, s43, 1
    s_add_u32 s46, s46, s58
    s_lshl_b32 s50, s44, 15
    """)
    a("""
    v_and_b32 v4, 0x13, v1
    v_and_b32 v5, 4, v1
    v_lshl_or_b32 v4, v5, 1, v4
    v_bfe_u32 v5, v1, 3, 1
    v_lshl_or_b32 v4, v5, 2, v4
    s_lshl_b32 s40, s44, 5
    v_add_u32 v4, s40, v4           ; c
    v_lshrrev_b32 v5, 1, v4         ; kk
    v_and_b32 v6, 1, v4
    v_lshlrev_b32 v6, 7, v6         ; ph
    v_mov_b32 v7, 256
    v_cmp_eq_u32 vcc, 0, v4
    v_cndmask_b32 v5, v5, v7, vcc
    v_mov_b32 v7, 64
    v_cmp_gt_u32 vcc, 2, v4
    v_cndmask_b32 v6, v6, v7, vcc
    v_lshlrev_b32 v7, 3, v3
    v_mad_u32_u24 v6, v5, v7, v6
    v_cvt_f32_u32 v7, v5
    v_mul_f32 v7, 0x3b000000, v7
    v_lshlrev_b32 v11, 31, v5
    v_ashrrev_i32 v11, 31, v11
    v_and_b32 v12, v5, v4
    v_lshrrev_b32 v13, 1, v5
    v_xor_b32 v12, v12, v13
    v_lshlrev_b32 v12, 31, v12
    v_ashrrev_i32 v12, 31, v12
    v_and_b32 v11, 0x80008000, v11
    v_and_b32 v12, 0x80008000, v12
    v_xor_b32 v13, v11, v12
    """)
    for c in range(2):
        a("s_add_u32 s53, s51, %d\ns_lshl_b32 s53, s53, 6" % c)
        for t in range(4):
            if t: a("s_add_u32 s53, s53, 16")
            a("v_mad_u32_u24 v10, v5, s53, v6\nv_and_b32 v10, 511, v10\nv_cvt_f32_u32 v10, v10\nv_mul_f32 v48, 0x3b000000, v10")
            for j in range(1, 8): a("v_fmamk_f32 v%d, v7, 0x%x, v48" % (48 + j, fbits(j)))
            for j in range(8): a("v_cos_f32 v%d, v%d" % (48 + j, 48 + j))
            d = TF + 16 * c + 4 * t
            for j in range(4): a("v_cvt_pk_bf16_f32 v%d, v%d, v%d" % (d + j, 48 + 2 * j, 49 + 2 * j))
            for j in range(4): a("v_xor_b32 v%d, v11, v%d" % (d + 64 + j, d + j))
            for j in range(4): a("v_xor_b32_dpp v%d, v%d, v12 quad_perm:[0,1,3,2] row_mask:0xf bank_mask:0xf" % (d + 32 + j, d + j))
            for j in range(4): a("v_xor_b32_dpp v%d, v%d, v13 quad_perm:[0,1,3,2] row_mask:0xf bank_mask:0xf" % (d + 96 + j, d + j))
    k.mark(0)
    a("""
    s_lshl_b32 s49, s58, 12
    v_bfe_u32 v5, v1, 1, 3
    v_xor_b32 v5, v5, v3
    v_lshlrev_b32 v7, 7, v2
    v_add_u32 v7, s49, v7
    v_lshl_add_u32 v10, v5, 4, v7
    v_xor_b32 v11, 32, v10
    v_xor_b32 v12, 64, v10
    v_xor_b32 v13, 96, v10
    v_bfe_u32 v4, v1, 2, 2
    v_lshl_add_u32 v4, v3, 3, v4
    v_lshlrev_b32 v4, 7, v4         ; (8h + r)*128
    v_bfe_u32 v5, v1, 3, 1
    v_xor_b32 v5, s58, v5
    v_lshl_add_u32 v4, v5, 6, v4
    v_bfe_u32 v6, v1, 4, 1
    v_lshl_add_u32 v4, v6, 5, v4
    v_and_b32 v5, 3, v1
    v_lshl_add_u32 v14, v5, 3, v4
    s_waitcnt lgkmcnt(0)
    """)
    G.uc_addr(a)
    k.mark(5)
    a("s_cmp_ge_u32 s43, 24\ns_cbranch_scc1 L_prep_o")
    def mainloop(tr):
        n = 12 if tr else 8
        def reads(ch, t):
            so = (ch & 3) * 16384; s = 16 * (ch & 1)
            a("ds_read_b128 %s, v%d offset:%d" % (R(BX + s + 4 * t, 4), 10 + t, so))
            if tr:
                a("ds_read_b64_tr_b16 %s, v14 offset:%d" % (R(BW + s + 4 * t, 2), so + 8192 + t * 2048))
                a("ds_read_b64_tr_b16 %s, v14 offset:%d" % (R(BW + s + 4 * t + 2, 2), so + 8192 + t * 2048 + 512))
            else:
                a("ds_read_b128 %s, v%d offset:%d" % (R(BW + s + 4 * t, 4), 10 + t, so + 8192))
        def mf(ch, t, half):
            s = 16 * (ch & 1)
            z = ch == 0 and t == 0
            T = R(TF + 16 * ch + 4 * t, 4)
            W = R(BW + s + 4 * t, 4)
            if half == 0: a("v_mfma_f32_32x32x16_bf16 %s, %s, %s, %s" % (R(ACC, 16), T, R(BX + s + 4 * t, 4), "0" if z else R(ACC, 16)))
            else: a("v_mfma_f32_32x32x16_bf16 %s, %s, %s, %s" % (R(ACW, 16), T if tr else W, W if tr else T, "0" if z else R(ACW, 16)))
        for ch in range(8):
            if ch == 4:
                for v in range(10, 15): a("v_add_u32 v%d, 0x10000, v%d" % (v, v))
            a("s_waitcnt lgkmcnt(0)")
            if ch: mf(ch - 1, 0, 0); mf(ch - 1, 0, 1)
            a("s_barrier")
            if ch == 0: k.mark(1)
            if ch == 4: k.mark(2)
            for i in range(6):
                if i < 4: reads(ch, i)
                if ch: mf(ch - 1, 1 + i // 2, i & 1)
        k.mark(3)
        for t in range(4):
            a("s_waitcnt lgkmcnt(%d)" % ((n // 4) * (3 - t)))
            mf(7, t, 0); mf(7, t, 1)
    AC_ = ACW
    mainloop(True)
    a("""
    s_lshr_b32 s47, s46, 4          ; part
    s_and_b32 s41, s46, 15
    s_mul_i32 s41, s41, 98304
    s_add_u32 s41, s41, 0x%x
    s_cmp_eq_u32 s47, 0
    s_mov_b32 s50, 0x3d800000
    s_cselect_b32 s50, 0x%x, s50
    s_lshl_b32 s40, s44, 11
    s_lshl_b32 s48, s47, 8
    s_add_u32 s40, s40, s48         ; Q/K: ct*2048 + part*256
    s_lshl_b32 s48, s44, 10
    s_add_u32 s48, s48, 32768       ; V: 32768 + ct*1024
    s_cmp_eq_u32 s47, 2
    s_cselect_b32 s40, s48, s40
    s_cselect_b32 s48, 8, 10
    s_mov_b32 s47, 9
    s_add_u32 s40, s40, s41
    s_lshl_b32 s48, 1, s48
    s_add_u32 s41, s40, s48
    v_and_b32 v7, 15, v1
    v_lshlrev_b32 v9, 4, v7
    v_lshlrev_b32 v7, s47, v3
    v_add_u32 v9, v9, v7
    s_mov_b32 s48, 49152
    v_mad_u32_u24 v9, v6, s48, v9
    v_add_u32 v4, s44, v3
    v_cmp_eq_u32 vcc, 0, v4
    v_cndmask_b32 v%d, v%d, v4, vcc
    """ % (OFF["WP"], fbits(0.25 * LOG2E / 16), AC_ + 1, AC_ + 1))
    a("L_prep_out:")
    for r in range(16): a("v_mul_f32 v%d, 0x3d800000, v%d" % (ACC + r, ACC + r))
    for p in range(8): a("v_cvt_pk_bf16_f32 v%d, v%d, v%d" % (48 + p, ACC + 2 * p, ACC + 2 * p + 1))
    for p in range(8): a("buffer_store_dword v%d, v5, s[8:11], s%d offen" % (48 + p, 64 + p))
    for r in range(16): a("v_mul_f32 v%d, s50, v%d" % (AC_ + r, AC_ + r))
    for r in range(8): a("v_cvt_pk_bf16_f32 v%d, v%d, v%d" % (56 + r, AC_ + 2 * r, AC_ + 2 * r + 1))
    a("buffer_store_dwordx4 v[56:59], v9, s[8:11], s40 offen\nbuffer_store_dwordx4 v[60:63], v9, s[8:11], s41 offen")
    a("s_endpgm")
    a("L_prep_o:")
    mainloop(False)
    a("s_sub_u32 s46, s46, 48\ns_lshl_b32 s40, s44, 15\ns_lshl_b32 s41, s46, 11\ns_add_u32 s40, s40, s41\ns_add_u32 s40, s40, 0x%x\ns_add_u32 s41, s40, 1024" % OFF["WOP"])
    a("s_mov_b32 s50, 0x3d800000\ns_nop 7\ns_branch L_prep_out")
    a("L_prep_help:")
    a("s_cmp_ge_u32 s3, 6\ns_cbranch_scc1 L_prep_h67")
    a("""
    v_lshrrev_b32 v4, 3, v1
    v_lshrrev_b32 v7, 4, v1
    v_xor_b32 v7, v7, v1
    v_and_b32 v7, 7, v7
    v_lshlrev_b32 v7, 4, v7
    v_lshl_add_u32 v12, v4, 10, v7
    v_xor_b32 v13, 64, v12
    v_add_u32 v13, 8192, v13
    s_movk_i32 s54, 128
    s_mov_b32 s52, 0
    s_cmp_eq_u32 s3, 5
    s_cbranch_scc1 L_prep_w
    s_and_b32 s40, s43, 7
    s_lshl_b32 s40, s40, 16
    s_lshr_b32 s41, s43, 3
    s_lshl_b32 s41, s41, 14
    s_add_u32 s50, s40, s41
    s_mov_b32 s55, 0x80000
    s_mov_b32 s59, 0x100000
    s_mov_b32 s22, 0x%x
    s_waitcnt lgkmcnt(0)
    s_mov_b64 s[20:21], s[72:73]
    s_branch L_prep_go
L_prep_w:
    s_movk_i32 s52, 8192
    s_cmp_lt_u32 s43, 24
    s_cbranch_scc1 L_prep_q
    s_sub_u32 s50, s43, 24
    s_lshl_b32 s50, s50, 16
    s_movk_i32 s55, 16384
    s_mov_b32 s59, 32768
    s_mov_b32 s22, 0x%x
    s_waitcnt lgkmcnt(0)
    s_mov_b64 s[20:21], s[14:15]
    s_branch L_prep_go
L_prep_q:
    s_movk_i32 s40, 3072
    v_mul_lo_u32 v12, v4, s40
    v_lshrrev_b32 v7, 2, v1
    v_and_b32 v7, 4, v7
    v_xor_b32 v7, v7, v1
    v_and_b32 v7, 7, v7
    v_lshl_add_u32 v12, v7, 4, v12
    v_add_u32 v13, %d, v12
    s_lshl_b32 s50, s43, 7
    s_mov_b32 s54, %d
    s_mov_b32 s55, %d
    s_mov_b32 s59, %d
    s_mov_b32 s22, 0x%x
    s_waitcnt lgkmcnt(0)
    s_mov_b64 s[20:21], s[12:13]
L_prep_go:
    s_setprio 3
    """ % (SIZE["x"], SIZE["wo"], 8 * 3072, 64 * 3072, 16 * 3072, 32 * 3072, SIZE["wqkv"]))
    k.mark(0)
    LP = OPT.get("lpre", 4)
    lm = []
    def issue(ch):
        a("s_add_u32 s53, s51, %d\ns_and_b32 s53, s53, 7\ns_mul_i32 s53, s53, s54\ns_add_u32 s60, s53, s50" % ch)
        a("s_add_u32 s61, s60, s55\ns_add_u32 s62, s60, s59\ns_add_u32 s63, s61, s59")
        for i in range(8):
            a("s_add_u32 m0, s52, %d" % (ch * 16384 + i * 1024))
            a("buffer_load_dwordx4 v%d, s[20:23], s%d offen %slds" % (12 + (i & 1), 60 + (i >> 1), NT if ch < OPT.get("ntch", 1) else ""))
        lm.append(a.vm - 1)
    L0 = OPT.get("l0", 2)
    for ch in range(L0): issue(ch)
    k.mark(1)
    for ch in range(8):
        a.wait_vm(lm[ch])
        if ch == 0: k.mark(2)
        if ch == 0 and len(lm) < 2: issue(1)
        a("s_barrier")
        while len(lm) < min(8, ch + 1 + LP): issue(len(lm))
        if ch == 4 and OPT.get("warm", 0):
            a("s_lshr_b32 s41, s2, 3")
            if OPT["warm"] & 1:
                a("s_getpc_b64 s[16:17]")
                a.raw("    s_add_u32 s16, s16, code_begin@rel32@lo+4\n    s_addc_u32 s17, s17, code_begin@rel32@hi+12")
                a.raw("    s_mov_b32 s18, code_end-code_begin")
                a("s_mov_b32 s19, 0x00020000\nv_lshlrev_b32 v20, 5, v1\ns_lshl_b32 s40, s41, 11\nbuffer_load_dword v21, v20, s[16:19], s40 offen")
            if OPT["warm"] & 2:
                a("v_lshlrev_b32 v20, 14, v1\ns_lshl_b32 s40, s41, 20\nbuffer_load_dword v21, v20, s[8:11], s40 offen")
    a("s_endpgm")
    a("L_prep_h67:")
    if OPT.get("nohelp"): a("s_endpgm")
    a("s_cmp_eq_u32 s3, 7\ns_cbranch_scc1 L_prep_stat")
    a("""
    s_lshl_b32 s44, s40, 5
    s_add_u32 s44, s44, s41
    s_and_b32 s47, s44, 1
    s_lshr_b32 s44, s44, 1
    s_mul_i32 s45, s44, 8224
    s_add_u32 s46, s45, 4096
    s_add_u32 s48, s45, 8192
    s_mov_b32 s18, 0x%x
    s_mov_b32 s19, 0x00020000
    s_mov_b32 s22, 0x%x
    s_waitcnt lgkmcnt(0)
    s_mov_b64 s[16:17], s[74:75]
    s_mov_b64 s[20:21], s[76:77]
    """ % (SIZE["wr"], SIZE["wi"]))
    for arr in range(2):
        srd = "s[16:19]" if arr == 0 else "s[20:23]"
        for hf in range(2):
            a("s_mov_b32 m0, %d" % (HL + AS * arr + 4096 * hf))
            for i in range(4): a("buffer_load_dwordx4 v9, %s, s%d offen offset:%d %slds" % (srd, 45 + hf, 1024 * i, NTW))
        a("s_mov_b32 m0, %d\ns_mov_b64 exec, 3" % (HL + AS * arr + 8192))
        a("buffer_load_dwordx4 v9, %s, s48 offen lds" % srd)
        a("s_mov_b64 exec, -1")
    a("""
    s_mov_b32 s49, %d
    v_lshrrev_b32 v4, 2, v1
    s_lshl_b32 s47, s47, 7
    v_add_u32 v4, s47, v4           ; slot k of group 0
    v_and_b32 v8, 3, v1
    s_movk_i32 s48, 2056
    v_mul_lo_u32 v10, v8, s48
    v_lshlrev_b32 v5, 1, v4
    v_mov_b32 v6, 512
    v_cmp_eq_u32 vcc, 0, v4
    v_cndmask_b32 v6, v5, v6, vcc
    v_add3_u32 v5, v5, v10, s49
    v_add3_u32 v6, v6, v10, s49
    v_lshlrev_b32 v7, 13, v4
    v_lshl_add_u32 v7, v8, 4, v7
    s_lshl_b32 s44, s44, 6
    s_add_u32 s44, s44, 0x%x
    s_setprio 3
    """ % (HL, OFF["WT"]))
    k.mark(1)
    HW = OPT.get("hw", 3)
    for _ in range(HW): a("s_barrier")
    a("s_waitcnt vmcnt(0)")
    k.mark(2)
    nb = HW
    for g in range(8):
        if g and g % 2 == 0 and nb < 8:
            a("s_barrier"); nb += 1
        for o in range(4):
            a("ds_read_u16 v%d, v%d offset:%d" % (64 + o, 6 if g == 0 else 5, g * 32 + o * 514))
            a("ds_read_u16 v%d, v%d offset:%d" % (72 + o, 6 if g == 0 else 5, AS + g * 32 + o * 514))
        a("s_waitcnt lgkmcnt(0)")
        b = 80 + 4 * (g & 3)
        for o in range(4): a("v_lshl_or_b32 v%d, v%d, 16, v%d" % (b + o, 72 + o, 64 + o))
        a("buffer_store_dwordx4 %s, v7, s[8:11], s44 offen" % R(b, 4))
        if g < 7: a("s_add_u32 s44, s44, 0x20000")
    a("s_cmp_lt_u32 s43, 24\ns_cbranch_scc1 L_prep_w6e")
    if nb < 8:
        a("s_barrier");
    a("""
    v_bfe_u32 v4, v1, 2, 2          ; r
    v_lshl_add_u32 v5, v3, 2, v4    ; 4h + r
    v_lshlrev_b32 v5, 7, v5
    v_lshrrev_b32 v4, 1, v4
    v_lshl_add_u32 v4, v3, 1, v4    ; 2h + (r>>1)
    v_and_b32 v6, 1, v1
    v_bfe_u32 v7, v1, 4, 1
    v_lshl_add_u32 v6, v6, 1, v7    ; 2(cq&1) + (G&1)
    v_xor_b32 v4, v4, v6
    v_lshl_add_u32 v5, v4, 4, v5
    v_bfe_u32 v4, v1, 1, 1
    v_lshl_add_u32 v5, v4, 3, v5
    s_and_b32 s44, s51, 7
    s_lshl_b32 s44, s44, 16
    s_sub_u32 s45, s43, 24
    s_lshl_b32 s45, s45, 12
    s_add_u32 s44, s44, s45
    s_add_u32 s44, s44, 0x%x
    s_add_u32 s45, s44, 32768
    """ % OFF["WOF"])
    for dl in range(2):
        for hl in range(4):
            for x2 in range(2):
                a("ds_read_b64_tr_b16 %s, v5 offset:%d" % (R(96 + 16 * dl + 4 * hl + 2 * x2, 2), 8192 + (16 * hl + 8 * x2) * 128 + (dl ^ x2) * 64))
        a("s_waitcnt lgkmcnt(0)")
        for hl in range(4):
            a("buffer_store_dwordx4 %s, v9, s[8:11], s%d offen offset:%d" % (R(96 + 16 * dl + 4 * hl, 4), 44 + dl, 1024 * hl))
    if G.STAMP:
        for _ in range(8 - nb - 1): a("s_barrier")
    a("s_endpgm")
    a("L_prep_w6e:")
    if G.STAMP:
        for _ in range(8 - nb): a("s_barrier")
    a("s_endpgm")
    a("L_prep_stat:")
    srd_tab(a, 16)
    a("s_mul_i32 s46, s41, 1280\ns_add_u32 s46, s46, %d\nv_lshlrev_b32 v25, 5, v1\nbuffer_load_dword v26, v25, s[16:19], s46 offen" % TOFF["M1"])
    a("""
    s_lshl_b32 s40, s42, 10
    v_add_u32 v7, s40, v9
    v_mov_b32 v20, 0
    v_lshlrev_b32 v21, 2, v1
    v_lshrrev_b32 v6, 3, v1
    v_lshlrev_b32 v6, 2, v6
    s_lshl_b32 s44, s43, 8
    s_lshl_b32 s45, s42, 5
    s_add_u32 s44, s44, s45
    s_add_u32 s43, s44, 0x%x
    s_add_u32 s44, s44, 0x%x
    s_lshl_b32 s45, s2, 7
    s_add_u32 s45, s45, 0x%x
    s_lshl_b32 s47, s2, 9
    s_add_u32 s47, s47, PSQOFF
    v_mov_b32 v22, -1
    v_mov_b32 v23, -1
    v_lshlrev_b32 v24, 3, v1
    v_mov_b32 v10, 0
    v_mov_b32 v11, 0
    s_waitcnt lgkmcnt(0)
    buffer_store_dword v20, v6, s[8:11], s44 offen
    s_mov_b32 exec_hi, 0
    buffer_store_dword v20, v21, s[8:11], s45 offen
    s_mov_b32 exec_hi, -1
    buffer_store_dwordx2 v[22:23], v24, s[8:11], s47 offen
    v_mov_b32 v28, -1
    v_mov_b32 v29, -1
    v_mov_b32 v30, -1
    v_mov_b32 v31, -1
    s_lshl_b32 s47, s2, 13
    s_add_u32 s47, s47, OFOFF
    s_add_u32 s48, s47, 4096
    s_mov_b32 s46, 0
    s_setprio 2
L_prep_sl:
    s_barrier
    ds_read_b128 v[64:67], v7
    buffer_store_dwordx4 v[28:31], v9, s[8:11], s47 offen SFL
    s_add_u32 s47, s47, 1024
    v_add_u32 v7, 16384, v7
    s_add_u32 s46, s46, 1
    s_waitcnt lgkmcnt(0)
    """.replace("PSQOFF", "0x%x" % OFF["PSQ"]).replace("OLD", "0x%x" % (OFF["OL"] - OFF["OF"])).replace("SFL", "" if OPT.get("sfp") else "sc1").replace("OFOFF", "0x%x" % OFF["OF"]).replace("SENT", "\n".join("    buffer_store_dwordx4 v[28:31], v9, s[8:11], s%d offen offset:%d sc1" % (47 + (i >> 2), 1024 * (i & 3)) for i in range(8))) % (OFF["SSQ0"], OFF["SSQ2"], OFF["FLK"]))
    for r in range(4):
        a("v_and_b32 v4, 0xffff0000, v%d\nv_lshlrev_b32 v5, 16, v%d" % (64 + r, 64 + r))
        a("v_fmac_f32 v10, v4, v4\nv_add_f32 v11, v11, v4\nv_fmac_f32 v10, v5, v5\nv_add_f32 v11, v11, v5")
    a("s_cmp_lt_u32 s46, 8\ns_cbranch_scc1 L_prep_sl")
    for m in ("quad_perm:[1,0,3,2]", "quad_perm:[2,3,0,1]", "row_half_mirror"):
        a("v_add_f32_dpp v10, v10, v10 %s row_mask:0xf bank_mask:0xf" % m)
        a("v_add_f32_dpp v11, v11, v11 %s row_mask:0xf bank_mask:0xf" % m)
    a("v_mul_f32 v12, 0x%x, v11" % fbits(-1.0 / 512))
    a("v_fma_f32 v13, v12, v11, v10")
    a("buffer_store_dword v13, v6, s[8:11], s43 offen")
    a("L_prep_end:")
    a("s_endpgm")
    return k, 256, 512, HL + 18432
```

```python
import sys, math
import numpy as np
from asmlib import Asm
from layouts3 import *

NAME = "interleave_layers__spectral_gfnet__softmax_full_mha__prompt"
KA = dict(x=0, wr=8, wi=16, wqkv=32, wo=40, out=48, dbg=56, ws=64)
SIZE = dict(x=2097152, wr=1052672, wi=1052672, wqkv=1572864, wo=524288, out=2097152, ws=WS_USED)
TOFF = dict(T1=0, T2=0x80000, M1=0x100000, M2=0x102000)
TSIZE = 0x10A000
LOG2E = 1.4426950408889634
STAMP = False
OPT = {}
def fbits(x): return int(np.float32(x).view(np.uint32))
def R(b, n): return "v[%d:%d]" % (b, b + n - 1)

class K:
    def __init__(self, name, vgpr, sgpr=96):
        self.name = name; self.vgpr = vgpr; self.sgpr = sgpr
        self.a = Asm()
        self.a.raw(".text\n.globl %s\n.p2align 8\n.type %s,@function" % (name, name))
        self.a(name + ":")
        self.nm = 0
        if STAMP:
            self.a.raw("    s_memrealtime s[84:85]\n    s_memtime s[86:87]\n    v_lshrrev_b32 v4, 6, v0\n    s_nop 1\n    v_readfirstlane_b32 s94, v4\n    s_mov_b32 s95, 0")
            self.a.raw("    s_waitcnt lgkmcnt(0)\n" + "\n".join("    s_mov_b32 s%d, s86" % (24 + 2 * i) for i in range(8)))
    def mark(self, i=None):
        if STAMP:
            if i is None: i = self.nm
            self.nm = i + 1
            assert i < 7
            self.a.raw("    s_memtime s[%d:%d]" % (24 + 2 * i, 25 + 2 * i))
    def text(self):
        t = self.a.text()
        if STAMP and "s_endpgm" in t:
            t = t.replace("    s_endpgm", "    s_branch %s_stamp" % self.name)
            t += """%s_stamp:
    s_memtime s[38:39]
    s_waitcnt vmcnt(0) lgkmcnt(0)
    s_memrealtime s[88:89]
    s_memtime s[90:91]
    s_load_dwordx2 s[80:81], s[0:1], 64
    s_load_dwordx2 s[92:93], s[0:1], 56
    s_mov_b32 s82, 0x4000000
    s_mov_b32 s83, 0x00020000
    s_waitcnt lgkmcnt(0)
    s_lshr_b32 s92, s92, 9
    s_and_b32 s92, s92, 63
    s_lshl_b32 s92, s92, 20
    s_lshl_b32 s93, s2, 10
    s_add_u32 s92, s92, s93
    s_lshl_b32 s93, s94, 6
    s_add_u32 s92, s92, s93
    s_add_u32 s92, s92, 0x2000000
    s_sub_u32 s90, s90, s86
    s_mov_b64 exec, 1
    v_mov_b32 v0, 0
    v_mov_b32 v4, s84
    v_mov_b32 v5, s88
    v_mov_b32 v6, s90
    v_mov_b32 v7, s95
    buffer_store_dwordx4 v[4:7], v0, s[80:83], s92 offen
""" % self.name
            for i in range(8): t += "    s_sub_u32 s%d, s%d, s86\n    v_mov_b32 v%d, s%d\n" % (24 + 2 * i, 24 + 2 * i, 8 + i, 24 + 2 * i)
            t += "    buffer_store_dwordx4 v[8:11], v0, s[80:83], s92 offen offset:16\n    buffer_store_dwordx4 v[12:15], v0, s[80:83], s92 offen offset:32\n    s_endpgm\n"
        return t
    def desc(self):
        return """.section .rodata,"a"
.p2align 6
.amdhsa_kernel %s
  .amdhsa_next_free_vgpr %d
  .amdhsa_next_free_sgpr %d
  .amdhsa_accum_offset %d
  .amdhsa_group_segment_fixed_size 0
  .amdhsa_kernarg_size 72
  .amdhsa_user_sgpr_count 2
  .amdhsa_user_sgpr_kernarg_segment_ptr 1
  .amdhsa_system_sgpr_workgroup_id_x 1
.end_amdhsa_kernel
""" % (self.name, self.vgpr, self.sgpr, (self.vgpr + 3) // 4 * 4)

def srd_load(a, s, what):
    a("s_load_dwordx2 s[%d:%d], s[0:1], %d" % (s, s + 1, KA[what]))
    a("s_mov_b32 s%d, 0x%x" % (s + 2, SIZE[what]))
    a("s_mov_b32 s%d, 0x00020000" % (s + 3))
def srd_tab(a, s):
    a("s_getpc_b64 s[%d:%d]" % (s, s + 1))
    a.raw("    s_add_u32 s%d, s%d, tables@rel32@lo+4" % (s, s))
    a.raw("    s_addc_u32 s%d, s%d, tables@rel32@hi+12" % (s + 1, s + 1))
    a("s_mov_b32 s%d, 0x%x" % (s + 2, TSIZE))
    a("s_mov_b32 s%d, 0x00020000" % (s + 3))
def lane_setup(a):
    a("""
    v_lshrrev_b32 v4, 6, v0
    v_and_b32 v1, 63, v0
    v_readfirstlane_b32 s3, v4
    v_and_b32 v2, 31, v0
    v_lshrrev_b32 v3, 5, v1
    v_lshlrev_b32 v9, 4, v1
    """)

ACC = 16
def g64_ids(a):
    a("""
    s_and_b32 s40, s2, 7
    s_lshr_b32 s41, s2, 3
    s_and_b32 s42, s40, 1
    s_lshl_b32 s42, s42, 2
    s_and_b32 s47, s41, 3
    s_add_u32 s42, s42, s47         ; cb
    s_lshr_b32 s43, s40, 1
    s_lshl_b32 s43, s43, 3
    s_lshr_b32 s48, s41, 2
    s_add_u32 s43, s43, s48         ; rb
    s_lshl_b32 s47, s47, 1
    s_add_u32 s51, s47, s48         ; rot (mod 8 applied later)
    s_lshr_b32 s40, s3, 1
    s_and_b32 s41, s3, 1
    s_lshl_b32 s44, s42, 1
    s_add_u32 s44, s44, s40
    s_lshl_b32 s46, s43, 1
    s_add_u32 s46, s46, s41
    s_lshl_b32 s52, s3, 15
    s_lshl_b32 s40, s40, 15
    v_add_u32 v10, s40, v9
    s_lshl_b32 s40, s41, 15
    s_add_u32 s49, s40, 0x10000
    s_cmp_lt_u32 s3, 2
    s_cselect_b32 s45, s42, s43
    s_lshl_b32 s45, s45, 1
    s_add_u32 s45, s45, s41
    s_cmp_lt_u32 s3, 2
    """)
def g64_issue(a, ch, general, base="s50"):
    a("s_add_u32 s53, s51, %d\ns_and_b32 s53, s53, 7" % ch)
    if general:
        a("s_lshl_b32 s53, s53, s54\ns_add_u32 s53, s53, %s\ns_add_u32 s56, s53, s55" % base)
        for i in range(4):
            a("s_add_u32 m0, s52, %d" % (ch * 4096 + i * 1024))
            a("buffer_load_dwordx4 v%d, s[20:23], s%d offen lds" % (12 + (i >> 1), 53 if i % 2 == 0 else 56))
    else:
        a("s_lshl_b32 s53, s53, 12\ns_add_u32 m0, s52, %d\ns_add_u32 s53, s53, %s" % (ch * 4096, base))
        for i in range(4):
            a("buffer_load_dwordx4 v9, s[20:23], s53 offen offset:%d lds" % (i * 1024))
def g64_compute(a, ch, rowB, first, hook=None):
    for t in range(4):
        a("ds_read_b128 %s, v10 offset:%d" % (R(32 + 8 * t, 4), ch * 4096 + t * 1024))
        if rowB: a("ds_read_b128 %s, v%d offset:%d" % (R(36 + 8 * t, 4), 14 + (t & 1), ch * 4096 + (t >> 1) * 1024))
        else:    a("ds_read_b128 %s, v11 offset:%d" % (R(36 + 8 * t, 4), ch * 4096 + t * 1024))
    for t in range(4):
        a("s_waitcnt lgkmcnt(%d)" % (6 - 2 * t))
        a("v_mfma_f32_32x32x16_bf16 %s, %s, %s, %s" % (R(ACC, 16), R(32 + 8 * t, 4), R(36 + 8 * t, 4), "0" if (first and t == 0) else R(ACC, 16)))
        if hook: hook(36 + 8 * t)
PRE = 4
def g64_run(k, general, rowB, marks, hook=None, first=True):
    a = k.a
    for ch in range(8):
        a.wait_vm(marks[ch]); a("s_barrier")
        if ch == 0: k.mark()
        if ch + PRE < 8:
            g64_issue(a, ch + PRE, general); marks.append(a.vm - 1)
        g64_compute(a, ch, rowB, first and ch == 0, hook)
    k.mark()

def uc_store(a):
    for p in range(8): a("v_cvt_pk_bf16_f32 v%d, v%d, v%d" % (32 + p, ACC + 2 * p, ACC + 2 * p + 1))
    for p in range(8): a("buffer_store_dword v%d, v5, s[8:11], s%d offen" % (32 + p, 64 + p))
def uc_addr(a):
    a("s_lshl_b32 s40, s44, 17\ns_lshl_b32 s41, s46, 7\ns_add_u32 s40, s40, s41\ns_add_u32 s64, s40, 0x%x" % OFF["UC"])
    for p in range(1, 8): a("s_add_u32 s%d, s64, %d" % (64 + p, (8 * (p >> 2) + (p & 3)) * 8192))
    a("v_lshlrev_b32 v5, 15, v3\nv_lshl_add_u32 v5, v2, 2, v5")
def ssq_addr(a, dst):
    a("s_lshl_b32 %s, s46, 7\nv_lshlrev_b32 v6, 2, v2" % dst)

def rowmajor_addrs(a, rowstride_shift, rh_stride, bbase):
    a("""
    v_lshrrev_b32 v4, 2, v1
    v_lshrrev_b32 v7, 4, v1
    v_xor_b32 v7, v7, v1
    v_and_b32 v7, 3, v7
    v_lshlrev_b32 v7, 4, v7
    v_lshl_add_u32 v12, v4, %d, v7
    v_add_u32 v13, 0x%x, v12
    v_bfe_u32 v4, v1, 2, 2
    v_xor_b32 v4, v4, v3            ; h ^ x
    v_and_b32 v7, 15, v1
    v_lshlrev_b32 v7, 6, v7
    v_bfe_u32 v8, v1, 4, 1
    v_lshl_add_u32 v7, v8, 11, v7
    v_add_u32 v7, %s, v7
    v_lshl_add_u32 v14, v4, 4, v7
    v_xor_b32 v15, 32, v14
    """ % (rowstride_shift, rh_stride, bbase))

def k_oproj():
    k = K("oproj_kernel", 80); a = k.a
    a("s_cmp_ge_u32 s2, 256\ns_cbranch_scc1 L_op_end")
    srd_load(a, 8, "ws"); srd_load(a, 20, "ws")
    lane_setup(a)
    g64_ids(a)
    a("""
    s_cselect_b32 s50, 0x%x, 0x%x
    s_lshl_b32 s40, s45, 15
    s_add_u32 s50, s50, s40
    v_add_u32 v11, s49, v9
    s_lshl_b32 s40, s46, 15
    s_lshl_b32 s41, s44, 11
    s_add_u32 s40, s40, s41
    s_add_u32 s57, s40, 0x%x
    s_waitcnt lgkmcnt(0)
    """ % (0, OFF["OF"] - OFF["WOP"], OFF["UB"]))
    a("s_add_u32 s50, s50, 0x%x" % OFF["WOP"])
    k.mark()
    marks = []
    for ch in range(PRE):
        g64_issue(a, ch, False); marks.append(a.vm - 1)
        if ch == 1:
            a("buffer_load_dwordx4 v[64:67], v9, s[8:11], s57 offen\nbuffer_load_dwordx4 v[68:71], v9, s[8:11], s57 offen offset:1024")
    k.mark()
    uc_addr(a); ssq_addr(a, "s57")
    g64_run(k, False, False, marks)
    for p in range(8):
        a("v_lshlrev_b32 v32, 16, v%d\nv_and_b32 v33, 0xffff0000, v%d" % (64 + p, 64 + p))
        a("v_pk_add_f32 %s, %s, v[32:33]" % (R(ACC + 2 * p, 2), R(ACC + 2 * p, 2)))
    uc_store(a)
    a("v_add_u32 v4, s44, v3\nv_cmp_eq_u32 vcc, 0, v4\nv_cndmask_b32 v7, v%d, v4, vcc" % (ACC + 1))
    a("v_mul_f32 v7, v7, v7\nv_mul_f32 v8, v%d, v%d" % (ACC, ACC))
    for r in range(2, 16): a("v_fmac_f32 v%d, v%d, v%d" % (7 + (r & 1), ACC + r, ACC + r))
    a("""
    v_add_f32 v7, v7, v8
    v_mov_b32 v8, v7
    v_permlane32_swap_b32 v7, v8
    v_add_f32 v7, v7, v8
    s_add_u32 s41, s57, 0x%x
    s_mov_b32 exec_hi, 0
    buffer_atomic_add_f32 v7, v6, s[8:11], s41 offen
    """ % OFF["SSQ2"])
    a("L_op_end:")
    a("s_endpgm")
    return k, 256, 256, 131072

def k_final():
    k = K("final_kernel", 80); a = k.a
    a("s_cmp_ge_u32 s2, 256\ns_cbranch_scc1 L_fin_end")
    srd_load(a, 8, "ws"); srd_load(a, 12, "out"); srd_tab(a, 16)
    lane_setup(a)
    g64_ids(a)
    a("""
    s_cselect_b32 s50, 0x%x, 0
    s_cselect_b32 s58, 0, 0x%x
    s_add_u32 s50, s50, s58
    s_lshl_b32 s40, s45, 15
    s_add_u32 s50, s50, s40
    s_cmp_lt_u32 s3, 2
    s_cselect_b32 s58, 0, 0x%x
    s_add_u32 s58, s58, s40
    s_add_u32 s58, s58, 0x%x
    v_add_u32 v11, s49, v9
    s_cmp_lt_u32 s3, 2
    s_waitcnt lgkmcnt(0)
    s_cselect_b64 s[20:21], s[16:17], s[8:9]
    s_cselect_b32 s22, s18, s10
    s_mov_b32 s23, 0x00020000
    """ % (TOFF["T2"], OFF["UB"], OFF["OF"] + LAYER - OFF["WOF"], OFF["WOF"]))
    k.mark()
    marks = []
    for ch in range(PRE):
        g64_issue(a, ch, False); marks.append(a.vm - 1)
    k.mark()
    a("""
    s_and_b32 s40, s46, 1
    s_lshl_b32 s40, s40, 20
    s_lshr_b32 s41, s46, 1
    s_and_b32 s41, s41, 7
    s_lshl_b32 s41, s41, 16
    s_add_u32 s40, s40, s41
    s_lshr_b32 s41, s46, 4
    s_lshl_b32 s41, s41, 14
    s_add_u32 s40, s40, s41
    s_lshl_b32 s41, s44, 6
    s_add_u32 s57, s40, s41
    v_and_b32 v5, 15, v1
    v_lshlrev_b32 v5, 10, v5
    v_bfe_u32 v4, v1, 4, 1
    v_lshl_add_u32 v5, v4, 19, v5
    v_lshl_add_u32 v5, v3, 5, v5
    """)
    for ch in range(16):
        a.wait_vm(marks[ch]); a("s_barrier")
        if ch == 0: k.mark()
        n = ch + PRE
        if n == 8: a("s_mov_b64 s[20:21], s[8:9]\ns_mov_b32 s22, s10")
        if n < 16:
            g64_issue(a, n & 7, False, "s50" if n < 8 else "s58"); marks.append(a.vm - 1)
        g64_compute(a, ch & 7, False, ch == 0)
    k.mark()
    for p in range(8): a("v_cvt_pk_bf16_f32 v%d, v%d, v%d" % (32 + p, ACC + 2 * p, ACC + 2 * p + 1))
    a("buffer_store_dwordx4 v[32:35], v5, s[12:15], s57 offen\nbuffer_store_dwordx4 v[36:39], v5, s[12:15], s57 offen offset:16")
    a("L_fin_end:")
    a("s_endpgm")
    return k, 256, 256, 131072

def wprep_roles(k):
    a = k.a
    TF = 48; AC = 24
    a("L_wp:")
    srd_load(a, 20, "wo")
    a("""
    s_sub_u32 s44, s2, 256
    s_lshl_b32 s52, s3, 13
    v_lshrrev_b32 v4, 2, v1
    v_lshlrev_b32 v12, 10, v4
    v_and_b32 v4, 3, v1
    v_lshl_add_u32 v12, v4, 4, v12
    s_lshl_b32 s46, s3, 17
    s_lshl_b32 s41, s44, 6
    s_add_u32 s46, s46, s41
    v_bfe_u32 v4, v1, 2, 2
    v_lshl_add_u32 v4, v3, 2, v4
    v_lshlrev_b32 v4, 6, v4         ; (4h + r)*64
    v_and_b32 v5, 1, v1
    v_lshl_add_u32 v4, v5, 5, v4    ; 16*(cq&1) elements
    v_bfe_u32 v5, v1, 4, 1
    v_lshl_add_u32 v4, v5, 4, v4    ; 8*(G&1)
    v_bfe_u32 v5, v1, 1, 1
    v_lshl_add_u32 v4, v5, 3, v4    ; 4*(cq>>1)
    v_add_u32 v13, s52, v4
    s_lshl_b32 s40, s44, 15
    s_add_u32 s40, s40, s52
    s_add_u32 s40, s40, 0x%x
    s_add_u32 s41, s40, 4096
    s_waitcnt lgkmcnt(0)
    """ % OFF["WOF"])
    for i in range(8):
        a("s_add_u32 m0, s52, %d" % (i * 1024))
        a("buffer_load_dwordx4 v12, s[20:23], s46 offen lds")
        if i < 7: a("s_add_u32 s46, s46, %d" % (16 * 1024))
    a("s_waitcnt vmcnt(0)")
    for i in range(8):
        a("ds_read_b64_tr_b16 %s, v13 offset:%d" % (R(48 + 4 * i, 2), i * 1024))
        a("ds_read_b64_tr_b16 %s, v13 offset:%d" % (R(50 + 4 * i, 2), i * 1024 + 512))
        if i == 3 or i == 7:
            a("s_waitcnt lgkmcnt(0)")
            for x in range(i - 3, i + 1):
                a("buffer_store_dwordx4 %s, v9, s[8:11], s%d offen offset:%d" % (R(48 + 4 * x, 4), 40 + (x >> 2), 1024 * (x & 3)))
    a("s_endpgm")

def k_col():
    k2 = K("col2_kernel", 208); a = k2.a
    a("s_mov_b32 s47, 0x%x\ns_movk_i32 s61, 256\ns_mov_b32 s62, 0\ns_branch L_col" % OFF["SSQ2"])
    k = K("col1_kernel", 208); a = k.a
    a("s_mov_b32 s47, 0x%x\ns_movk_i32 s61, 256\ns_mov_b32 s62, 1" % OFF["SSQ0"])
    a("L_col:")
    X1, X2, X3 = 0, 8704, 17408
    RAW, SQ, UO, M1, M2, TWF, TWI, WW, WU, BUF = 16, 24, 32, 48, 80, 112, 128, 144, 176, 144
    WW = 16
    WW = 184
    WU = 176
    a("s_cmp_ge_u32 s2, s61\ns_cbranch_scc1 L_col_end")
    srd_load(a, 8, "ws"); srd_tab(a, 16)
    lane_setup(a)
    a("s_mov_b32 s48, %d\ns_mov_b32 s49, %d" % (TOFF["M1"], TOFF["M1"] + 4096))
    a("s_lshl_b32 s50, s3, 13\ns_add_u32 s50, s50, %d\ns_add_u32 s51, s50, 4096" % TOFF["M2"])
    for f in range(8): a("buffer_load_dwordx4 %s, v9, s[16:19], s%d offen offset:%d" % (R(M1 + 4 * f, 4), 48 + (f >> 2), 1024 * (f & 3)))
    def m2(lo, hi):
        for f in range(lo, hi): a("buffer_load_dwordx4 %s, v9, s[16:19], s%d offen offset:%d" % (R(M2 + 4 * f, 4), 50 + (f >> 2), 1024 * (f & 3)))
    a("""
    s_and_b32 s42, s2, 7
    s_lshr_b32 s43, s2, 3
    s_lshl_b32 s42, s42, 5
    s_add_u32 s42, s42, s43         ; slot k
    v_and_b32 v5, 15, v1            ; b_l
    v_lshrrev_b32 v6, 4, v1         ; q
    v_lshlrev_b32 v7, 2, v1
    s_lshl_b32 s44, s3, 11          ; w*2048
    s_lshl_b32 s45, s42, 13
    s_add_u32 s45, s45, s44         ; k*8192 + w*2048
    s_add_u32 s54, s45, 0x%x
    s_add_u32 s45, s45, 0x%x
    s_add_u32 s47, s47, s44
    v_lshlrev_b32 v15, 8, v3
    v_lshl_add_u32 v15, v2, 2, v15
    ; forward twiddles: b = 16w+b_l, j1 = 8q+v
    s_lshl_b32 s56, s3, 4
    v_add_u32 v10, s56, v5
    v_cvt_f32_u32 v10, v10
    v_mul_f32 v10, 0x3a000000, v10      ; b/2048
    v_lshlrev_b32 v11, 3, v6
    v_cvt_f32_u32 v11, v11
    v_mul_f32 v11, v10, v11
    """ % (OFF["WT"], OFF["UC"]))
    M2A = 0
    for i in range(8):
        if i == OPT.get("twa", 4):
            a("s_waitcnt lgkmcnt(0)")
            k.mark()
            for v in range(8): a("buffer_load_dword v%d, v7, s[8:11], s47 offen offset:%d" % (SQ + v, 256 * v))
            for v in range(8): a("buffer_load_dword v%d, v7, s[8:11], s45 offen offset:%d" % (RAW + v, 256 * v))
            m_in = a.vm - 1
            k.mark()
        a("v_fmamk_f32 v12, v10, 0x%x, v11" % fbits(i))
        a("v_cos_f32 v%d, v12\nv_sin_f32 v%d, v12" % (TWF + 2 * i, TWF + 2 * i + 1))
    a("""
    v_cvt_f32_u32 v10, v2
    v_mul_f32 v10, 0x3a000000, v10
    v_lshlrev_b32 v11, 1, v3
    v_add_u32 v11, s56, v11
    v_cvt_f32_u32 v11, v11
    v_mul_f32 v11, v10, v11
    s_mov_b32 s58, 0x3a000000
    s_mov_b32 s59, 0x3a000000
    """)
    for g in range(4):
        for e in range(2):
            i = 2 * g + e
            a("v_fmamk_f32 v12, v10, 0x%x, v11" % fbits(4 * g + e))
            a("v_cos_f32 v%d, v12\nv_sin_f32 v%d, v12" % (TWI + 2 * i, TWI + 2 * i + 1))
    for i in range(8): a("v_pk_mul_f32 %s, %s, s[58:59]" % (R(TWI + 2 * i, 2), R(TWI + 2 * i, 2)))
    a("""
    s_movk_i32 s57, 2176
    v_mul_lo_u32 v10, v6, s57           ; 8q*272
    v_lshl_add_u32 v10, v5, 2, v10
    s_lshl_b32 s58, s3, 6
    v_add_u32 v10, s58, v10             ; X1 write
    s_movk_i32 s57, 272
    v_mul_lo_u32 v11, v2, s57
    v_lshl_add_u32 v12, v3, 3, v11
    v_add_u32 v12, s58, v12             ; X2 write
    v_lshl_add_u32 v11, v3, 4, v11      ; X1/X2 read
    s_mul_i32 s58, s3, 2304
    s_movk_i32 s57, 288
    v_mul_lo_u32 v13, v3, s57
    v_lshl_add_u32 v13, v2, 2, v13
    v_add_u32 v13, s58, v13             ; X3 write
    s_movk_i32 s57, 144
    v_mul_lo_u32 v14, v5, s57
    v_add_u32 v14, s58, v14
    v_lshl_add_u32 v14, v6, 5, v14      ; X3 read: (16w+b_l)*144 + q*32
    s_lshr_b32 s40, s42, 2
    s_lshl_b32 s40, s40, 9
    s_and_b32 s41, s42, 3
    s_lshl_b32 s41, s41, 2
    s_add_u32 s40, s40, s41
    s_lshl_b32 s41, s3, 19
    s_add_u32 s40, s40, s41
    s_add_u32 s40, s40, 0x%x
    v_lshlrev_b32 v8, 15, v3
    v_lshl_add_u32 v8, v2, 4, v8        ; UB: (lane>>5)*32768 + m*16
    s_mov_b32 s60, 0x%x
    v_mov_b32 v4, 0x%x
    """ % (OFF["UB"], fbits(1.0 / 512), fbits(1e-5)))
    a("""
    s_and_b32 s63, s2, 1
    s_lshl_b32 s63, s63, 5
    s_add_u32 s63, s63, s43
    s_lshl_b32 s63, s63, 2
    s_add_u32 s63, s63, s3
    s_mul_i32 s63, s63, 6144
    s_add_u32 s63, s63, 0x%x
    s_add_u32 s64, s63, 4096
    v_lshlrev_b32 v180, 6, v1
    """ % OFF["WP"])
    def side():
        a("buffer_load_dword v181, v180, s[8:11], s63 offen")
        a("s_mov_b32 exec_hi, 0\nbuffer_load_dword v182, v180, s[8:11], s64 offen\ns_mov_b32 exec_hi, -1")
    def late():
        m2(M2A, 8)
        for i in range(8): a("buffer_load_dword v%d, v15, s[8:11], s54 offen offset:%d" % (WW + i, 128 * (4 * (i >> 1) + (i & 1))))
        return a.vm - 1
    if OPT.get("late", 0) == 0: m_w = late()
    k.mark()
    a.wait_vm(m_in - 8)
    for i in range(8): a("v_fma_f32 v%d, v%d, s60, v4" % (SQ + i, SQ + i))
    for i in range(8): a("v_rsq_f32 v%d, v%d" % (SQ + i, SQ + i))
    a.wait_vm(m_in)
    k.mark()
    T0 = BUF
    for v in range(8):
        a("v_and_b32 v%d, 0xffff0000, v%d\nv_lshlrev_b32 v%d, 16, v%d" % (UO + 2 * v, RAW + v, UO + 2 * v + 1, RAW + v))
        s = v & 1
        a("v_pk_mul_f32 %s, %s, %s op_sel:[0,%d] op_sel_hi:[1,%d]" % (R(T0 + 2 * v, 2), R(UO + 2 * v, 2), R(SQ + v - s, 2), s, s))
    a("s_cmp_eq_u32 s42, 0\ns_cbranch_scc1 L_col_z0")
    a("L_col_n0:")
    for v in range(8): a("v_cvt_pk_bf16_f32 v%d, v%d, v%d" % (SQ + v, T0 + 2 * v + 1, T0 + 2 * v))
    for t in range(2):
        for tau in range(4):
            d = R(T0 + 4 * tau, 4)
            a("v_mfma_f32_16x16x32_bf16 %s, %s, %s, %s" % (d, R(M1 + 4 * (2 * tau + t), 4), R(SQ + 4 * t, 4), "0" if t == 0 else d))
    if OPT.get("sd", 0) == 2: side()
    T1_ = BUF + 16
    for i in range(8):
        y, tw, t = R(T0 + 2 * i, 2), R(TWF + 2 * i, 2), R(T1_ + 2 * i, 2)
        a("v_pk_mul_f32 %s, %s, %s op_sel:[0,0] op_sel_hi:[1,0]" % (t, y, tw))
        a("v_pk_fma_f32 %s, %s, %s, %s op_sel:[1,1,0] op_sel_hi:[0,1,1] neg_hi:[1,0,0]" % (t, y, tw, t))
        a("v_cvt_pk_bf16_f32 v%d, v%d, v%d" % (SQ + i, T1_ + 2 * i, T1_ + 2 * i + 1))
        a("ds_write_b32 v10, v%d offset:%d" % (SQ + i, X1 + i * 272))
    a("s_waitcnt lgkmcnt(0)\ns_barrier")
    k.mark()
    for t in range(8): a("ds_read_b128 %s, v11 offset:%d" % (R(BUF + 4 * t, 4), X1 + 32 * t))
    a.wait_vm(m_w)
    AC = TWF
    for t in range(8):
        a("s_waitcnt lgkmcnt(%d)" % (7 - t))
        a("v_mfma_f32_32x32x16_bf16 %s, %s, %s, %s" % (R(AC, 16), R(M2 + 4 * t, 4), R(BUF + 4 * t, 4), "0" if t == 0 else R(AC, 16)))
        a("v_lshlrev_b32 v%d, 16, v%d\nv_and_b32 v%d, 0xffff0000, v%d" % (192 + 2 * t, WW + t, 193 + 2 * t, WW + t))
        if t == 7 and OPT.get("sd", 0) == 0: side()
    for i in range(8):
        y, w, t = R(AC + 2 * i, 2), R(192 + 2 * i, 2), R(T1_ + 2 * i, 2)
        a("v_pk_mul_f32 %s, %s, %s op_sel:[0,0] op_sel_hi:[1,0] neg_hi:[1,0]" % (t, y, w))
        a("v_pk_fma_f32 %s, %s, %s, %s op_sel:[1,1,0] op_sel_hi:[0,1,1] neg_lo:[1,0,0] neg_hi:[1,0,0]" % (t, y, w, t))
        a("v_cvt_pk_bf16_f32 v%d, v%d, v%d" % (SQ + i, T1_ + 2 * i, T1_ + 2 * i + 1))
        if i & 1: a("ds_write_b64 v12, %s offset:%d" % (R(SQ + i - 1, 2), X2 + 16 * (i >> 1)))
    a("s_waitcnt lgkmcnt(0)\ns_barrier")
    k.mark()
    for t in range(8): a("ds_read_b128 %s, v11 offset:%d" % (R(BUF + 4 * t, 4), X2 + 32 * t))
    for t in range(8):
        a("s_waitcnt lgkmcnt(%d)" % (7 - t))
        a("v_mfma_f32_32x32x16_bf16 %s, %s, %s, %s" % (R(AC, 16), R(M2 + 4 * t, 4), R(BUF + 4 * t, 4), "0" if t == 0 else R(AC, 16)))
        if t == 1 and OPT.get("sd", 0) == 1: side()
    for i in range(8):
        y, tw, t = R(AC + 2 * i, 2), R(TWI + 2 * i, 2), R(T0 + 2 * i, 2)
        a("v_pk_mul_f32 %s, %s, %s op_sel:[0,1] op_sel_hi:[0,0]" % (t, y, tw))
        a("v_pk_fma_f32 %s, %s, %s, %s op_sel:[1,0,0] op_sel_hi:[1,1,1] neg_lo:[1,0,0]" % (t, y, tw, t))
        a("v_cvt_pk_bf16_f32 v%d, v%d, v%d" % (SQ + i, T0 + 2 * i, T0 + 2 * i + 1))
        a("ds_write_b32 v13, v%d offset:%d" % (SQ + i, X3 + (4 * (i >> 1) + (i & 1)) * 144))
    a("s_waitcnt lgkmcnt(0)")
    for t in range(2): a("ds_read_b128 %s, v14 offset:%d" % (R(BUF + 4 * t, 4), X3 + 16 * t))
    a("s_waitcnt lgkmcnt(0)")
    k.mark()
    for t in range(2):
        for tau in range(4):
            d = R(UO + 4 * tau, 4)
            a("v_mfma_f32_16x16x32_bf16 %s, %s, %s, %s" % (d, R(M1 + 4 * (2 * tau + t), 4), R(BUF + 4 * t, 4), d))
    a("s_cmp_eq_u32 s42, 0\ns_cbranch_scc1 L_col_z1")
    a("L_col_n1:")
    for v in range(8):
        a("v_cvt_pk_bf16_f32 v%d, v%d, v%d" % (SQ + v, UO + 2 * v + 1, UO + 2 * v))
        a("buffer_store_dword v%d, v8, s[8:11], s40 offen" % (SQ + v))
        if v < 7: a("s_add_u32 s40, s40, 0x10000")
    a("L_col_end:")
    a("s_endpgm")
    a("L_col_z0:")
    for v in range(8): a("v_mov_b32 v%d, 0" % (T0 + 2 * v))
    a("s_branch L_col_n0")
    a("L_col_z1:")
    for v in range(8): a("v_and_b32 v%d, 0xffff0000, v%d" % (UO + 2 * v, RAW + v))
    a("s_branch L_col_n1")
    return (k, 256, 256, 32768), (k2, 256, 256, 32768)

from prep4 import k_prep
from mha6 import k_mha


def hexdump(arr):
    u = np.ascontiguousarray(arr).reshape(-1).view(np.uint64)
    return "\n".join(".quad " + ",".join("0x%x" % v for v in u[i:i + 8]) for i in range(0, len(u), 8)) + "\n"

def tables():
    s = '.section .rodata,"a"\n.p2align 12\n'
    c = cos512()
    for i in range(512): s += ".set C%d, 0x%04x\n" % (i, c[i])
    s += r""".altmacro
.macro E8 a,b,c,d,e,f,g,h
.short C\a,C\b,C\c,C\d,C\e,C\f,C\g,C\h
.endm
.macro F8 p,k
E8 %((\p)&511),%((\p+\k)&511),%((\p+2*\k)&511),%((\p+3*\k)&511),%((\p+4*\k)&511),%((\p+5*\k)&511),%((\p+6*\k)&511),%((\p+7*\k)&511)
.endm
.macro G8 i0,i1,p,d
E8 %((\i0)&511),%((\i1)&511),%((\p+\d)&511),%((\p+\d+128)&511),%((\p+2*\d)&511),%((\p+2*\d+128)&511),%((\p+3*\d)&511),%((\p+3*\d+128)&511)
.endm
.type tables,@object
tables:
.set n, 0
.rept 32768
.set cc, ((n>>11)<<5) + (n&19) + ((n&4)<<1) + ((n&8)>>1)
.set dd, (((n>>6)&31)<<4) + (((n>>5)&1)<<3)
.set lt2, ((cc-2)>>63)&1
.set kk, (cc>>1) + 256*(((cc-1)>>63)&1)
.set pp, kk*dd + lt2*64 + (1-lt2)*128*(cc&1)
F8 pp, kk
.set n, n+1
.endr
.set n, 0
.rept 32768
.set dd, ((n>>11)<<5) + (((n>>2)&1)<<4) + (((n>>3)&3)<<2) + (n&3)
.set kk, (((n>>6)&31)<<3) + (((n>>5)&1)<<2)
.set z, ((kk-1)>>63)&1
.set pp, kk*dd
.set i0, z*(256*dd+64) + (1-z)*pp
.set i1, z*64 + (1-z)*(pp+128)
G8 i0, i1, pp, dd
.set n, n+1
.endr
.noaltmacro
"""
    s += hexdump(tab_M1()) + hexdump(tab_M2())
    return s

def build(order=None):
    c1, c2 = k_col()
    me = sys.modules[__name__]
    m1, m2 = k_mha(me)
    ks = dict(prep=k_prep(me), col2=c2, col1=c1, mha2=m2, mha1=m1)
    order = order or ["prep", "col1", "mha1", "col2", "mha2"]
    ref = open("cdna_kernels/%s.s.ref" % NAME).read().split("\n")
    head = "\n".join(l for l in ref[:10]) + "\n"
    for o in order:
        k, g, b, lds = ks[o]
        head += "; @launch kernel=%s grid=(%d,1,1) block=(%d,1,1) lds=%d\n" % (k.name, g, b, lds)
    s = head + '.amdgcn_target "amdgcn-amd-amdhsa--gfx950"\n'
    for i, (k, *_) in enumerate(ks.values()):
        if i == 1: s += ".text\n.p2align 8\ncode_begin:\n"
        s += k.text()
    s += "code_end:\n"
    for k, *_ in ks.values(): s += k.desc()
    s += tables()
    return s

if __name__ == "__main__":
    out = sys.argv[1] if len(sys.argv) > 1 else "cdna_kernels/%s.s" % NAME
    STAMP = len(sys.argv) > 2 and "stamp" in sys.argv[2]
    for kv in sys.argv[3:]:
        key, val = kv.split("="); OPT[key] = int(val)
    open(out, "w").write(build())
    print("wrote", out)
```

```python
import sys, math
import numpy as np
from asmlib import Asm
from layouts3 import *

NAME = "interleave_layers__spectral_gfnet__softmax_full_mha__prompt"
KA = dict(x=0, wr=8, wi=16, wqkv=32, wo=40, out=48, dbg=56, ws=64)
SIZE = dict(x=2097152, wr=1052672, wi=1052672, wqkv=1572864, wo=524288, out=2097152, ws=WS_USED)
TOFF = dict(T1=0, T2=0x80000, M1=0x100000, M2=0x102000)
TSIZE = 0x10A000
LOG2E = 1.4426950408889634
STAMP = False
OPT = {}
def fbits(x): return int(np.float32(x).view(np.uint32))
def R(b, n): return "v[%d:%d]" % (b, b + n - 1)

class K:
    def __init__(self, name, vgpr, sgpr=96):
        self.name = name; self.vgpr = vgpr; self.sgpr = sgpr
        self.a = Asm()
        self.a.raw(".text\n.globl %s\n.p2align 8\n.type %s,@function" % (name, name))
        self.a(name + ":")
        self.nm = 0
        if OPT.get("diag"):
            idx = {"prep": 0, "col1": 1, "mha1": 2, "col2": 3, "mha2": 4}[name.replace("_kernel", "")]
            self.a.raw("    s_memrealtime s[84:85]\n    s_mov_b32 s86, %d" % idx)
        if STAMP:
            self.a.raw("    s_memrealtime s[84:85]\n    s_memtime s[86:87]\n    v_lshrrev_b32 v4, 6, v0\n    s_nop 1\n    v_readfirstlane_b32 s94, v4\n    s_mov_b32 s95, 0")
            self.a.raw("    s_waitcnt lgkmcnt(0)\n" + "\n".join("    s_mov_b32 s%d, s86" % (24 + 2 * i) for i in range(8)))
    def mark(self, i=None):
        if STAMP:
            if i is None: i = self.nm
            self.nm = i + 1
            assert i < 7
            self.a.raw("    s_memtime s[%d:%d]" % (24 + 2 * i, 25 + 2 * i))
    def text(self):
        t = self.a.text()
        if OPT.get("diag") and "s_endpgm" in t:
            t = t.replace("    s_endpgm", "    s_branch %s_diag" % self.name)
            t += """%s_diag:
    s_waitcnt vmcnt(0) lgkmcnt(0)
    s_memrealtime s[88:89]
    s_load_dwordx2 s[80:81], s[0:1], 56
    s_mov_b32 s82, 256
    s_mov_b32 s83, 0x00020000
    s_waitcnt lgkmcnt(0)
    s_lshl_b32 s87, s86, 9
    s_sub_u32 s80, s80, s87
    s_subb_u32 s81, s81, 0
    s_lshl_b32 s87, s86, 3
    s_not_b32 s84, s84
    s_mov_b64 exec, 1
    v_mov_b32 v0, 0
    v_mov_b32 v4, s84
    v_mov_b32 v5, s88
    s_and_b32 s90, s2, 31
    s_cmp_eq_u32 s90, 0
    s_cbranch_scc0 %s_dend
    buffer_atomic_umax v4, v0, s[80:83], s87 offen
    buffer_atomic_umax v5, v0, s[80:83], s87 offen offset:4
%s_dend:
    s_endpgm
""" % (self.name, self.name, self.name)
        if STAMP and "s_endpgm" in t:
            t = t.replace("    s_endpgm", "    s_branch %s_stamp" % self.name)
            t += """%s_stamp:
    s_memtime s[38:39]
    s_waitcnt vmcnt(0) lgkmcnt(0)
    s_memrealtime s[88:89]
    s_memtime s[90:91]
    s_load_dwordx2 s[80:81], s[0:1], 64
    s_load_dwordx2 s[92:93], s[0:1], 56
    s_mov_b32 s82, 0x4000000
    s_mov_b32 s83, 0x00020000
    s_waitcnt lgkmcnt(0)
    s_lshr_b32 s92, s92, 9
    s_and_b32 s92, s92, 63
    s_lshl_b32 s92, s92, 20
    s_lshl_b32 s93, s2, 10
    s_add_u32 s92, s92, s93
    s_lshl_b32 s93, s94, 6
    s_add_u32 s92, s92, s93
    s_add_u32 s92, s92, 0x2000000
    s_sub_u32 s90, s90, s86
    s_mov_b64 exec, 1
    v_mov_b32 v0, 0
    v_mov_b32 v4, s84
    v_mov_b32 v5, s88
    v_mov_b32 v6, s90
    v_mov_b32 v7, s95
    buffer_store_dwordx4 v[4:7], v0, s[80:83], s92 offen
""" % self.name
            for i in range(8): t += "    s_sub_u32 s%d, s%d, s86\n    v_mov_b32 v%d, s%d\n" % (24 + 2 * i, 24 + 2 * i, 8 + i, 24 + 2 * i)
            t += "    buffer_store_dwordx4 v[8:11], v0, s[80:83], s92 offen offset:16\n    buffer_store_dwordx4 v[12:15], v0, s[80:83], s92 offen offset:32\n    s_endpgm\n"
        return t
    def desc(self):
        return """.section .rodata,"a"
.p2align 6
.amdhsa_kernel %s
  .amdhsa_next_free_vgpr %d
  .amdhsa_next_free_sgpr %d
  .amdhsa_accum_offset %d
  .amdhsa_group_segment_fixed_size 0
  .amdhsa_kernarg_size 72
  .amdhsa_user_sgpr_count 2
  .amdhsa_user_sgpr_kernarg_segment_ptr 1
  .amdhsa_system_sgpr_workgroup_id_x 1
.end_amdhsa_kernel
""" % (self.name, self.vgpr, self.sgpr, (self.vgpr + 3) // 4 * 4)

def srd_load(a, s, what):
    a("s_load_dwordx2 s[%d:%d], s[0:1], %d" % (s, s + 1, KA[what]))
    a("s_mov_b32 s%d, 0x%x" % (s + 2, SIZE[what]))
    a("s_mov_b32 s%d, 0x00020000" % (s + 3))
def srd_tab(a, s):
    a("s_getpc_b64 s[%d:%d]" % (s, s + 1))
    a.raw("    s_add_u32 s%d, s%d, tables@rel32@lo+4" % (s, s))
    a.raw("    s_addc_u32 s%d, s%d, tables@rel32@hi+12" % (s + 1, s + 1))
    a("s_mov_b32 s%d, 0x%x" % (s + 2, TSIZE))
    a("s_mov_b32 s%d, 0x00020000" % (s + 3))
def lane_setup(a):
    a("""
    v_lshrrev_b32 v4, 6, v0
    v_and_b32 v1, 63, v0
    v_readfirstlane_b32 s3, v4
    v_and_b32 v2, 31, v0
    v_lshrrev_b32 v3, 5, v1
    v_lshlrev_b32 v9, 4, v1
    """)

ACC = 16
def g64_ids(a):
    a("""
    s_and_b32 s40, s2, 7
    s_lshr_b32 s41, s2, 3
    s_and_b32 s42, s40, 1
    s_lshl_b32 s42, s42, 2
    s_and_b32 s47, s41, 3
    s_add_u32 s42, s42, s47         ; cb
    s_lshr_b32 s43, s40, 1
    s_lshl_b32 s43, s43, 3
    s_lshr_b32 s48, s41, 2
    s_add_u32 s43, s43, s48         ; rb
    s_lshl_b32 s47, s47, 1
    s_add_u32 s51, s47, s48         ; rot (mod 8 applied later)
    s_lshr_b32 s40, s3, 1
    s_and_b32 s41, s3, 1
    s_lshl_b32 s44, s42, 1
    s_add_u32 s44, s44, s40
    s_lshl_b32 s46, s43, 1
    s_add_u32 s46, s46, s41
    s_lshl_b32 s52, s3, 15
    s_lshl_b32 s40, s40, 15
    v_add_u32 v10, s40, v9
    s_lshl_b32 s40, s41, 15
    s_add_u32 s49, s40, 0x10000
    s_cmp_lt_u32 s3, 2
    s_cselect_b32 s45, s42, s43
    s_lshl_b32 s45, s45, 1
    s_add_u32 s45, s45, s41
    s_cmp_lt_u32 s3, 2
    """)
def g64_issue(a, ch, general, base="s50"):
    a("s_add_u32 s53, s51, %d\ns_and_b32 s53, s53, 7" % ch)
    if general:
        a("s_lshl_b32 s53, s53, s54\ns_add_u32 s53, s53, %s\ns_add_u32 s56, s53, s55" % base)
        for i in range(4):
            a("s_add_u32 m0, s52, %d" % (ch * 4096 + i * 1024))
            a("buffer_load_dwordx4 v%d, s[20:23], s%d offen lds" % (12 + (i >> 1), 53 if i % 2 == 0 else 56))
    else:
        a("s_lshl_b32 s53, s53, 12\ns_add_u32 m0, s52, %d\ns_add_u32 s53, s53, %s" % (ch * 4096, base))
        for i in range(4):
            a("buffer_load_dwordx4 v9, s[20:23], s53 offen offset:%d lds" % (i * 1024))
def g64_compute(a, ch, rowB, first, hook=None):
    for t in range(4):
        a("ds_read_b128 %s, v10 offset:%d" % (R(32 + 8 * t, 4), ch * 4096 + t * 1024))
        if rowB: a("ds_read_b128 %s, v%d offset:%d" % (R(36 + 8 * t, 4), 14 + (t & 1), ch * 4096 + (t >> 1) * 1024))
        else:    a("ds_read_b128 %s, v11 offset:%d" % (R(36 + 8 * t, 4), ch * 4096 + t * 1024))
    for t in range(4):
        a("s_waitcnt lgkmcnt(%d)" % (6 - 2 * t))
        a("v_mfma_f32_32x32x16_bf16 %s, %s, %s, %s" % (R(ACC, 16), R(32 + 8 * t, 4), R(36 + 8 * t, 4), "0" if (first and t == 0) else R(ACC, 16)))
        if hook: hook(36 + 8 * t)
PRE = 4
def g64_run(k, general, rowB, marks, hook=None, first=True):
    a = k.a
    for ch in range(8):
        a.wait_vm(marks[ch]); a("s_barrier")
        if ch == 0: k.mark()
        if ch + PRE < 8:
            g64_issue(a, ch + PRE, general); marks.append(a.vm - 1)
        g64_compute(a, ch, rowB, first and ch == 0, hook)
    k.mark()

def uc_store(a):
    for p in range(8): a("v_cvt_pk_bf16_f32 v%d, v%d, v%d" % (32 + p, ACC + 2 * p, ACC + 2 * p + 1))
    for p in range(8): a("buffer_store_dword v%d, v5, s[8:11], s%d offen" % (32 + p, 64 + p))
def uc_addr(a):
    a("s_lshl_b32 s40, s44, 17\ns_lshl_b32 s41, s46, 7\ns_add_u32 s40, s40, s41\ns_add_u32 s64, s40, 0x%x" % OFF["UC"])
    for p in range(1, 8): a("s_add_u32 s%d, s64, %d" % (64 + p, (8 * (p >> 2) + (p & 3)) * 8192))
    a("v_lshlrev_b32 v5, 15, v3\nv_lshl_add_u32 v5, v2, 2, v5")
def ssq_addr(a, dst):
    a("s_lshl_b32 %s, s46, 7\nv_lshlrev_b32 v6, 2, v2" % dst)

def rowmajor_addrs(a, rowstride_shift, rh_stride, bbase):
    a("""
    v_lshrrev_b32 v4, 2, v1
    v_lshrrev_b32 v7, 4, v1
    v_xor_b32 v7, v7, v1
    v_and_b32 v7, 3, v7
    v_lshlrev_b32 v7, 4, v7
    v_lshl_add_u32 v12, v4, %d, v7
    v_add_u32 v13, 0x%x, v12
    v_bfe_u32 v4, v1, 2, 2
    v_xor_b32 v4, v4, v3            ; h ^ x
    v_and_b32 v7, 15, v1
    v_lshlrev_b32 v7, 6, v7
    v_bfe_u32 v8, v1, 4, 1
    v_lshl_add_u32 v7, v8, 11, v7
    v_add_u32 v7, %s, v7
    v_lshl_add_u32 v14, v4, 4, v7
    v_xor_b32 v15, 32, v14
    """ % (rowstride_shift, rh_stride, bbase))

def k_oproj():
    k = K("oproj_kernel", 80); a = k.a
    a("s_cmp_ge_u32 s2, 256\ns_cbranch_scc1 L_op_end")
    srd_load(a, 8, "ws"); srd_load(a, 20, "ws")
    lane_setup(a)
    g64_ids(a)
    a("""
    s_cselect_b32 s50, 0x%x, 0x%x
    s_lshl_b32 s40, s45, 15
    s_add_u32 s50, s50, s40
    v_add_u32 v11, s49, v9
    s_lshl_b32 s40, s46, 15
    s_lshl_b32 s41, s44, 11
    s_add_u32 s40, s40, s41
    s_add_u32 s57, s40, 0x%x
    s_waitcnt lgkmcnt(0)
    """ % (0, OFF["OF"] - OFF["WOP"], OFF["UB"]))
    a("s_add_u32 s50, s50, 0x%x" % OFF["WOP"])
    k.mark()
    marks = []
    for ch in range(PRE):
        g64_issue(a, ch, False); marks.append(a.vm - 1)
        if ch == 1:
            a("buffer_load_dwordx4 v[64:67], v9, s[8:11], s57 offen\nbuffer_load_dwordx4 v[68:71], v9, s[8:11], s57 offen offset:1024")
    k.mark()
    uc_addr(a); ssq_addr(a, "s57")
    g64_run(k, False, False, marks)
    for p in range(8):
        a("v_lshlrev_b32 v32, 16, v%d\nv_and_b32 v33, 0xffff0000, v%d" % (64 + p, 64 + p))
        a("v_pk_add_f32 %s, %s, v[32:33]" % (R(ACC + 2 * p, 2), R(ACC + 2 * p, 2)))
    uc_store(a)
    a("v_add_u32 v4, s44, v3\nv_cmp_eq_u32 vcc, 0, v4\nv_cndmask_b32 v7, v%d, v4, vcc" % (ACC + 1))
    a("v_mul_f32 v7, v7, v7\nv_mul_f32 v8, v%d, v%d" % (ACC, ACC))
    for r in range(2, 16): a("v_fmac_f32 v%d, v%d, v%d" % (7 + (r & 1), ACC + r, ACC + r))
    a("""
    v_add_f32 v7, v7, v8
    v_mov_b32 v8, v7
    v_permlane32_swap_b32 v7, v8
    v_add_f32 v7, v7, v8
    s_add_u32 s41, s57, 0x%x
    s_mov_b32 exec_hi, 0
    buffer_atomic_add_f32 v7, v6, s[8:11], s41 offen
    """ % OFF["SSQ2"])
    a("L_op_end:")
    a("s_endpgm")
    return k, 256, 256, 131072

def k_final():
    k = K("final_kernel", 80); a = k.a
    a("s_cmp_ge_u32 s2, 256\ns_cbranch_scc1 L_fin_end")
    srd_load(a, 8, "ws"); srd_load(a, 12, "out"); srd_tab(a, 16)
    lane_setup(a)
    g64_ids(a)
    a("""
    s_cselect_b32 s50, 0x%x, 0
    s_cselect_b32 s58, 0, 0x%x
    s_add_u32 s50, s50, s58
    s_lshl_b32 s40, s45, 15
    s_add_u32 s50, s50, s40
    s_cmp_lt_u32 s3, 2
    s_cselect_b32 s58, 0, 0x%x
    s_add_u32 s58, s58, s40
    s_add_u32 s58, s58, 0x%x
    v_add_u32 v11, s49, v9
    s_cmp_lt_u32 s3, 2
    s_waitcnt lgkmcnt(0)
    s_cselect_b64 s[20:21], s[16:17], s[8:9]
    s_cselect_b32 s22, s18, s10
    s_mov_b32 s23, 0x00020000
    """ % (TOFF["T2"], OFF["UB"], OFF["OF"] + LAYER - OFF["WOF"], OFF["WOF"]))
    k.mark()
    marks = []
    for ch in range(PRE):
        g64_issue(a, ch, False); marks.append(a.vm - 1)
    k.mark()
    a("""
    s_and_b32 s40, s46, 1
    s_lshl_b32 s40, s40, 20
    s_lshr_b32 s41, s46, 1
    s_and_b32 s41, s41, 7
    s_lshl_b32 s41, s41, 16
    s_add_u32 s40, s40, s41
    s_lshr_b32 s41, s46, 4
    s_lshl_b32 s41, s41, 14
    s_add_u32 s40, s40, s41
    s_lshl_b32 s41, s44, 6
    s_add_u32 s57, s40, s41
    v_and_b32 v5, 15, v1
    v_lshlrev_b32 v5, 10, v5
    v_bfe_u32 v4, v1, 4, 1
    v_lshl_add_u32 v5, v4, 19, v5
    v_lshl_add_u32 v5, v3, 5, v5
    """)
    for ch in range(16):
        a.wait_vm(marks[ch]); a("s_barrier")
        if ch == 0: k.mark()
        n = ch + PRE
        if n == 8: a("s_mov_b64 s[20:21], s[8:9]\ns_mov_b32 s22, s10")
        if n < 16:
            g64_issue(a, n & 7, False, "s50" if n < 8 else "s58"); marks.append(a.vm - 1)
        g64_compute(a, ch & 7, False, ch == 0)
    k.mark()
    for p in range(8): a("v_cvt_pk_bf16_f32 v%d, v%d, v%d" % (32 + p, ACC + 2 * p, ACC + 2 * p + 1))
    a("buffer_store_dwordx4 v[32:35], v5, s[12:15], s57 offen\nbuffer_store_dwordx4 v[36:39], v5, s[12:15], s57 offen offset:16")
    a("L_fin_end:")
    a("s_endpgm")
    return k, 256, 256, 131072

def wprep_roles(k):
    a = k.a
    TF = 48; AC = 24
    a("L_wp:")
    srd_load(a, 20, "wo")
    a("""
    s_sub_u32 s44, s2, 256
    s_lshl_b32 s52, s3, 13
    v_lshrrev_b32 v4, 2, v1
    v_lshlrev_b32 v12, 10, v4
    v_and_b32 v4, 3, v1
    v_lshl_add_u32 v12, v4, 4, v12
    s_lshl_b32 s46, s3, 17
    s_lshl_b32 s41, s44, 6
    s_add_u32 s46, s46, s41
    v_bfe_u32 v4, v1, 2, 2
    v_lshl_add_u32 v4, v3, 2, v4
    v_lshlrev_b32 v4, 6, v4         ; (4h + r)*64
    v_and_b32 v5, 1, v1
    v_lshl_add_u32 v4, v5, 5, v4    ; 16*(cq&1) elements
    v_bfe_u32 v5, v1, 4, 1
    v_lshl_add_u32 v4, v5, 4, v4    ; 8*(G&1)
    v_bfe_u32 v5, v1, 1, 1
    v_lshl_add_u32 v4, v5, 3, v4    ; 4*(cq>>1)
    v_add_u32 v13, s52, v4
    s_lshl_b32 s40, s44, 15
    s_add_u32 s40, s40, s52
    s_add_u32 s40, s40, 0x%x
    s_add_u32 s41, s40, 4096
    s_waitcnt lgkmcnt(0)
    """ % OFF["WOF"])
    for i in range(8):
        a("s_add_u32 m0, s52, %d" % (i * 1024))
        a("buffer_load_dwordx4 v12, s[20:23], s46 offen lds")
        if i < 7: a("s_add_u32 s46, s46, %d" % (16 * 1024))
    a("s_waitcnt vmcnt(0)")
    for i in range(8):
        a("ds_read_b64_tr_b16 %s, v13 offset:%d" % (R(48 + 4 * i, 2), i * 1024))
        a("ds_read_b64_tr_b16 %s, v13 offset:%d" % (R(50 + 4 * i, 2), i * 1024 + 512))
        if i == 3 or i == 7:
            a("s_waitcnt lgkmcnt(0)")
            for x in range(i - 3, i + 1):
                a("buffer_store_dwordx4 %s, v9, s[8:11], s%d offen offset:%d" % (R(48 + 4 * x, 4), 40 + (x >> 2), 1024 * (x & 3)))
    a("s_endpgm")

def k_col():
    k2 = K("col2_kernel", 208); a = k2.a
    a("s_mov_b32 s47, 0x%x\ns_movk_i32 s61, 256\ns_mov_b32 s62, 0\ns_branch L_col" % OFF["SSQ2"])
    k = K("col1_kernel", 208); a = k.a
    a("s_mov_b32 s47, 0x%x\ns_movk_i32 s61, 256\ns_mov_b32 s62, 1" % OFF["SSQ0"])
    a("L_col:")
    X1, X2, X3 = 0, 8704, 17408
    RAW, SQ, UO, M1, M2, TWF, TWI, WW, WU, BUF = 16, 24, 32, 48, 80, 112, 128, 144, 176, 144
    WW = 16
    WW = 184
    WU = 176
    a("s_cmp_ge_u32 s2, s61\ns_cbranch_scc1 L_col_end")
    srd_load(a, 8, "ws"); srd_tab(a, 16)
    lane_setup(a)
    a("s_mov_b32 s48, %d\ns_mov_b32 s49, %d" % (TOFF["M1"], TOFF["M1"] + 4096))
    a("s_lshl_b32 s50, s3, 13\ns_add_u32 s50, s50, %d\ns_add_u32 s51, s50, 4096" % TOFF["M2"])
    for f in range(8): a("buffer_load_dwordx4 %s, v9, s[16:19], s%d offen offset:%d" % (R(M1 + 4 * f, 4), 48 + (f >> 2), 1024 * (f & 3)))
    def m2(lo, hi):
        for f in range(lo, hi): a("buffer_load_dwordx4 %s, v9, s[16:19], s%d offen offset:%d" % (R(M2 + 4 * f, 4), 50 + (f >> 2), 1024 * (f & 3)))
    a("""
    s_and_b32 s42, s2, 7
    s_lshr_b32 s43, s2, 3
    s_lshl_b32 s42, s42, 5
    s_add_u32 s42, s42, s43         ; slot k
    v_and_b32 v5, 15, v1            ; b_l
    v_lshrrev_b32 v6, 4, v1         ; q
    v_lshlrev_b32 v7, 2, v1
    s_lshl_b32 s44, s3, 11          ; w*2048
    s_lshl_b32 s45, s42, 13
    s_add_u32 s45, s45, s44         ; k*8192 + w*2048
    s_add_u32 s54, s45, 0x%x
    s_add_u32 s45, s45, 0x%x
    s_add_u32 s47, s47, s44
    v_lshlrev_b32 v15, 8, v3
    v_lshl_add_u32 v15, v2, 2, v15
    ; forward twiddles: b = 16w+b_l, j1 = 8q+v
    s_lshl_b32 s56, s3, 4
    v_add_u32 v10, s56, v5
    v_cvt_f32_u32 v10, v10
    v_mul_f32 v10, 0x3a000000, v10      ; b/2048
    v_lshlrev_b32 v11, 3, v6
    v_cvt_f32_u32 v11, v11
    v_mul_f32 v11, v10, v11
    """ % (OFF["WT"], OFF["UC"]))
    M2A = 0
    for i in range(8):
        if i == OPT.get("twa", 4):
            a("s_waitcnt lgkmcnt(0)")
            k.mark()
            for v in range(8): a("buffer_load_dword v%d, v7, s[8:11], s47 offen offset:%d" % (SQ + v, 256 * v))
            for v in range(8): a("buffer_load_dword v%d, v7, s[8:11], s45 offen offset:%d" % (RAW + v, 256 * v))
            m_in = a.vm - 1
            k.mark()
        a("v_fmamk_f32 v12, v10, 0x%x, v11" % fbits(i))
        a("v_cos_f32 v%d, v12\nv_sin_f32 v%d, v12" % (TWF + 2 * i, TWF + 2 * i + 1))
    a("""
    v_cvt_f32_u32 v10, v2
    v_mul_f32 v10, 0x3a000000, v10
    v_lshlrev_b32 v11, 1, v3
    v_add_u32 v11, s56, v11
    v_cvt_f32_u32 v11, v11
    v_mul_f32 v11, v10, v11
    s_mov_b32 s58, 0x3a000000
    s_mov_b32 s59, 0x3a000000
    """)
    for g in range(4):
        for e in range(2):
            i = 2 * g + e
            a("v_fmamk_f32 v12, v10, 0x%x, v11" % fbits(4 * g + e))
            a("v_cos_f32 v%d, v12\nv_sin_f32 v%d, v12" % (TWI + 2 * i, TWI + 2 * i + 1))
    for i in range(8): a("v_pk_mul_f32 %s, %s, s[58:59]" % (R(TWI + 2 * i, 2), R(TWI + 2 * i, 2)))
    a("""
    s_movk_i32 s57, 2176
    v_mul_lo_u32 v10, v6, s57           ; 8q*272
    v_lshl_add_u32 v10, v5, 2, v10
    s_lshl_b32 s58, s3, 6
    v_add_u32 v10, s58, v10             ; X1 write
    s_movk_i32 s57, 272
    v_mul_lo_u32 v11, v2, s57
    v_lshl_add_u32 v12, v3, 3, v11
    v_add_u32 v12, s58, v12             ; X2 write
    v_lshl_add_u32 v11, v3, 4, v11      ; X1/X2 read
    s_mul_i32 s58, s3, 2304
    s_movk_i32 s57, 288
    v_mul_lo_u32 v13, v3, s57
    v_lshl_add_u32 v13, v2, 2, v13
    v_add_u32 v13, s58, v13             ; X3 write
    s_movk_i32 s57, 144
    v_mul_lo_u32 v14, v5, s57
    v_add_u32 v14, s58, v14
    v_lshl_add_u32 v14, v6, 5, v14      ; X3 read: (16w+b_l)*144 + q*32
    s_lshr_b32 s40, s42, 2
    s_lshl_b32 s40, s40, 9
    s_and_b32 s41, s42, 3
    s_lshl_b32 s41, s41, 2
    s_add_u32 s40, s40, s41
    s_lshl_b32 s41, s3, 19
    s_add_u32 s40, s40, s41
    s_add_u32 s40, s40, 0x%x
    v_lshlrev_b32 v8, 15, v3
    v_lshl_add_u32 v8, v2, 4, v8        ; UB: (lane>>5)*32768 + m*16
    s_mov_b32 s60, 0x%x
    v_mov_b32 v4, 0x%x
    """ % (OFF["UB"], fbits(1.0 / 512), fbits(1e-5)))
    a("""
    s_and_b32 s63, s2, 1
    s_lshl_b32 s63, s63, 5
    s_add_u32 s63, s63, s43
    s_lshl_b32 s63, s63, 2
    s_add_u32 s63, s63, s3
    s_mul_i32 s63, s63, 6144
    s_add_u32 s63, s63, 0x%x
    s_add_u32 s64, s63, 4096
    v_lshlrev_b32 v180, 6, v1
    """ % OFF["WP"])
    def side():
        a("buffer_load_dword v181, v180, s[8:11], s63 offen")
        a("s_mov_b32 exec_hi, 0\nbuffer_load_dword v182, v180, s[8:11], s64 offen\ns_mov_b32 exec_hi, -1")
    def late():
        m2(M2A, 8)
        for i in range(8): a("buffer_load_dword v%d, v15, s[8:11], s54 offen offset:%d" % (WW + i, 128 * (4 * (i >> 1) + (i & 1))))
        return a.vm - 1
    if OPT.get("late", 0) == 0: m_w = late()
    k.mark()
    a.wait_vm(m_in - 8)
    for i in range(8): a("v_fma_f32 v%d, v%d, s60, v4" % (SQ + i, SQ + i))
    for i in range(8): a("v_rsq_f32 v%d, v%d" % (SQ + i, SQ + i))
    a.wait_vm(m_in)
    k.mark()
    T0 = BUF
    for v in range(8):
        a("v_and_b32 v%d, 0xffff0000, v%d\nv_lshlrev_b32 v%d, 16, v%d" % (UO + 2 * v, RAW + v, UO + 2 * v + 1, RAW + v))
        s = v & 1
        a("v_pk_mul_f32 %s, %s, %s op_sel:[0,%d] op_sel_hi:[1,%d]" % (R(T0 + 2 * v, 2), R(UO + 2 * v, 2), R(SQ + v - s, 2), s, s))
    a("s_cmp_eq_u32 s42, 0\ns_cbranch_scc1 L_col_z0")
    a("L_col_n0:")
    for v in range(8): a("v_cvt_pk_bf16_f32 v%d, v%d, v%d" % (SQ + v, T0 + 2 * v + 1, T0 + 2 * v))
    for t in range(2):
        for tau in range(4):
            d = R(T0 + 4 * tau, 4)
            a("v_mfma_f32_16x16x32_bf16 %s, %s, %s, %s" % (d, R(M1 + 4 * (2 * tau + t), 4), R(SQ + 4 * t, 4), "0" if t == 0 else d))
    if OPT.get("sd", 0) == 2: side()
    T1_ = BUF + 16
    for i in range(8):
        y, tw, t = R(T0 + 2 * i, 2), R(TWF + 2 * i, 2), R(T1_ + 2 * i, 2)
        a("v_pk_mul_f32 %s, %s, %s op_sel:[0,0] op_sel_hi:[1,0]" % (t, y, tw))
        a("v_pk_fma_f32 %s, %s, %s, %s op_sel:[1,1,0] op_sel_hi:[0,1,1] neg_hi:[1,0,0]" % (t, y, tw, t))
        a("v_cvt_pk_bf16_f32 v%d, v%d, v%d" % (SQ + i, T1_ + 2 * i, T1_ + 2 * i + 1))
        a("ds_write_b32 v10, v%d offset:%d" % (SQ + i, X1 + i * 272))
    a("s_waitcnt lgkmcnt(0)\ns_barrier")
    k.mark()
    for t in range(8): a("ds_read_b128 %s, v11 offset:%d" % (R(BUF + 4 * t, 4), X1 + 32 * t))
    a.wait_vm(m_w)
    AC = TWF
    for t in range(8):
        a("s_waitcnt lgkmcnt(%d)" % (7 - t))
        a("v_mfma_f32_32x32x16_bf16 %s, %s, %s, %s" % (R(AC, 16), R(M2 + 4 * t, 4), R(BUF + 4 * t, 4), "0" if t == 0 else R(AC, 16)))
        a("v_lshlrev_b32 v%d, 16, v%d\nv_and_b32 v%d, 0xffff0000, v%d" % (192 + 2 * t, WW + t, 193 + 2 * t, WW + t))
        if t == 7 and OPT.get("sd", 0) == 0: side()
    for i in range(8):
        y, w, t = R(AC + 2 * i, 2), R(192 + 2 * i, 2), R(T1_ + 2 * i, 2)
        a("v_pk_mul_f32 %s, %s, %s op_sel:[0,0] op_sel_hi:[1,0] neg_hi:[1,0]" % (t, y, w))
        a("v_pk_fma_f32 %s, %s, %s, %s op_sel:[1,1,0] op_sel_hi:[0,1,1] neg_lo:[1,0,0] neg_hi:[1,0,0]" % (t, y, w, t))
        a("v_cvt_pk_bf16_f32 v%d, v%d, v%d" % (SQ + i, T1_ + 2 * i, T1_ + 2 * i + 1))
        if i & 1: a("ds_write_b64 v12, %s offset:%d" % (R(SQ + i - 1, 2), X2 + 16 * (i >> 1)))
    a("s_waitcnt lgkmcnt(0)\ns_barrier")
    k.mark()
    for t in range(8): a("ds_read_b128 %s, v11 offset:%d" % (R(BUF + 4 * t, 4), X2 + 32 * t))
    for t in range(8):
        a("s_waitcnt lgkmcnt(%d)" % (7 - t))
        a("v_mfma_f32_32x32x16_bf16 %s, %s, %s, %s" % (R(AC, 16), R(M2 + 4 * t, 4), R(BUF + 4 * t, 4), "0" if t == 0 else R(AC, 16)))
        if t == 1 and OPT.get("sd", 0) == 1: side()
    for i in range(8):
        y, tw, t = R(AC + 2 * i, 2), R(TWI + 2 * i, 2), R(T0 + 2 * i, 2)
        a("v_pk_mul_f32 %s, %s, %s op_sel:[0,1] op_sel_hi:[0,0]" % (t, y, tw))
        a("v_pk_fma_f32 %s, %s, %s, %s op_sel:[1,0,0] op_sel_hi:[1,1,1] neg_lo:[1,0,0]" % (t, y, tw, t))
        a("v_cvt_pk_bf16_f32 v%d, v%d, v%d" % (SQ + i, T0 + 2 * i, T0 + 2 * i + 1))
        a("ds_write_b32 v13, v%d offset:%d" % (SQ + i, X3 + (4 * (i >> 1) + (i & 1)) * 144))
    a("s_waitcnt lgkmcnt(0)")
    for t in range(2): a("ds_read_b128 %s, v14 offset:%d" % (R(BUF + 4 * t, 4), X3 + 16 * t))
    a("s_waitcnt lgkmcnt(0)")
    k.mark()
    for t in range(2):
        for tau in range(4):
            d = R(UO + 4 * tau, 4)
            a("v_mfma_f32_16x16x32_bf16 %s, %s, %s, %s" % (d, R(M1 + 4 * (2 * tau + t), 4), R(BUF + 4 * t, 4), d))
    a("s_cmp_eq_u32 s42, 0\ns_cbranch_scc1 L_col_z1")
    a("L_col_n1:")
    for v in range(8):
        a("v_cvt_pk_bf16_f32 v%d, v%d, v%d" % (SQ + v, UO + 2 * v + 1, UO + 2 * v))
        a("buffer_store_dword v%d, v8, s[8:11], s40 offen" % (SQ + v))
        if v < 7: a("s_add_u32 s40, s40, 0x10000")
    a("L_col_end:")
    a("s_endpgm")
    a("L_col_z0:")
    for v in range(8): a("v_mov_b32 v%d, 0" % (T0 + 2 * v))
    a("s_branch L_col_n0")
    a("L_col_z1:")
    for v in range(8): a("v_and_b32 v%d, 0xffff0000, v%d" % (UO + 2 * v, RAW + v))
    a("s_branch L_col_n1")
    return (k, 256, 256, 32768), (k2, 256, 256, 32768)

from prep4 import k_prep
from mha6 import k_mha


def hexdump(arr):
    u = np.ascontiguousarray(arr).reshape(-1).view(np.uint64)
    return "\n".join(".quad " + ",".join("0x%x" % v for v in u[i:i + 8]) for i in range(0, len(u), 8)) + "\n"

def tables():
    s = '.section .rodata,"a"\n.p2align 12\n'
    c = cos512()
    for i in range(512): s += ".set C%d, 0x%04x\n" % (i, c[i])
    s += r""".altmacro
.macro E8 a,b,c,d,e,f,g,h
.short C\a,C\b,C\c,C\d,C\e,C\f,C\g,C\h
.endm
.macro F8 p,k
E8 %((\p)&511),%((\p+\k)&511),%((\p+2*\k)&511),%((\p+3*\k)&511),%((\p+4*\k)&511),%((\p+5*\k)&511),%((\p+6*\k)&511),%((\p+7*\k)&511)
.endm
.macro G8 i0,i1,p,d
E8 %((\i0)&511),%((\i1)&511),%((\p+\d)&511),%((\p+\d+128)&511),%((\p+2*\d)&511),%((\p+2*\d+128)&511),%((\p+3*\d)&511),%((\p+3*\d+128)&511)
.endm
.type tables,@object
tables:
.set n, 0
.rept 32768
.set cc, ((n>>11)<<5) + (n&19) + ((n&4)<<1) + ((n&8)>>1)
.set dd, (((n>>6)&31)<<4) + (((n>>5)&1)<<3)
.set lt2, ((cc-2)>>63)&1
.set kk, (cc>>1) + 256*(((cc-1)>>63)&1)
.set pp, kk*dd + lt2*64 + (1-lt2)*128*(cc&1)
F8 pp, kk
.set n, n+1
.endr
.set n, 0
.rept 32768
.set dd, ((n>>11)<<5) + (((n>>2)&1)<<4) + (((n>>3)&3)<<2) + (n&3)
.set kk, (((n>>6)&31)<<3) + (((n>>5)&1)<<2)
.set z, ((kk-1)>>63)&1
.set pp, kk*dd
.set i0, z*(256*dd+64) + (1-z)*pp
.set i1, z*64 + (1-z)*(pp+128)
G8 i0, i1, pp, dd
.set n, n+1
.endr
.noaltmacro
"""
    s += hexdump(tab_M1()) + hexdump(tab_M2())
    return s

def build(order=None):
    c1, c2 = k_col()
    me = sys.modules[__name__]
    m1, m2 = k_mha(me)
    ks = dict(prep=k_prep(me), col2=c2, col1=c1, mha2=m2, mha1=m1)
    order = order or ["prep", "col1", "mha1", "col2", "mha2"]
    ref = open("cdna_kernels/%s.s.ref" % NAME).read().split("\n")
    head = "\n".join(l for l in ref[:10]) + "\n"
    for o in order:
        k, g, b, lds = ks[o]
        head += "; @launch kernel=%s grid=(%d,1,1) block=(%d,1,1) lds=%d\n" % (k.name, g, b, lds)
    s = head + '.amdgcn_target "amdgcn-amd-amdhsa--gfx950"\n'
    for i, (k, *_) in enumerate(ks.values()):
        if i == 1: s += ".text\n.p2align 8\ncode_begin:\n"
        s += k.text()
    s += "code_end:\n"
    for k, *_ in ks.values(): s += k.desc()
    s += tables()
    return s

if __name__ == "__main__":
    out = sys.argv[1] if len(sys.argv) > 1 else "cdna_kernels/%s.s" % NAME
    STAMP = len(sys.argv) > 2 and "stamp" in sys.argv[2]
    for kv in sys.argv[3:]:
        key, val = kv.split("="); OPT[key] = int(val)
    open(out, "w").write(build())
    print("wrote", out)
```

```python
import sys, math
import numpy as np
from asmlib import Asm
from layouts3 import *

NAME = "interleave_layers__spectral_gfnet__softmax_full_mha__prompt"
KA = dict(x=0, wr=8, wi=16, wqkv=32, wo=40, out=48, dbg=56, ws=64)
SIZE = dict(x=2097152, wr=1052672, wi=1052672, wqkv=1572864, wo=524288, out=2097152, ws=WS_USED)
TOFF = dict(T1=0, T2=0x80000, M1=0x100000, M2=0x102000)
TSIZE = 0x10A000
LOG2E = 1.4426950408889634
STAMP = False
OPT = {}
def fbits(x): return int(np.float32(x).view(np.uint32))
def R(b, n): return "v[%d:%d]" % (b, b + n - 1)

class K:
    def __init__(self, name, vgpr, sgpr=96):
        self.name = name; self.vgpr = vgpr; self.sgpr = sgpr
        self.a = Asm()
        self.a.raw(".text\n.globl %s\n.p2align 8\n.type %s,@function" % (name, name))
        self.a(name + ":")
        self.nm = 0
        if OPT.get("diag"):
            idx = {"prep": 0, "col1": 1, "mha1": 2, "col2": 3, "mha2": 4}[name.replace("_kernel", "")]
            self.a.raw("    s_memrealtime s[84:85]\n    s_mov_b32 s86, %d" % idx)
        if STAMP:
            self.a.raw("    s_memrealtime s[84:85]\n    s_memtime s[86:87]\n    v_lshrrev_b32 v4, 6, v0\n    s_nop 1\n    v_readfirstlane_b32 s94, v4\n    s_mov_b32 s95, 0")
            self.a.raw("    s_waitcnt lgkmcnt(0)\n" + "\n".join("    s_mov_b32 s%d, s86" % (24 + 2 * i) for i in range(8)))
    def mark(self, i=None):
        if STAMP:
            if i is None: i = self.nm
            self.nm = i + 1
            assert i < 7
            self.a.raw("    s_memtime s[%d:%d]" % (24 + 2 * i, 25 + 2 * i))
    def text(self):
        t = self.a.text()
        if OPT.get("diag") and "s_endpgm" in t:
            t = t.replace("    s_endpgm", "    s_branch %s_diag" % self.name)
            t += """%s_diag:
    s_waitcnt vmcnt(0) lgkmcnt(0)
    s_memrealtime s[88:89]
    s_load_dwordx2 s[80:81], s[0:1], 56
    s_load_dwordx2 s[92:93], s[0:1], 64
    s_mov_b32 s82, 256
    s_mov_b32 s83, 0x00020000
    s_mov_b32 s94, 0x2000000
    s_mov_b32 s95, 0x00020000
    s_waitcnt lgkmcnt(0)
    s_lshl_b32 s87, s86, 3
    s_add_u32 s87, s87, 0x1f00000
    s_mov_b64 exec, 1
    v_mov_b32 v0, 0
    v_mov_b32 v4, s84
    v_mov_b32 v5, s88
    s_cmp_eq_u32 s2, 0
    s_cbranch_scc0 %s_dend
    buffer_store_dwordx2 v[4:5], v0, s[92:95], s87 offen sc1
    s_waitcnt vmcnt(0)
    s_mov_b32 s87, 0x1f00000
    buffer_load_dwordx4 v[8:11], v0, s[92:95], s87 offen sc1
    buffer_load_dwordx4 v[12:15], v0, s[92:95], s87 offen offset:16 sc1
    buffer_load_dwordx4 v[16:19], v0, s[92:95], s87 offen offset:32 sc1
    s_waitcnt vmcnt(0)
    buffer_store_dwordx4 v[8:11], v0, s[80:83], 0 offen
    buffer_store_dwordx4 v[12:15], v0, s[80:83], 0 offen offset:16
    buffer_store_dwordx4 v[16:19], v0, s[80:83], 0 offen offset:32
%s_dend:
    s_endpgm
""" % (self.name, self.name, self.name)
        if STAMP and "s_endpgm" in t:
            t = t.replace("    s_endpgm", "    s_branch %s_stamp" % self.name)
            t += """%s_stamp:
    s_memtime s[38:39]
    s_waitcnt vmcnt(0) lgkmcnt(0)
    s_memrealtime s[88:89]
    s_memtime s[90:91]
    s_load_dwordx2 s[80:81], s[0:1], 64
    s_load_dwordx2 s[92:93], s[0:1], 56
    s_mov_b32 s82, 0x4000000
    s_mov_b32 s83, 0x00020000
    s_waitcnt lgkmcnt(0)
    s_lshr_b32 s92, s92, 9
    s_and_b32 s92, s92, 63
    s_lshl_b32 s92, s92, 20
    s_lshl_b32 s93, s2, 10
    s_add_u32 s92, s92, s93
    s_lshl_b32 s93, s94, 6
    s_add_u32 s92, s92, s93
    s_add_u32 s92, s92, 0x2000000
    s_sub_u32 s90, s90, s86
    s_mov_b64 exec, 1
    v_mov_b32 v0, 0
    v_mov_b32 v4, s84
    v_mov_b32 v5, s88
    v_mov_b32 v6, s90
    v_mov_b32 v7, s95
    buffer_store_dwordx4 v[4:7], v0, s[80:83], s92 offen
""" % self.name
            for i in range(8): t += "    s_sub_u32 s%d, s%d, s86\n    v_mov_b32 v%d, s%d\n" % (24 + 2 * i, 24 + 2 * i, 8 + i, 24 + 2 * i)
            t += "    buffer_store_dwordx4 v[8:11], v0, s[80:83], s92 offen offset:16\n    buffer_store_dwordx4 v[12:15], v0, s[80:83], s92 offen offset:32\n    s_endpgm\n"
        return t
    def desc(self):
        return """.section .rodata,"a"
.p2align 6
.amdhsa_kernel %s
  .amdhsa_next_free_vgpr %d
  .amdhsa_next_free_sgpr %d
  .amdhsa_accum_offset %d
  .amdhsa_group_segment_fixed_size 0
  .amdhsa_kernarg_size 72
  .amdhsa_user_sgpr_count 2
  .amdhsa_user_sgpr_kernarg_segment_ptr 1
  .amdhsa_system_sgpr_workgroup_id_x 1
.end_amdhsa_kernel
""" % (self.name, self.vgpr, self.sgpr, (self.vgpr + 3) // 4 * 4)

def srd_load(a, s, what):
    a("s_load_dwordx2 s[%d:%d], s[0:1], %d" % (s, s + 1, KA[what]))
    a("s_mov_b32 s%d, 0x%x" % (s + 2, SIZE[what]))
    a("s_mov_b32 s%d, 0x00020000" % (s + 3))
def srd_tab(a, s):
    a("s_getpc_b64 s[%d:%d]" % (s, s + 1))
    a.raw("    s_add_u32 s%d, s%d, tables@rel32@lo+4" % (s, s))
    a.raw("    s_addc_u32 s%d, s%d, tables@rel32@hi+12" % (s + 1, s + 1))
    a("s_mov_b32 s%d, 0x%x" % (s + 2, TSIZE))
    a("s_mov_b32 s%d, 0x00020000" % (s + 3))
def lane_setup(a):
    a("""
    v_lshrrev_b32 v4, 6, v0
    v_and_b32 v1, 63, v0
    v_readfirstlane_b32 s3, v4
    v_and_b32 v2, 31, v0
    v_lshrrev_b32 v3, 5, v1
    v_lshlrev_b32 v9, 4, v1
    """)

ACC = 16
def g64_ids(a):
    a("""
    s_and_b32 s40, s2, 7
    s_lshr_b32 s41, s2, 3
    s_and_b32 s42, s40, 1
    s_lshl_b32 s42, s42, 2
    s_and_b32 s47, s41, 3
    s_add_u32 s42, s42, s47         ; cb
    s_lshr_b32 s43, s40, 1
    s_lshl_b32 s43, s43, 3
    s_lshr_b32 s48, s41, 2
    s_add_u32 s43, s43, s48         ; rb
    s_lshl_b32 s47, s47, 1
    s_add_u32 s51, s47, s48         ; rot (mod 8 applied later)
    s_lshr_b32 s40, s3, 1
    s_and_b32 s41, s3, 1
    s_lshl_b32 s44, s42, 1
    s_add_u32 s44, s44, s40
    s_lshl_b32 s46, s43, 1
    s_add_u32 s46, s46, s41
    s_lshl_b32 s52, s3, 15
    s_lshl_b32 s40, s40, 15
    v_add_u32 v10, s40, v9
    s_lshl_b32 s40, s41, 15
    s_add_u32 s49, s40, 0x10000
    s_cmp_lt_u32 s3, 2
    s_cselect_b32 s45, s42, s43
    s_lshl_b32 s45, s45, 1
    s_add_u32 s45, s45, s41
    s_cmp_lt_u32 s3, 2
    """)
def g64_issue(a, ch, general, base="s50"):
    a("s_add_u32 s53, s51, %d\ns_and_b32 s53, s53, 7" % ch)
    if general:
        a("s_lshl_b32 s53, s53, s54\ns_add_u32 s53, s53, %s\ns_add_u32 s56, s53, s55" % base)
        for i in range(4):
            a("s_add_u32 m0, s52, %d" % (ch * 4096 + i * 1024))
            a("buffer_load_dwordx4 v%d, s[20:23], s%d offen lds" % (12 + (i >> 1), 53 if i % 2 == 0 else 56))
    else:
        a("s_lshl_b32 s53, s53, 12\ns_add_u32 m0, s52, %d\ns_add_u32 s53, s53, %s" % (ch * 4096, base))
        for i in range(4):
            a("buffer_load_dwordx4 v9, s[20:23], s53 offen offset:%d lds" % (i * 1024))
def g64_compute(a, ch, rowB, first, hook=None):
    for t in range(4):
        a("ds_read_b128 %s, v10 offset:%d" % (R(32 + 8 * t, 4), ch * 4096 + t * 1024))
        if rowB: a("ds_read_b128 %s, v%d offset:%d" % (R(36 + 8 * t, 4), 14 + (t & 1), ch * 4096 + (t >> 1) * 1024))
        else:    a("ds_read_b128 %s, v11 offset:%d" % (R(36 + 8 * t, 4), ch * 4096 + t * 1024))
    for t in range(4):
        a("s_waitcnt lgkmcnt(%d)" % (6 - 2 * t))
        a("v_mfma_f32_32x32x16_bf16 %s, %s, %s, %s" % (R(ACC, 16), R(32 + 8 * t, 4), R(36 + 8 * t, 4), "0" if (first and t == 0) else R(ACC, 16)))
        if hook: hook(36 + 8 * t)
PRE = 4
def g64_run(k, general, rowB, marks, hook=None, first=True):
    a = k.a
    for ch in range(8):
        a.wait_vm(marks[ch]); a("s_barrier")
        if ch == 0: k.mark()
        if ch + PRE < 8:
            g64_issue(a, ch + PRE, general); marks.append(a.vm - 1)
        g64_compute(a, ch, rowB, first and ch == 0, hook)
    k.mark()

def uc_store(a):
    for p in range(8): a("v_cvt_pk_bf16_f32 v%d, v%d, v%d" % (32 + p, ACC + 2 * p, ACC + 2 * p + 1))
    for p in range(8): a("buffer_store_dword v%d, v5, s[8:11], s%d offen" % (32 + p, 64 + p))
def uc_addr(a):
    a("s_lshl_b32 s40, s44, 17\ns_lshl_b32 s41, s46, 7\ns_add_u32 s40, s40, s41\ns_add_u32 s64, s40, 0x%x" % OFF["UC"])
    for p in range(1, 8): a("s_add_u32 s%d, s64, %d" % (64 + p, (8 * (p >> 2) + (p & 3)) * 8192))
    a("v_lshlrev_b32 v5, 15, v3\nv_lshl_add_u32 v5, v2, 2, v5")
def ssq_addr(a, dst):
    a("s_lshl_b32 %s, s46, 7\nv_lshlrev_b32 v6, 2, v2" % dst)

def rowmajor_addrs(a, rowstride_shift, rh_stride, bbase):
    a("""
    v_lshrrev_b32 v4, 2, v1
    v_lshrrev_b32 v7, 4, v1
    v_xor_b32 v7, v7, v1
    v_and_b32 v7, 3, v7
    v_lshlrev_b32 v7, 4, v7
    v_lshl_add_u32 v12, v4, %d, v7
    v_add_u32 v13, 0x%x, v12
    v_bfe_u32 v4, v1, 2, 2
    v_xor_b32 v4, v4, v3            ; h ^ x
    v_and_b32 v7, 15, v1
    v_lshlrev_b32 v7, 6, v7
    v_bfe_u32 v8, v1, 4, 1
    v_lshl_add_u32 v7, v8, 11, v7
    v_add_u32 v7, %s, v7
    v_lshl_add_u32 v14, v4, 4, v7
    v_xor_b32 v15, 32, v14
    """ % (rowstride_shift, rh_stride, bbase))

def k_oproj():
    k = K("oproj_kernel", 80); a = k.a
    a("s_cmp_ge_u32 s2, 256\ns_cbranch_scc1 L_op_end")
    srd_load(a, 8, "ws"); srd_load(a, 20, "ws")
    lane_setup(a)
    g64_ids(a)
    a("""
    s_cselect_b32 s50, 0x%x, 0x%x
    s_lshl_b32 s40, s45, 15
    s_add_u32 s50, s50, s40
    v_add_u32 v11, s49, v9
    s_lshl_b32 s40, s46, 15
    s_lshl_b32 s41, s44, 11
    s_add_u32 s40, s40, s41
    s_add_u32 s57, s40, 0x%x
    s_waitcnt lgkmcnt(0)
    """ % (0, OFF["OF"] - OFF["WOP"], OFF["UB"]))
    a("s_add_u32 s50, s50, 0x%x" % OFF["WOP"])
    k.mark()
    marks = []
    for ch in range(PRE):
        g64_issue(a, ch, False); marks.append(a.vm - 1)
        if ch == 1:
            a("buffer_load_dwordx4 v[64:67], v9, s[8:11], s57 offen\nbuffer_load_dwordx4 v[68:71], v9, s[8:11], s57 offen offset:1024")
    k.mark()
    uc_addr(a); ssq_addr(a, "s57")
    g64_run(k, False, False, marks)
    for p in range(8):
        a("v_lshlrev_b32 v32, 16, v%d\nv_and_b32 v33, 0xffff0000, v%d" % (64 + p, 64 + p))
        a("v_pk_add_f32 %s, %s, v[32:33]" % (R(ACC + 2 * p, 2), R(ACC + 2 * p, 2)))
    uc_store(a)
    a("v_add_u32 v4, s44, v3\nv_cmp_eq_u32 vcc, 0, v4\nv_cndmask_b32 v7, v%d, v4, vcc" % (ACC + 1))
    a("v_mul_f32 v7, v7, v7\nv_mul_f32 v8, v%d, v%d" % (ACC, ACC))
    for r in range(2, 16): a("v_fmac_f32 v%d, v%d, v%d" % (7 + (r & 1), ACC + r, ACC + r))
    a("""
    v_add_f32 v7, v7, v8
    v_mov_b32 v8, v7
    v_permlane32_swap_b32 v7, v8
    v_add_f32 v7, v7, v8
    s_add_u32 s41, s57, 0x%x
    s_mov_b32 exec_hi, 0
    buffer_atomic_add_f32 v7, v6, s[8:11], s41 offen
    """ % OFF["SSQ2"])
    a("L_op_end:")
    a("s_endpgm")
    return k, 256, 256, 131072

def k_final():
    k = K("final_kernel", 80); a = k.a
    a("s_cmp_ge_u32 s2, 256\ns_cbranch_scc1 L_fin_end")
    srd_load(a, 8, "ws"); srd_load(a, 12, "out"); srd_tab(a, 16)
    lane_setup(a)
    g64_ids(a)
    a("""
    s_cselect_b32 s50, 0x%x, 0
    s_cselect_b32 s58, 0, 0x%x
    s_add_u32 s50, s50, s58
    s_lshl_b32 s40, s45, 15
    s_add_u32 s50, s50, s40
    s_cmp_lt_u32 s3, 2
    s_cselect_b32 s58, 0, 0x%x
    s_add_u32 s58, s58, s40
    s_add_u32 s58, s58, 0x%x
    v_add_u32 v11, s49, v9
    s_cmp_lt_u32 s3, 2
    s_waitcnt lgkmcnt(0)
    s_cselect_b64 s[20:21], s[16:17], s[8:9]
    s_cselect_b32 s22, s18, s10
    s_mov_b32 s23, 0x00020000
    """ % (TOFF["T2"], OFF["UB"], OFF["OF"] + LAYER - OFF["WOF"], OFF["WOF"]))
    k.mark()
    marks = []
    for ch in range(PRE):
        g64_issue(a, ch, False); marks.append(a.vm - 1)
    k.mark()
    a("""
    s_and_b32 s40, s46, 1
    s_lshl_b32 s40, s40, 20
    s_lshr_b32 s41, s46, 1
    s_and_b32 s41, s41, 7
    s_lshl_b32 s41, s41, 16
    s_add_u32 s40, s40, s41
    s_lshr_b32 s41, s46, 4
    s_lshl_b32 s41, s41, 14
    s_add_u32 s40, s40, s41
    s_lshl_b32 s41, s44, 6
    s_add_u32 s57, s40, s41
    v_and_b32 v5, 15, v1
    v_lshlrev_b32 v5, 10, v5
    v_bfe_u32 v4, v1, 4, 1
    v_lshl_add_u32 v5, v4, 19, v5
    v_lshl_add_u32 v5, v3, 5, v5
    """)
    for ch in range(16):
        a.wait_vm(marks[ch]); a("s_barrier")
        if ch == 0: k.mark()
        n = ch + PRE
        if n == 8: a("s_mov_b64 s[20:21], s[8:9]\ns_mov_b32 s22, s10")
        if n < 16:
            g64_issue(a, n & 7, False, "s50" if n < 8 else "s58"); marks.append(a.vm - 1)
        g64_compute(a, ch & 7, False, ch == 0)
    k.mark()
    for p in range(8): a("v_cvt_pk_bf16_f32 v%d, v%d, v%d" % (32 + p, ACC + 2 * p, ACC + 2 * p + 1))
    a("buffer_store_dwordx4 v[32:35], v5, s[12:15], s57 offen\nbuffer_store_dwordx4 v[36:39], v5, s[12:15], s57 offen offset:16")
    a("L_fin_end:")
    a("s_endpgm")
    return k, 256, 256, 131072

def wprep_roles(k):
    a = k.a
    TF = 48; AC = 24
    a("L_wp:")
    srd_load(a, 20, "wo")
    a("""
    s_sub_u32 s44, s2, 256
    s_lshl_b32 s52, s3, 13
    v_lshrrev_b32 v4, 2, v1
    v_lshlrev_b32 v12, 10, v4
    v_and_b32 v4, 3, v1
    v_lshl_add_u32 v12, v4, 4, v12
    s_lshl_b32 s46, s3, 17
    s_lshl_b32 s41, s44, 6
    s_add_u32 s46, s46, s41
    v_bfe_u32 v4, v1, 2, 2
    v_lshl_add_u32 v4, v3, 2, v4
    v_lshlrev_b32 v4, 6, v4         ; (4h + r)*64
    v_and_b32 v5, 1, v1
    v_lshl_add_u32 v4, v5, 5, v4    ; 16*(cq&1) elements
    v_bfe_u32 v5, v1, 4, 1
    v_lshl_add_u32 v4, v5, 4, v4    ; 8*(G&1)
    v_bfe_u32 v5, v1, 1, 1
    v_lshl_add_u32 v4, v5, 3, v4    ; 4*(cq>>1)
    v_add_u32 v13, s52, v4
    s_lshl_b32 s40, s44, 15
    s_add_u32 s40, s40, s52
    s_add_u32 s40, s40, 0x%x
    s_add_u32 s41, s40, 4096
    s_waitcnt lgkmcnt(0)
    """ % OFF["WOF"])
    for i in range(8):
        a("s_add_u32 m0, s52, %d" % (i * 1024))
        a("buffer_load_dwordx4 v12, s[20:23], s46 offen lds")
        if i < 7: a("s_add_u32 s46, s46, %d" % (16 * 1024))
    a("s_waitcnt vmcnt(0)")
    for i in range(8):
        a("ds_read_b64_tr_b16 %s, v13 offset:%d" % (R(48 + 4 * i, 2), i * 1024))
        a("ds_read_b64_tr_b16 %s, v13 offset:%d" % (R(50 + 4 * i, 2), i * 1024 + 512))
        if i == 3 or i == 7:
            a("s_waitcnt lgkmcnt(0)")
            for x in range(i - 3, i + 1):
                a("buffer_store_dwordx4 %s, v9, s[8:11], s%d offen offset:%d" % (R(48 + 4 * x, 4), 40 + (x >> 2), 1024 * (x & 3)))
    a("s_endpgm")

def k_col():
    k2 = K("col2_kernel", 208); a = k2.a
    a("s_mov_b32 s47, 0x%x\ns_movk_i32 s61, 256\ns_mov_b32 s62, 0\ns_branch L_col" % OFF["SSQ2"])
    k = K("col1_kernel", 208); a = k.a
    a("s_mov_b32 s47, 0x%x\ns_movk_i32 s61, 256\ns_mov_b32 s62, 1" % OFF["SSQ0"])
    a("L_col:")
    X1, X2, X3 = 0, 8704, 17408
    RAW, SQ, UO, M1, M2, TWF, TWI, WW, WU, BUF = 16, 24, 32, 48, 80, 112, 128, 144, 176, 144
    WW = 16
    WW = 184
    WU = 176
    a("s_cmp_ge_u32 s2, s61\ns_cbranch_scc1 L_col_end")
    srd_load(a, 8, "ws"); srd_tab(a, 16)
    lane_setup(a)
    a("s_mov_b32 s48, %d\ns_mov_b32 s49, %d" % (TOFF["M1"], TOFF["M1"] + 4096))
    a("s_lshl_b32 s50, s3, 13\ns_add_u32 s50, s50, %d\ns_add_u32 s51, s50, 4096" % TOFF["M2"])
    for f in range(8): a("buffer_load_dwordx4 %s, v9, s[16:19], s%d offen offset:%d" % (R(M1 + 4 * f, 4), 48 + (f >> 2), 1024 * (f & 3)))
    def m2(lo, hi):
        for f in range(lo, hi): a("buffer_load_dwordx4 %s, v9, s[16:19], s%d offen offset:%d" % (R(M2 + 4 * f, 4), 50 + (f >> 2), 1024 * (f & 3)))
    a("""
    s_and_b32 s42, s2, 7
    s_lshr_b32 s43, s2, 3
    s_lshl_b32 s42, s42, 5
    s_add_u32 s42, s42, s43         ; slot k
    v_and_b32 v5, 15, v1            ; b_l
    v_lshrrev_b32 v6, 4, v1         ; q
    v_lshlrev_b32 v7, 2, v1
    s_lshl_b32 s44, s3, 11          ; w*2048
    s_lshl_b32 s45, s42, 13
    s_add_u32 s45, s45, s44         ; k*8192 + w*2048
    s_add_u32 s54, s45, 0x%x
    s_add_u32 s45, s45, 0x%x
    s_add_u32 s47, s47, s44
    v_lshlrev_b32 v15, 8, v3
    v_lshl_add_u32 v15, v2, 2, v15
    ; forward twiddles: b = 16w+b_l, j1 = 8q+v
    s_lshl_b32 s56, s3, 4
    v_add_u32 v10, s56, v5
    v_cvt_f32_u32 v10, v10
    v_mul_f32 v10, 0x3a000000, v10      ; b/2048
    v_lshlrev_b32 v11, 3, v6
    v_cvt_f32_u32 v11, v11
    v_mul_f32 v11, v10, v11
    """ % (OFF["WT"], OFF["UC"]))
    M2A = 0
    for i in range(8):
        if i == OPT.get("twa", 4):
            a("s_waitcnt lgkmcnt(0)")
            k.mark()
            for v in range(8): a("buffer_load_dword v%d, v7, s[8:11], s47 offen offset:%d" % (SQ + v, 256 * v))
            for v in range(8): a("buffer_load_dword v%d, v7, s[8:11], s45 offen offset:%d" % (RAW + v, 256 * v))
            m_in = a.vm - 1
            k.mark()
        a("v_fmamk_f32 v12, v10, 0x%x, v11" % fbits(i))
        a("v_cos_f32 v%d, v12\nv_sin_f32 v%d, v12" % (TWF + 2 * i, TWF + 2 * i + 1))
    a("""
    v_cvt_f32_u32 v10, v2
    v_mul_f32 v10, 0x3a000000, v10
    v_lshlrev_b32 v11, 1, v3
    v_add_u32 v11, s56, v11
    v_cvt_f32_u32 v11, v11
    v_mul_f32 v11, v10, v11
    s_mov_b32 s58, 0x3a000000
    s_mov_b32 s59, 0x3a000000
    """)
    for g in range(4):
        for e in range(2):
            i = 2 * g + e
            a("v_fmamk_f32 v12, v10, 0x%x, v11" % fbits(4 * g + e))
            a("v_cos_f32 v%d, v12\nv_sin_f32 v%d, v12" % (TWI + 2 * i, TWI + 2 * i + 1))
    for i in range(8): a("v_pk_mul_f32 %s, %s, s[58:59]" % (R(TWI + 2 * i, 2), R(TWI + 2 * i, 2)))
    a("""
    s_movk_i32 s57, 2176
    v_mul_lo_u32 v10, v6, s57           ; 8q*272
    v_lshl_add_u32 v10, v5, 2, v10
    s_lshl_b32 s58, s3, 6
    v_add_u32 v10, s58, v10             ; X1 write
    s_movk_i32 s57, 272
    v_mul_lo_u32 v11, v2, s57
    v_lshl_add_u32 v12, v3, 3, v11
    v_add_u32 v12, s58, v12             ; X2 write
    v_lshl_add_u32 v11, v3, 4, v11      ; X1/X2 read
    s_mul_i32 s58, s3, 2304
    s_movk_i32 s57, 288
    v_mul_lo_u32 v13, v3, s57
    v_lshl_add_u32 v13, v2, 2, v13
    v_add_u32 v13, s58, v13             ; X3 write
    s_movk_i32 s57, 144
    v_mul_lo_u32 v14, v5, s57
    v_add_u32 v14, s58, v14
    v_lshl_add_u32 v14, v6, 5, v14      ; X3 read: (16w+b_l)*144 + q*32
    s_lshr_b32 s40, s42, 2
    s_lshl_b32 s40, s40, 9
    s_and_b32 s41, s42, 3
    s_lshl_b32 s41, s41, 2
    s_add_u32 s40, s40, s41
    s_lshl_b32 s41, s3, 19
    s_add_u32 s40, s40, s41
    s_add_u32 s40, s40, 0x%x
    v_lshlrev_b32 v8, 15, v3
    v_lshl_add_u32 v8, v2, 4, v8        ; UB: (lane>>5)*32768 + m*16
    s_mov_b32 s60, 0x%x
    v_mov_b32 v4, 0x%x
    """ % (OFF["UB"], fbits(1.0 / 512), fbits(1e-5)))
    a("""
    s_and_b32 s63, s2, 1
    s_lshl_b32 s63, s63, 5
    s_add_u32 s63, s63, s43
    s_lshl_b32 s63, s63, 2
    s_add_u32 s63, s63, s3
    s_mul_i32 s63, s63, 6144
    s_add_u32 s63, s63, 0x%x
    s_add_u32 s64, s63, 4096
    v_lshlrev_b32 v180, 6, v1
    """ % OFF["WP"])
    def side():
        a("buffer_load_dword v181, v180, s[8:11], s63 offen")
        a("s_mov_b32 exec_hi, 0\nbuffer_load_dword v182, v180, s[8:11], s64 offen\ns_mov_b32 exec_hi, -1")
    def late():
        m2(M2A, 8)
        for i in range(8): a("buffer_load_dword v%d, v15, s[8:11], s54 offen offset:%d" % (WW + i, 128 * (4 * (i >> 1) + (i & 1))))
        return a.vm - 1
    if OPT.get("late", 0) == 0: m_w = late()
    k.mark()
    a.wait_vm(m_in - 8)
    for i in range(8): a("v_fma_f32 v%d, v%d, s60, v4" % (SQ + i, SQ + i))
    for i in range(8): a("v_rsq_f32 v%d, v%d" % (SQ + i, SQ + i))
    a.wait_vm(m_in)
    k.mark()
    T0 = BUF
    for v in range(8):
        a("v_and_b32 v%d, 0xffff0000, v%d\nv_lshlrev_b32 v%d, 16, v%d" % (UO + 2 * v, RAW + v, UO + 2 * v + 1, RAW + v))
        s = v & 1
        a("v_pk_mul_f32 %s, %s, %s op_sel:[0,%d] op_sel_hi:[1,%d]" % (R(T0 + 2 * v, 2), R(UO + 2 * v, 2), R(SQ + v - s, 2), s, s))
    a("s_cmp_eq_u32 s42, 0\ns_cbranch_scc1 L_col_z0")
    a("L_col_n0:")
    for v in range(8): a("v_cvt_pk_bf16_f32 v%d, v%d, v%d" % (SQ + v, T0 + 2 * v + 1, T0 + 2 * v))
    for t in range(2):
        for tau in range(4):
            d = R(T0 + 4 * tau, 4)
            a("v_mfma_f32_16x16x32_bf16 %s, %s, %s, %s" % (d, R(M1 + 4 * (2 * tau + t), 4), R(SQ + 4 * t, 4), "0" if t == 0 else d))
    if OPT.get("sd", 0) == 2: side()
    T1_ = BUF + 16
    for i in range(8):
        y, tw, t = R(T0 + 2 * i, 2), R(TWF + 2 * i, 2), R(T1_ + 2 * i, 2)
        a("v_pk_mul_f32 %s, %s, %s op_sel:[0,0] op_sel_hi:[1,0]" % (t, y, tw))
        a("v_pk_fma_f32 %s, %s, %s, %s op_sel:[1,1,0] op_sel_hi:[0,1,1] neg_hi:[1,0,0]" % (t, y, tw, t))
        a("v_cvt_pk_bf16_f32 v%d, v%d, v%d" % (SQ + i, T1_ + 2 * i, T1_ + 2 * i + 1))
        a("ds_write_b32 v10, v%d offset:%d" % (SQ + i, X1 + i * 272))
    a("s_waitcnt lgkmcnt(0)\ns_barrier")
    k.mark()
    for t in range(8): a("ds_read_b128 %s, v11 offset:%d" % (R(BUF + 4 * t, 4), X1 + 32 * t))
    a.wait_vm(m_w)
    AC = TWF
    for t in range(8):
        a("s_waitcnt lgkmcnt(%d)" % (7 - t))
        a("v_mfma_f32_32x32x16_bf16 %s, %s, %s, %s" % (R(AC, 16), R(M2 + 4 * t, 4), R(BUF + 4 * t, 4), "0" if t == 0 else R(AC, 16)))
        a("v_lshlrev_b32 v%d, 16, v%d\nv_and_b32 v%d, 0xffff0000, v%d" % (192 + 2 * t, WW + t, 193 + 2 * t, WW + t))
        if t == 7 and OPT.get("sd", 0) == 0: side()
    for i in range(8):
        y, w, t = R(AC + 2 * i, 2), R(192 + 2 * i, 2), R(T1_ + 2 * i, 2)
        a("v_pk_mul_f32 %s, %s, %s op_sel:[0,0] op_sel_hi:[1,0] neg_hi:[1,0]" % (t, y, w))
        a("v_pk_fma_f32 %s, %s, %s, %s op_sel:[1,1,0] op_sel_hi:[0,1,1] neg_lo:[1,0,0] neg_hi:[1,0,0]" % (t, y, w, t))
        a("v_cvt_pk_bf16_f32 v%d, v%d, v%d" % (SQ + i, T1_ + 2 * i, T1_ + 2 * i + 1))
        if i & 1: a("ds_write_b64 v12, %s offset:%d" % (R(SQ + i - 1, 2), X2 + 16 * (i >> 1)))
    a("s_waitcnt lgkmcnt(0)\ns_barrier")
    k.mark()
    for t in range(8): a("ds_read_b128 %s, v11 offset:%d" % (R(BUF + 4 * t, 4), X2 + 32 * t))
    for t in range(8):
        a("s_waitcnt lgkmcnt(%d)" % (7 - t))
        a("v_mfma_f32_32x32x16_bf16 %s, %s, %s, %s" % (R(AC, 16), R(M2 + 4 * t, 4), R(BUF + 4 * t, 4), "0" if t == 0 else R(AC, 16)))
        if t == 1 and OPT.get("sd", 0) == 1: side()
    for i in range(8):
        y, tw, t = R(AC + 2 * i, 2), R(TWI + 2 * i, 2), R(T0 + 2 * i, 2)
        a("v_pk_mul_f32 %s, %s, %s op_sel:[0,1] op_sel_hi:[0,0]" % (t, y, tw))
        a("v_pk_fma_f32 %s, %s, %s, %s op_sel:[1,0,0] op_sel_hi:[1,1,1] neg_lo:[1,0,0]" % (t, y, tw, t))
        a("v_cvt_pk_bf16_f32 v%d, v%d, v%d" % (SQ + i, T0 + 2 * i, T0 + 2 * i + 1))
        a("ds_write_b32 v13, v%d offset:%d" % (SQ + i, X3 + (4 * (i >> 1) + (i & 1)) * 144))
    a("s_waitcnt lgkmcnt(0)")
    for t in range(2): a("ds_read_b128 %s, v14 offset:%d" % (R(BUF + 4 * t, 4), X3 + 16 * t))
    a("s_waitcnt lgkmcnt(0)")
    k.mark()
    for t in range(2):
        for tau in range(4):
            d = R(UO + 4 * tau, 4)
            a("v_mfma_f32_16x16x32_bf16 %s, %s, %s, %s" % (d, R(M1 + 4 * (2 * tau + t), 4), R(BUF + 4 * t, 4), d))
    a("s_cmp_eq_u32 s42, 0\ns_cbranch_scc1 L_col_z1")
    a("L_col_n1:")
    for v in range(8):
        a("v_cvt_pk_bf16_f32 v%d, v%d, v%d" % (SQ + v, UO + 2 * v + 1, UO + 2 * v))
        a("buffer_store_dword v%d, v8, s[8:11], s40 offen" % (SQ + v))
        if v < 7: a("s_add_u32 s40, s40, 0x10000")
    a("L_col_end:")
    a("s_endpgm")
    a("L_col_z0:")
    for v in range(8): a("v_mov_b32 v%d, 0" % (T0 + 2 * v))
    a("s_branch L_col_n0")
    a("L_col_z1:")
    for v in range(8): a("v_and_b32 v%d, 0xffff0000, v%d" % (UO + 2 * v, RAW + v))
    a("s_branch L_col_n1")
    return (k, 256, 256, 32768), (k2, 256, 256, 32768)

from prep4 import k_prep
from mha6 import k_mha


def hexdump(arr):
    u = np.ascontiguousarray(arr).reshape(-1).view(np.uint64)
    return "\n".join(".quad " + ",".join("0x%x" % v for v in u[i:i + 8]) for i in range(0, len(u), 8)) + "\n"

def tables():
    s = '.section .rodata,"a"\n.p2align 12\n'
    c = cos512()
    for i in range(512): s += ".set C%d, 0x%04x\n" % (i, c[i])
    s += r""".altmacro
.macro E8 a,b,c,d,e,f,g,h
.short C\a,C\b,C\c,C\d,C\e,C\f,C\g,C\h
.endm
.macro F8 p,k
E8 %((\p)&511),%((\p+\k)&511),%((\p+2*\k)&511),%((\p+3*\k)&511),%((\p+4*\k)&511),%((\p+5*\k)&511),%((\p+6*\k)&511),%((\p+7*\k)&511)
.endm
.macro G8 i0,i1,p,d
E8 %((\i0)&511),%((\i1)&511),%((\p+\d)&511),%((\p+\d+128)&511),%((\p+2*\d)&511),%((\p+2*\d+128)&511),%((\p+3*\d)&511),%((\p+3*\d+128)&511)
.endm
.type tables,@object
tables:
.set n, 0
.rept 32768
.set cc, ((n>>11)<<5) + (n&19) + ((n&4)<<1) + ((n&8)>>1)
.set dd, (((n>>6)&31)<<4) + (((n>>5)&1)<<3)
.set lt2, ((cc-2)>>63)&1
.set kk, (cc>>1) + 256*(((cc-1)>>63)&1)
.set pp, kk*dd + lt2*64 + (1-lt2)*128*(cc&1)
F8 pp, kk
.set n, n+1
.endr
.set n, 0
.rept 32768
.set dd, ((n>>11)<<5) + (((n>>2)&1)<<4) + (((n>>3)&3)<<2) + (n&3)
.set kk, (((n>>6)&31)<<3) + (((n>>5)&1)<<2)
.set z, ((kk-1)>>63)&1
.set pp, kk*dd
.set i0, z*(256*dd+64) + (1-z)*pp
.set i1, z*64 + (1-z)*(pp+128)
G8 i0, i1, pp, dd
.set n, n+1
.endr
.noaltmacro
"""
    s += hexdump(tab_M1()) + hexdump(tab_M2())
    return s

def build(order=None):
    c1, c2 = k_col()
    me = sys.modules[__name__]
    m1, m2 = k_mha(me)
    ks = dict(prep=k_prep(me), col2=c2, col1=c1, mha2=m2, mha1=m1)
    order = order or ["prep", "col1", "mha1", "col2", "mha2"]
    ref = open("cdna_kernels/%s.s.ref" % NAME).read().split("\n")
    head = "\n".join(l for l in ref[:10]) + "\n"
    for o in order:
        k, g, b, lds = ks[o]
        head += "; @launch kernel=%s grid=(%d,1,1) block=(%d,1,1) lds=%d\n" % (k.name, g, b, lds)
    s = head + '.amdgcn_target "amdgcn-amd-amdhsa--gfx950"\n'
    for i, (k, *_) in enumerate(ks.values()):
        if i == 1: s += ".text\n.p2align 8\ncode_begin:\n"
        s += k.text()
    s += "code_end:\n"
    for k, *_ in ks.values(): s += k.desc()
    s += tables()
    return s

if __name__ == "__main__":
    out = sys.argv[1] if len(sys.argv) > 1 else "cdna_kernels/%s.s" % NAME
    STAMP = len(sys.argv) > 2 and "stamp" in sys.argv[2]
    for kv in sys.argv[3:]:
        key, val = kv.split("="); OPT[key] = int(val)
    open(out, "w").write(build())
    print("wrote", out)
```

```python
def k_mha(G):
    K, R, OFF, TOFF, srd_load, srd_tab, lane_setup, OPT, fbits, LAYER = G.K, G.R, G.OFF, G.TOFF, G.srd_load, G.srd_tab, G.lane_setup, G.OPT, G.fbits, G.LAYER
    NV = 248
    k2 = K("mha2_kernel", NV)
    k2.a("s_mov_b32 s65, 0x%x\ns_mov_b32 s66, 1\ns_branch L_mha" % LAYER)
    k = K("mha1_kernel", NV); a = k.a
    a("s_mov_b32 s65, 0\ns_mov_b32 s66, 0")
    a("L_mha:")
    MAP = """    s_and_b32 s42, s40, 1
    s_lshl_b32 s42, s42, 4
    s_and_b32 s47, s41, 15
    s_add_u32 s42, s42, s47         ; head
    s_lshr_b32 s43, s40, 1
    s_lshl_b32 s43, s43, 1
    s_lshr_b32 s48, s41, 4
    s_add_u32 s43, s43, s48         ; qb
    s_lshl_b32 s48, s48, 2
    s_add_u32 s51, s47, s48
""" if not OPT.get("map", 0) else """    s_mov_b32 s42, s41              ; head
    s_mov_b32 s43, s40              ; qb
    s_mov_b32 s51, s41              ; rot
"""
    IDX = 12; KA0 = 13; VA0 = 14; VINC = 15
    Q = 16; KB = 24; VB = 32; S0, S1, CM, OA = 48, 64, 80, 112
    RS = 144; AL = 148; LN = 149; AW = 152; A3 = 216
    CB = 0x20000; BN = 0x21000; XB = 0x22400; WL = 0x2000
    a("s_cmp_ge_u32 s2, 256\ns_cbranch_scc1 L_mha_end")
    srd_load(a, 8, "ws"); srd_load(a, 12, "out"); srd_tab(a, 20)
    lane_setup(a)
    a("""
    s_and_b32 s40, s2, 7
    s_lshr_b32 s41, s2, 3
MAPPING    s_lshl_b32 s44, s43, 3
    s_add_u32 s44, s44, s3          ; projection row tile
    s_lshl_b32 s45, s44, 15
    s_add_u32 s45, s45, 0x%x        ; UB tile
    s_mul_i32 s46, s42, 49152
    s_add_u32 s46, s46, 0x%x        ; W' of the head
    s_add_u32 s47, s51, s3
    s_and_b32 s47, s47, 7
    s_lshl_b32 s48, s47, 12
    s_add_u32 s48, s48, s46
    s_lshl_b32 s49, s47, 11
    s_add_u32 s49, s49, s46
    s_add_u32 s49, s49, 32768
    s_lshl_b32 s52, s3, 12
    s_lshl_b32 s53, s3, 11
    s_add_u32 m0, s52, 0x%x
    v_lshlrev_b32 v5, 4, v2
    s_waitcnt lgkmcnt(0)
    """.replace("MAPPING", MAP) % (OFF["UB"], OFF["WP"], WL))
    k.mark()
    UF = AW; AQK = 80; AV = 96; WB = 16; RING = 16
    def ureg(t):
        i = t % RING
        return UF + 4 * i
    um = []
    def uload(t):
        if t % 4 == 0:
            a("s_add_u32 s54, s51, %d\ns_and_b32 s54, s54, 7\ns_lshl_b32 s54, s54, 12\ns_add_u32 s54, s54, s45" % (t >> 2))
        a("buffer_load_dwordx4 %s, v9, s[8:11], s54 offen offset:%d" % (R(ureg(t), 4), 1024 * (t & 3)))
        um.append(a.vm - 1)
    for t in range(OPT.get("ub", 0)): uload(t)
    for i in range(4): a("buffer_load_dwordx4 v9, s[8:11], s48 offen offset:%d lds" % (1024 * i))
    a("s_add_u32 m0, s53, 0x%x" % (WL + 32768))
    for i in range(2): a("buffer_load_dwordx4 v9, s[8:11], s49 offen offset:%d lds" % (1024 * i))
    m_w = a.vm - 1
    UPRE = OPT.get("upre", 8)
    while len(um) < OPT.get("u0", 3): uload(len(um))
    a("""
    v_mov_b32 v%(LN)d, v1
    v_lshlrev_b32 v150, 2, v2               ; partial-sum store offset m*4
    v_lshl_add_u32 v151, v3, 9, v150        ; partial-sum load offset h*512 + m*4
    s_lshl_b32 s58, s44, 10
    s_lshl_b32 s59, s66, 16
    s_add_u32 s58, s58, s59
    s_add_u32 s58, s58, 0x%(psq)x
    s_and_b32 s59, s51, 7
    s_lshl_b32 s59, s59, 7
    s_add_u32 s59, s59, s58
    v_mov_b32 v148, v5
    v_and_b32 v5, 15, v1
    v_lshlrev_b32 v5, 4, v5
    v_lshl_add_u32 v5, v3, 8, v5            ; h*256 + (m&15)*16
    v_add_u32 v6, 0x%(wl)x, v9              ; W'qk read address
    s_lshr_b32 s41, s3, 2                   ; kh
    s_lshl_b32 s55, s41, 12
    v_add_u32 v%(KA0)d, s55, v9
    s_add_u32 s55, s55, 0x10000
    v_add_u32 v4, s55, v5
    v_and_b32 v10, 27, v2
    v_cmp_eq_u32 vcc, 16, v10
    v_mov_b32 v10, 0x%(cb1)x
    v_mov_b32 v11, 0x%(cb0)x
    v_cndmask_b32 v10, v10, v11, vcc
    v_cmp_gt_u32 s[60:61], 16, v2
    v_mov_b32 v11, 0
    v_mov_b32 v%(IDX)d, 8192
    v_cndmask_b32 v%(VA0)d, v10, v4, s[60:61]
    v_cndmask_b32 v%(VINC)d, v11, v%(IDX)d, s[60:61]
    v_mov_b32 v%(IDX)d, 0xdddddddd
    v_lshrrev_b32 v4, 1, v1
    v_and_b32 v10, 7, v4
    v_lshrrev_b32 v4, 3, v4
    v_lshlrev_b32 v10, 9, v10
    v_lshl_add_u32 v4, v4, 13, v10
    v_and_b32 v10, 1, v1
    v_lshl_add_u32 v4, v10, 4, v4
    v_add_u32 v4, 0x%(cb0)x, v4
    v_add_u32 v10, -1, v10
    v_and_b32 v16, 0x3f803f80, v10
    v_mov_b32 v17, v16
    v_mov_b32 v18, v16
    v_mov_b32 v19, v16
    s_mov_b64 exec, 0xfffff
    ds_write_b128 v4, v[16:19]
    s_mov_b64 exec, -1
    v_mov_b32 v10, 0
    v_mov_b32 v11, 0
    """ % dict(KA0=KA0, VA0=VA0, VINC=VINC, IDX=IDX, cb0=CB, cb1=CB + 16, wl=WL, wv=WL + 32768, LN=LN, psq=OFF["PSQ"]))
    for r in range(16): a("v_mov_b32 v%d, 0" % (A3 + r))
    for r in range(32): a("v_mov_b32 v%d, 0" % (OA + r))
    for r in range(8): a("v_mov_b32 v%d, 0" % (S1 + 8 + r))
    a("""
    s_lshl_b32 s48, s3, 8
    s_add_u32 s48, s48, 0x%x
    v_lshl_add_u32 v64, v1, 2, s48  ; rinv write
    v_and_b32 v65, 48, v1
    v_add_u32 v65, s48, v65         ; rinv read: rows 4*(lane>>4)..
    v_bfe_u32 v4, v1, 4, 1
    v_lshl_add_u32 v66, v4, 9, v5   ; V offset f*512 + h*256 + dim*16
    s_lshl_b32 s48, s42, 16
    s_add_u32 s48, s48, s65
    s_add_u32 s48, s48, 0x%x        ; K base of the head
    s_lshl_b32 s62, s44, 10
    s_add_u32 s62, s62, s48
    s_add_u32 s63, s62, 0x%x
    s_lshl_b32 s52, s3, 10
    v_add_u32 v68, s52, v9
    s_add_u32 s53, s52, 0x10000
    v_add_u32 v69, s53, v66
    s_add_u32 s53, s52, 0x%x
    v_add_u32 v70, s53, v9
    s_and_b32 s40, s3, 3
    s_lshl_b32 s40, s40, 1
    s_add_u32 s40, s40, s41         ; local q tile
    s_lshl_b32 s44, s43, 3
    s_add_u32 s44, s44, s40         ; output row tile
    s_lshl_b32 s40, s40, 10
    v_add_u32 v5, s40, v9
    v_xor_b32 v71, 1024, v5
    v_add_u32 v71, 0x%x, v71
    v_add_u32 v5, 0x%x, v5
    s_add_u32 s48, s48, s52         ; K base + w*1024
    s_add_u32 s49, s52, 8192        ; LDS offset of the next group
    s_add_u32 s50, s43, 1           ; next block
    s_lshl_b32 s56, s42, 8
    s_lshl_b32 s57, s3, 5
    s_add_u32 s56, s56, s57
    s_lshl_b32 s57, s66, 13
    s_add_u32 s56, s56, s57
    s_add_u32 s56, s56, 0x%x        ; flags of (head, w)
    s_lshl_b32 s57, s43, 2
    s_add_u32 s57, s57, s56         ; own flag
    s_mov_b32 s67, 0
    """ % (BN, OFF["KF"], OFF["VF"] - OFF["KF"], XB, XB, XB, OFF["FLK"]))
    a.wait_vm(m_w, "lgkmcnt(0)"); a("s_barrier")
    k.mark()
    def wset(p): return WB + 12 * (p % 3)
    def wrd(p):
        b = wset(p)
        a("ds_read_b128 %s, v6 offset:%d" % (R(b, 4), 2 * p * 1024))
        a("ds_read_b128 %s, v6 offset:%d" % (R(b + 4, 4), (2 * p + 1) * 1024))
        a("ds_read_b128 %s, v6 offset:%d" % (R(b + 8, 4), 32768 + p * 1024))
    wrd(0); wrd(1)
    while len(um) < OPT.get("u1", 6): uload(len(um))
    def sq(r):
        a("v_and_b32 v4, 0xffff0000, v%d\nv_lshlrev_b32 v0, 16, v%d\nv_fmac_f32 v10, v4, v4\nv_fmac_f32 v11, v0, v0" % (r, r))
    def vm(p, f):
        a("v_mfma_f32_16x16x32_bf16 %s, %s, %s, %s" % (R(AV + 4 * f, 4), R(ureg(2 * p + f), 4), R(wset(p) + 8, 4), "0" if p == 0 else R(AV + 4 * f, 4)))
    PSC = OPT.get("psc", 14)
    for p in range(16):
        t = 2 * p; b = wset(p)
        nl = (3 if p < 15 else 0) + (3 if p > PSC else 0)
        a.wait_vm(um[t], "lgkmcnt(%d)" % nl)
        a("v_mfma_f32_32x32x16_bf16 %s, %s, %s, %s" % (R(AQK, 16), R(b, 4), R(ureg(t), 4), "0" if p == 0 else R(AQK, 16)))
        if p: vm(p - 1, 0)
        if len(um) < min(32, t + UPRE): uload(len(um))
        a.wait_vm(um[t + 1])
        a("v_mfma_f32_32x32x16_bf16 %s, %s, %s, %s" % (R(AQK, 16), R(b + 4, 4), R(ureg(t + 1), 4), R(AQK, 16)))
        if p: vm(p - 1, 1)
        if p + 2 < 16: wrd(p + 2)
        if p < 2: a("s_cmp_lt_u32 s42, 8\ns_cbranch_scc1 L_mha_sq%d\nL_mha_sb%d:" % (p, p))
        for r in range(4): a("v_permlane16_swap_b32 v%d, v%d" % (ureg(t) + r, ureg(t + 1) + r))
        while len(um) < min(32, t + 2 + UPRE - 1): uload(len(um))
        if OPT.get("p1pr", 1) and p in (0, 4, 8, 12): a("s_setprio %d" % (3 - p // 4))
        if p == OPT.get("pst", 10):
            a("buffer_load_dword v8, v148, s[8:11], s45 offen")
            for i in range(4): a("buffer_load_dword v%d, v151, s[8:11], s58 offen offset:%d sc1" % (RS + i, 128 * i))
            m_ps = a.vm - 1
        if p == PSC:
            a.wait_vm(m_ps)
            a("""
            v_or3_b32 v4, v144, v145, v146
            v_or_b32 v4, v4, v147
            v_cmp_gt_i32 vcc, 0, v4
            v_and_b32 v8, 0xffff0000, v8
            s_nop 0
            s_cbranch_vccnz L_mha_ps
L_mha_ps1:
            v_add_f32 v10, v144, v145
            v_add_f32 v11, v146, v147
            v_add_f32 v10, v10, v11
            v_mov_b32 v11, v10
            v_permlane32_swap_b32 v10, v11
            v_add_f32 v10, v10, v11
            v_fma_f32 v10, -v8, v8, v10
            v_mov_b32 v11, 0x%x
            v_fmac_f32 v11, 0x%x, v10
            v_rsq_f32 v10, v11
            s_nop 0
            ds_write_b32 v64, v10
            ds_read_b128 v[104:107], v65
            ds_read_b128 v[108:111], v65 offset:64
            """ % (fbits(1e-5), fbits(1.0 / 512)))
    vm(15, 0); vm(15, 1)
    assert UPRE <= 13
    k.mark()
    a("v_and_b32 v8, 7, v1\nv_lshlrev_b32 v8, 2, v8\nv_mov_b32 v0, 0\nv_mov_b32 v1, 1\nv_mov_b32 v6, v%d\nv_mov_b32 v7, v%d" % (KA0, VA0))
    for r in range(4): a("v_mov_b32 v%d, 0" % (VB + 12 + r))
    for r in range(8, 16): a("v_mul_f32 v%d, v10, v%d" % (AQK + r, AQK + r))
    for r in range(4): a("v_cvt_pk_bf16_f32 v%d, v%d, v%d" % (56 + r, AQK + 8 + 2 * r, AQK + 9 + 2 * r))
    a("buffer_store_dwordx4 v[56:59], v9, s[8:11], s62 offen sc1")
    a("ds_write_b128 v68, v[56:59]")
    a("s_waitcnt lgkmcnt(1)")
    for r in range(8): a("v_mul_f32 v%d, v%d, v%d" % (AV + r, AV + r, 104 + r))
    for r in range(4): a("v_cvt_pk_bf16_f32 v%d, v%d, v%d" % (60 + r, AV + 2 * r, AV + 1 + 2 * r))
    a("v_permlane16_swap_b32 v60, v62\nv_permlane16_swap_b32 v61, v63")
    a("buffer_store_dwordx4 v[60:63], v66, s[8:11], s63 offen sc1")
    a("ds_write_b128 v69, v[60:63]")
    for r in range(8): a("v_mul_f32 v%d, v10, v%d" % (AQK + r, AQK + r))
    for r in range(4): a("v_cvt_pk_bf16_f32 v%d, v%d, v%d" % (48 + r, AQK + 2 * r, AQK + 1 + 2 * r))
    a("ds_write_b128 v70, v[48:51]")
    a("v_mul_f32 v52, v%d, v%d\nv_mul_f32 v53, v%d, v%d" % (AQK, AQK + 8, AQK + 1, AQK + 9))
    for r in range(2, 8): a("v_fmac_f32 v%d, v%d, v%d" % (52 + (r & 1), AQK + r, AQK + 8 + r))
    a("v_add_f32 v52, v52, v53\nv_mov_b32 v53, v52\nv_permlane32_swap_b32 v52, v53")
    a("v_sub_f32_e64 v54, -v52, v53\nv_sub_f32_e64 v55, -v52, v53\nv_mov_b32 v52, v54\nv_mov_b32 v53, v54")
    a("ds_write_b128 v70, v[52:55] offset:8192")
    a("v_mov_b32 v4, v71\ns_mov_b32 s62, 0")
    if OPT.get("prio", 1): a("s_cmp_lt_u32 s3, 4\ns_cbranch_scc1 L_mha_np\ns_setprio 1\nL_mha_np:")
    a("s_waitcnt lgkmcnt(0)\ns_barrier")
    k.mark()
    def group():
        a("""
        s_and_b32 s51, s50, 7
        s_lshl_b32 s51, s51, 13
        s_mov_b32 m0, s49
        s_add_u32 s51, s51, s48
        buffer_load_dwordx4 v9, s[8:11], s51 offen sc1 lds
        s_add_u32 m0, s49, 0x10000
        s_add_u32 s51, s51, 0x%x
        buffer_load_dwordx4 v9, s[8:11], s51 offen sc1 lds
        s_add_u32 s49, s49, 8192
        s_add_u32 s50, s50, 1
        """ % (OFF["VF"] - OFF["KF"]))
    def off(t): return (t >> 2) * 8192 + (t & 3) * 1024
    def rdk(i, o): a("ds_read_b128 %s, v6 offset:%d" % (R(KB + 4 * i, 4), o))
    def rdv(i, f, o): a("ds_read_b128 %s, v7 offset:%d" % (R(VB + 8 * i + 4 * f, 4), o))
    def qk(S, i, q): a("v_mfma_f32_32x32x16_bf16 %s, %s, %s, %s" % (R(S, 16), R(KB + 4 * i, 4), R(Q + 4 * q, 4), "0" if OPT.get("c0") else R(CM + 16 * q, 16)))
    def pv(i, f, S, q):
        if OPT.get("pv16"): a("v_smfmac_f32_16x16x64_bf16 %s, %s, %s, v%d" % (R(OA + 16 * q, 4), R(VB + 8 * i + 4 * f, 4), R(S + 8 * f, 8), IDX)); return
        a("v_smfmac_f32_32x32x32_bf16 %s, %s, %s, v%d" % (R(OA + 16 * q, 16), R(VB + 8 * i + 4 * f, 4), R(S + 8 * f, 8), IDX))
    def ex(S, lo, hi):
        for r in range(lo, hi): a("v_exp_f32 v%d, v%d" % (S + r, S + r))
    a("ds_read_b128 %s, v4" % R(Q, 4))
    for g in range(4): a("ds_read_b128 %s, v4 offset:8192" % R(CM + 4 * g, 4))
    rdk(0, 0)
    a("ds_read_b128 %s, v5" % R(Q + 4, 4))
    for g in range(4): a("ds_read_b128 %s, v5 offset:8192" % R(CM + 16 + 4 * g, 4))
    rdv(0, 0, 0); rdv(0, 1, 512); rdk(1, 1024)
    a("s_waitcnt lgkmcnt(8)")
    qk(S0, 0, 0)
    a("s_waitcnt lgkmcnt(3)")
    k.mark()
    def body(x=False, hooks={}, loop=False, last=False, send=False):
        for u in range(8):
            t, q = u >> 1, u & 1
            Sc, Sn = (S0, S1) if q == 0 else (S1, S0)
            ex(Sc, 0, 2)
            pv((t - 1 + q) & 1, 1, Sn, 1 - q)
            if u in hooks: hooks[u]()
            nv = not (last and t == 3); nk = not (last and t >= 2)
            if q == 0 and nv:
                rdv((t + 1) & 1, 0, off(t + 1)); rdv((t + 1) & 1, 1, off(t + 1) + 512)
            ex(Sc, 2, 5)
            if not (last and u == 7): qk(Sn, (t + q) & 1, 1 - q)
            if q == 0 and nk: rdk(t & 1, off(t + 2))
            ex(Sc, 5, 10)
            if q == 0: a("s_waitcnt lgkmcnt(%d)" % (2 * nv + nk))
            pv(t & 1, 0, Sc, q)
            if u == 7 and not last:
                a("v_add_u32 v6, 8192, v6\nv_add_u32 v7, v%d, v7" % VINC)
            if u == 7 and loop:
                a("s_add_u32 s63, s63, 1\ns_cmp_lt_u32 s63, 8")
            if x:
                ex(Sc, 10, 14 if x == 2 else 10)
                if x == 2:
                    a("s_waitcnt vmcnt(14)")
                    a("v_mfma_f32_32x32x16_bf16 %s, %s, %s, %s" % (R(A3, 16), R(AW + 4 * u, 4), R(AW + 32 + 4 * u, 4), R(A3, 16)))
                a("buffer_load_dwordx4 %s, v%d, s[20:23], s%d offen offset:%d" % (R(AW + 4 * u, 4), AL, 76 + (u >> 2), 1024 * (u & 3)))
                a("buffer_load_dwordx4 %s, v150, s[8:11], s%d offen offset:%d" % (R(AW + 32 + 4 * u, 4), 78 + (u >> 2), 1024 * (u & 3)))
                ex(Sc, 14 if x == 2 else 10, 16)
            elif send and u == 7:
                ex(Sc, 10, 13)
                a("v_mov_b32 v%d, v%d" % (OA + 9, CM))
                a("ds_write_b128 v240, %s\nds_write_b128 v240, %s offset:1024\nds_write_b64 v241, %s offset:2048" % (R(OA, 4), R(OA + 4, 4), R(OA + 8, 2)))
                a("v_cmp_nlt_f32 s[68:69], v%d, v244" % (OA + 8))
                ex(Sc, 13, 16)
            else:
                ex(Sc, 10, 16)
    def h_flag(): a("s_waitcnt vmcnt(0)\nbuffer_store_dword v1, v0, s[8:11], s57 offen sc1")
    def h_poll(): a("buffer_load_dword v2, v8, s[8:11], s56 offen sc1")
    def h_chk(i, first, again):
        def f():
            if not first: a("s_cmp_eq_u32 s67, 1\ns_cbranch_scc1 L_mha_nr%d" % i)
            a("s_waitcnt vmcnt(0)\nv_cmp_ne_u32 vcc, 1, v2\ns_nop 1\ns_cbranch_vccnz L_mha_re%d" % i)
            group()
            if G1 == 2: group()
            a("s_mov_b32 s67, 1")
            if again:
                a("L_mha_nr%d:" % i)
                late.append(i)
            else:
                a("L_mha_re%d:\nL_mha_nr%d:" % (i, i))
        return f
    late = []
    G1 = 1 if OPT.get("kv2", 1) == 3 else 2
    def h_sync(n, g):
        def f():
            a("s_waitcnt vmcnt(%d)\ns_barrier" % n)
            for _ in range(g): group()
        return f
    def h_ids():
        a("""
        s_lshl_b32 s72, s43, 3
        s_lshr_b32 s73, s42, 2
        s_add_u32 s72, s72, s73         ; row tile of the output projection
        s_and_b32 s73, s42, 3
        s_lshl_b32 s73, s73, 2
        s_and_b32 s74, s3, 3
        s_add_u32 s73, s73, s74         ; column tile
        s_lshl_b32 s74, s73, 15
        s_lshl_b32 s75, s41, 14
        s_add_u32 s74, s74, s75         ; weight offset: tile*32K + kh*16K
        s_lshl_b32 s71, s72, 15
        s_add_u32 s71, s71, 0x%x        ; UB row tile
        s_add_u32 s78, s71, s75
        s_add_u32 s76, s74, 0x%x
        s_add_u32 s77, s76, 4096
        s_add_u32 s79, s78, 4096
        s_lshl_b32 s75, s41, 8
        v_xor_b32 v%d, s75, v9
        v_mov_b32 v150, v9
        s_lshl_b32 s75, s73, 11
        s_add_u32 s71, s71, s75
        s_lshl_b32 s75, s41, 10
        s_add_u32 s71, s71, s75
        buffer_load_dwordx4 %s, v9, s[8:11], s71 offen
        s_mul_i32 s75, s3, 2560
        s_add_u32 s75, s75, 0x%x
        v_add_u32 v240, s75, v9
        v_lshrrev_b32 v243, 1, v9
        v_add_u32 v241, s75, v243
        s_xor_b32 s75, s3, 4
        s_mul_i32 s75, s75, 2560
        s_add_u32 s75, s75, 0x%x
        v_add_u32 v242, s75, v9
        v_add_u32 v243, s75, v243
        v_mov_b32 v244, 0x4e800000
        s_lshl_b32 s58, s44, 15
        s_lshl_b32 s59, s42, 10
        s_add_u32 s58, s58, s59
        s_add_u32 s58, s58, s65
        s_add_u32 s58, s58, 0x%x
        """.replace("DELTA", "0x%x" % (OFF["OL"] - OFF["OF"])).replace("OFBASE", "0x%x" % OFF["OF"]) % (OFF["UB"], TOFF["T2"], AL, R(RS, 4), XB, XB, OFF["OF"]))
    def h_x2():
        for r in (76, 77, 78, 79): a("s_add_u32 s%d, s%d, 8192" % (r, r))
    def h_w():
        a("""
        s_setprio 0
        s_lshl_b32 s75, s66, 19
        s_add_u32 s76, s74, s75
        s_add_u32 s76, s76, 0x%x
        s_add_u32 s78, s76, 8192
        s_mov_b64 s[20:21], s[8:9]
        s_mov_b32 s22, s10
        v_mov_b32 v150, v%d
        s_add_u32 s77, s76, 4096
        s_add_u32 s79, s78, 4096
        """ % (OFF["WOP"], AL))
    assert OFF["WOF"] - OFF["WOP"] == 1 << 19
    hk = {OPT.get("hf", 0): h_flag, OPT.get("hp", 3): h_poll}
    cs = [OPT.get("hc", 5)] + ([OPT.get("hc2", 7)] if OPT.get("hc2", 7) else [])
    for i, c in enumerate(cs): hk[c] = h_chk(i, i == 0, i + 1 < len(cs))
    body(hooks=hk, last=True)
    a("v_add_u32 v6, 8192, v6\nv_add_u32 v7, v%d, v7" % VINC)
    a("s_cmp_eq_u32 s67, 1\ns_cbranch_scc0 L_mha_spin0")
    a("L_mha_rdy:")
    if OPT.get("mk") == 1: k.mark(0)
    a("s_waitcnt vmcnt(%d)\ns_barrier" % (0 if OPT.get("kv2", 1) in (2, 3) else 2))
    if OPT.get("mk") == 1: k.mark(1)
    rdk(0, 0); rdv(0, 0, 0); rdv(0, 1, 512); rdk(1, 1024)
    group()
    a("s_waitcnt lgkmcnt(3)")
    qk(S0, 0, 0)
    if OPT.get("kv2", 1) == 3:
        body(hooks={2: group, 4: h_sync(2, 0), 5: group})
        body(hooks={0: group, 4: h_sync(2, 0), 5: group})
        body(hooks={0: group, 2: h_ids})
        H4 = {4: h_sync(0, 0)}
    elif OPT.get("kv2", 1) == 2:
        body(hooks={2: group, 4: group, 6: group})
        body(hooks={0: group, 4: h_sync(0, 0)})
        body(hooks={0: h_ids})
    elif OPT.get("kv2", 1):
        body(hooks={2: group, 4: h_sync(4, 1), 6: group})
        if OPT.get("mk") == 1: k.mark(2)
        body(hooks={0: group, 4: h_sync(0, 0)})
        body(hooks={0: h_ids})
    else:
        body(hooks={4: h_sync(2, 1)})
        body(hooks={0: group, 2: group, 4: h_sync(4, 1)})
        body(hooks={0: h_ids, 4: h_sync(0, 0)})
    if OPT.get("kv2", 1) != 3: H4 = {}
    a("s_cmp_eq_u32 s66, 0\ns_cbranch_scc0 L_mha_x45")
    def h_sent():
        a("""
        v_mov_b32 v232, -1
        v_mov_b32 v233, -1
        v_mov_b32 v234, -1
        v_mov_b32 v235, -1
        s_lshl_b32 s75, s2, 13
        s_add_u32 s75, s75, s52
        s_add_u32 s75, s75, 0x%x
        buffer_store_dwordx4 v[232:235], v9, s[8:11], s75 offen sc1
        """ % (OFF["OF"] + LAYER))
    def h_pf():
        a("""
        s_mul_i32 s75, s3, 6144
        s_add_u32 s75, s75, s46
        v_lshlrev_b32 v236, 2, v9
        buffer_load_dword v237, v236, s[8:11], s75 offen
        s_add_u32 s75, s75, 2048
        buffer_load_dword v238, v236, s[8:11], s75 offen
        """)
    body(hooks=dict(H4, **{6: h_sent}) if False else {**H4, 6: h_sent}); body(hooks={6: h_pf} if OPT.get("mpf", 1) else {})
    body(x=1, hooks={0: h_w})
    a("L_mha_i7:")
    if OPT.get("mk") == 1: k.mark(3)
    body(last=True, send=True)
    k.nm = 5
    pv(1, 1, S1, 1)
    k.mark()
    O1 = OA + 16
    a("v_cmp_nlt_f32 vcc, v%d, v244" % (O1 + 8))
    a("s_or_b64 vcc, vcc, s[68:69]")
    a("s_cbranch_vccnz L_mha_slow")
    a("L_mha_out:")
    a("""
    s_waitcnt lgkmcnt(0)
    s_barrier
    ds_read_b64 v[56:57], v243 offset:2048
    ds_read_b128 v[48:51], v242
    ds_read_b128 v[52:55], v242 offset:1024
    s_waitcnt lgkmcnt(2)
    v_min_f32 v4, v%d, v57
    v_sub_f32 v5, v4, v%d
    v_sub_f32 v4, v4, v57
    v_exp_f32 v10, v5
    v_exp_f32 v4, v4
    v_mul_f32 v5, v10, v%d
    v_fmac_f32 v5, v4, v56
    v_rcp_f32 v5, v5
    v_mul_f32 v10, v10, v5
    v_mul_f32 v4, v4, v5
    s_waitcnt lgkmcnt(0)
    """ % (CM + 16, CM + 16, O1 + 8))
    for r in range(8):
        a("v_mul_f32 v%d, v10, v%d" % (O1 + r, O1 + r))
        a("v_fmac_f32 v%d, v4, v%d" % (O1 + r, 48 + r))
    for r in range(4): a("v_cvt_pk_bf16_f32 v%d, v%d, v%d" % (O1 + r, O1 + 2 * r, O1 + 2 * r + 1))
    if OPT.get("dual"): a("buffer_store_dwordx4 %s, v9, s[8:11], s59 offen" % R(O1, 4))
    else: a("buffer_store_dwordx4 %s, v9, s[8:11], s58 offen sc1" % R(O1, 4))
    if OPT.get("mk") == 2: k.mark(0)
    a("""
    s_lshl_b32 s46, s72, 15
    s_lshl_b32 s52, s3, 12
    s_add_u32 s46, s46, s52
    s_add_u32 s46, s46, s65
    s_add_u32 s46, s46, 0x%x
    v_add_u32 v6, s52, v9
    s_lshl_b32 s53, s41, 14
    v_add_u32 v7, s53, v9
    v_and_b32 v5, 3, v%d
    v_lshlrev_b32 v5, 10, v5
    s_lshl_b32 s52, s3, 11
    s_add_u32 s52, s52, 0x8000
    v_add_u32 v10, s52, v9
    v_xor_b32 v11, 0x2000, v10
    v_and_b32 v2, 31, v%d
    s_mov_b32 s70, 0
    s_cmp_eq_u32 s66, 0
    s_cbranch_scc0 L_mha_f2
    """ % (OFF["OF"], LN, LN))
    tails = []
    def gather(L):
        if OPT.get("dual"):
            a("s_waitcnt vmcnt(%d)\nL_mha_ol%s:\ns_and_b32 s46, s70, 7\ns_cmp_eq_u32 s46, 7\ns_cselect_b32 s46, s60, s61" % (OPT.get("dw", 1), L))
        else:
            a("""
            s_waitcnt vmcnt(0)
L_mha_op%(L)s:
            buffer_load_dword v4, v5, s[8:11], s46 offen offset:1020 sc1
            s_add_u32 s70, s70, 1
            s_waitcnt vmcnt(0)
            v_cmp_eq_u32 vcc, -1, v4
            s_cmp_gt_u32 s70, 0x40000
            s_cbranch_scc1 L_mha_ol%(L)s
            s_cbranch_vccnz L_mha_op%(L)s
L_mha_ol%(L)s:
            """ % dict(L=L))
        for i in range(4): a("buffer_load_dwordx4 %s, v9, s[8:11], s46 offen offset:%d sc1" % (R(48 + 4 * i, 4), 1024 * i))
        a("s_add_u32 s70, s70, 1")
        for i in range(4):
            a("s_waitcnt vmcnt(%d)" % (3 - i))
            a("ds_write_b128 v6, %s offset:%d" % (R(48 + 4 * i, 4), 1024 * i))
            b = 48 + 4 * i
            if i == 0: a("v_max_u32 v4, v48, v49")
            else: a("v_max3_u32 v4, v4, v%d, v%d" % (b, b + 1))
            a("v_max3_u32 v4, v4, v%d, v%d" % (b + 2, b + 3))
        a("v_cmp_eq_u32 vcc, -1, v4")
        if OPT.get("dual"):
            a("s_cmp_eq_u32 s70, 4\ns_cbranch_scc1 L_mha_ws%s\nL_mha_ns%s:" % (L, L))
            tails.append("L_mha_ws%s:\nbuffer_store_dwordx4 %s, v9, s[8:11], s58 offen sc1\ns_branch L_mha_ns%s" % (L, R(O1, 4), L))
        a("s_cmp_gt_u32 s70, 0x40000\ns_waitcnt lgkmcnt(0)\ns_cbranch_scc1 L_mha_ok%s\ns_cbranch_vccnz L_mha_ol%s" % (L, L))
        a("L_mha_ok%s:" % L)
        if G.STAMP: a("s_mov_b32 s95, s70")
        if OPT.get("dual"): a("buffer_store_dwordx4 %s, v9, s[8:11], s58 offen sc1" % R(O1, 4))
        a("s_barrier")
        k.mark(6)
        for t in range(16):
            if t == 15: a("s_waitcnt lgkmcnt(14)")
            a("ds_read_b128 %s, v7 offset:%d" % (R(48 + 4 * t, 4), 1024 * t))
        for t in range(16):
            a("s_waitcnt lgkmcnt(%d)" % min(14, 15 - t))
            a("v_mfma_f32_32x32x16_bf16 %s, %s, %s, %s" % (R(A3, 16), R(AW + 4 * t, 4), R(48 + 4 * t, 4), R(A3, 16)))
        a("""
        ds_write_b128 v10, %s
        ds_write_b128 v10, %s offset:1024
        s_waitcnt lgkmcnt(0)
        s_barrier
        ds_read_b128 v[48:51], v11
        ds_read_b128 v[52:55], v11 offset:1024
        """ % (R(A3 + 8, 4), R(A3 + 12, 4)))
        for hf in range(2):
            a("s_waitcnt lgkmcnt(%d)" % (1 - hf))
            for r in range(4 * hf, 4 * hf + 4): a("v_add_f32 v%d, v%d, v%d" % (A3 + r, A3 + r, 48 + r))
    a("""
    s_lshl_b32 s40, s73, 17
    s_lshl_b32 s47, s41, 16
    s_add_u32 s40, s40, s47
    s_lshl_b32 s47, s72, 7
    s_add_u32 s40, s40, s47
    s_add_u32 s52, s40, 0x%x
    s_add_u32 s53, s52, 8192
    s_add_u32 s54, s52, 16384
    s_add_u32 s55, s52, 24576
    s_add_u32 s47, s47, 0x%x
    v_lshlrev_b32 v16, 15, v3
    v_lshl_add_u32 v16, v2, 2, v16
    v_lshlrev_b32 v17, 2, v2
    s_add_u32 s40, s73, s41
    v_add_u32 v18, s40, v3
    v_cmp_eq_u32 s[68:69], 0, v18
    s_waitcnt vmcnt(%d)
    """ % (OFF["UC"], OFF["SSQ2"], 1))
    for p in range(4):
        a("v_lshlrev_b32 v%d, 16, v%d\nv_and_b32 v%d, 0xffff0000, v%d" % (A3 + 2 * p, RS + p, A3 + 2 * p + 1, RS + p))
    gather("a")
    for p in range(4):
        a("v_cvt_pk_bf16_f32 v%d, v%d, v%d" % (56 + p, A3 + 2 * p, A3 + 2 * p + 1))
        a("buffer_store_dword v%d, v16, s[8:11], s%d offen" % (56 + p, 52 + p))
    a("v_cndmask_b32 v7, v%d, v18, s[68:69]\nv_mul_f32 v7, v7, v7\nv_mul_f32 v8, v%d, v%d" % (A3 + 1, A3, A3))
    for r in range(2, 8): a("v_fmac_f32 v%d, v%d, v%d" % (7 + (r & 1), A3 + r, A3 + r))
    a("""
    v_add_f32 v7, v7, v8
    v_mov_b32 v8, v7
    v_permlane32_swap_b32 v7, v8
    v_add_f32 v7, v7, v8
    s_mov_b32 exec_hi, 0
    buffer_atomic_add_f32 v7, v17, s[8:11], s47 offen
    s_endpgm
L_mha_f2:
    ; layer 2: transpose through LDS to 256-byte row segments
    s_and_b32 s40, s3, 3
    s_lshl_b32 s40, s40, 6
    s_lshl_b32 s47, s41, 4
    s_add_u32 s40, s40, s47
    s_add_u32 s40, s40, 0xC000
    s_movk_i32 s47, 272
    v_mul_lo_u32 v16, v2, s47
    v_lshl_add_u32 v16, v3, 5, v16
    v_add_u32 v16, s40, v16
    v_lshrrev_b32 v4, 4, v%(LN)d
    s_lshl_b32 s40, s3, 2
    v_add_u32 v4, s40, v4               ; row m of the tile
    v_and_b32 v8, 15, v%(LN)d
    v_lshlrev_b32 v8, 4, v8
    v_mad_u32_u24 v17, v4, s47, v8
    v_add_u32 v17, 0xC000, v17
    v_and_b32 v18, 15, v4
    v_lshl_add_u32 v18, v18, 10, v8
    v_lshrrev_b32 v4, 4, v4
    v_lshl_add_u32 v18, v4, 19, v18
    s_and_b32 s40, s72, 1
    s_lshl_b32 s40, s40, 20
    s_bfe_u32 s47, s72, 0x30001
    s_lshl_b32 s47, s47, 16
    s_add_u32 s40, s40, s47
    s_lshr_b32 s47, s72, 4
    s_lshl_b32 s47, s47, 14
    s_add_u32 s40, s40, s47
    s_and_b32 s47, s42, 3
    s_lshl_b32 s47, s47, 8
    s_add_u32 s40, s40, s47
    """ % dict(LN=LN))
    gather("b")
    for p in range(4): a("v_cvt_pk_bf16_f32 v%d, v%d, v%d" % (56 + p, A3 + 2 * p, A3 + 2 * p + 1))
    a("""
    ds_write_b128 v16, v[56:59]
    s_waitcnt lgkmcnt(0)
    s_barrier
    ds_read_b128 v[60:63], v17
    s_waitcnt lgkmcnt(0)
    buffer_store_dwordx4 v[60:63], v18, s[12:15], s40 offen
    """)
    a("L_mha_end:")
    a("s_endpgm")
    for t_ in tails: a(t_)
    a("L_mha_sq0:")
    for r in range(8): sq(UF + r)
    a("s_branch L_mha_sb0")
    a("L_mha_sq1:")
    for r in range(8, 16): sq(UF + r)
    a("v_add_f32 v10, v10, v11\nv_mov_b32 v11, v10\nv_permlane32_swap_b32 v10, v11\nv_add_f32 v10, v10, v11\nv_and_b32 v10, 0x7fffffff, v10\ns_mov_b32 exec_hi, 0")
    a("buffer_store_dword v10, v150, s[8:11], s59 offen sc1\ns_mov_b64 exec, -1\ns_branch L_mha_sb1")
    a("""
L_mha_ps:
    s_mov_b32 s70, 0
L_mha_ps2:
    buffer_load_dword v144, v151, s[8:11], s58 offen sc1
    buffer_load_dword v145, v151, s[8:11], s58 offen offset:128 sc1
    buffer_load_dword v146, v151, s[8:11], s58 offen offset:256 sc1
    buffer_load_dword v147, v151, s[8:11], s58 offen offset:384 sc1
    s_add_u32 s70, s70, 1
    s_waitcnt vmcnt(0)
    v_or3_b32 v4, v144, v145, v146
    v_or_b32 v4, v4, v147
    v_cmp_gt_i32 vcc, 0, v4
    s_cmp_gt_u32 s70, 0x40000
    s_cbranch_scc1 L_mha_ps1
    s_cbranch_vccnz L_mha_ps2
    s_branch L_mha_ps1
    """)
    for i in late:
        a("L_mha_re%d:\nbuffer_load_dword v2, v8, s[8:11], s56 offen sc1\ns_branch L_mha_nr%d" % (i, i))
    a("L_mha_spin0:")
    a("s_mov_b32 s70, 0")
    a("L_mha_spin:")
    a("buffer_load_dword v2, v8, s[8:11], s56 offen sc1\ns_add_u32 s70, s70, 1\ns_waitcnt vmcnt(0)\nv_cmp_ne_u32 vcc, 1, v2")
    a("s_cmp_gt_u32 s70, 0x40000\ns_cbranch_scc1 L_mha_go\ns_cbranch_vccnz L_mha_spin")
    a("L_mha_go:")
    group()
    if G1 == 2: group()
    a("s_branch L_mha_rdy")
    a("L_mha_x45:")
    body(x=1, hooks={4: h_sync(8, 0)} if H4 else {})
    body(x=2, hooks={0: h_x2})
    body(x=2, hooks={0: h_w})
    a("s_branch L_mha_i7")
    a("L_mha_slow:")
    a("s_waitcnt lgkmcnt(0)\ns_mov_b32 s63, 0\nv_mov_b32 v6, v%d\nv_mov_b32 v4, 0xff800000\nv_mov_b32 v5, 0xff800000" % KA0)
    for r in range(32): a("v_mov_b32 v%d, 0" % (OA + r))
    a("L_mha_maxloop:")
    for i in range(4):
        a("ds_read_b128 %s, v6 offset:%d" % (R(KB, 4), 1024 * i))
        a("s_waitcnt lgkmcnt(0)")
        a("v_mfma_f32_32x32x16_bf16 %s, %s, %s, 0" % (R(S0, 16), R(KB, 4), R(Q, 4)))
        a("v_mfma_f32_32x32x16_bf16 %s, %s, %s, 0" % (R(S1, 16), R(KB, 4), R(Q + 4, 4)))
        for x, S in ((4, S0), (5, S1)):
            for r in range(0, 16, 2): a("v_max3_f32 v%d, v%d, v%d, v%d" % (x, x, S + r, S + r + 1))
    a("v_add_u32 v6, 8192, v6")
    a("s_add_u32 s63, s63, 1\ns_cmp_lt_u32 s63, 8\ns_cbranch_scc1 L_mha_maxloop")
    a("v_mov_b32 v6, v%d\nv_mov_b32 v7, v%d" % (KA0, VA0))
    rdk(0, 0); rdv(0, 0, 0); rdv(0, 1, 512); rdk(1, 1024)
    a("v_mov_b32 v10, v4\nv_mov_b32 v11, v5\nv_permlane32_swap_b32 v4, v10\nv_permlane32_swap_b32 v5, v11")
    a("v_max_f32 v4, v4, v10\nv_max_f32 v5, v5, v11")
    for r in range(16): a("v_sub_f32 v%d, 0, v4\nv_sub_f32 v%d, 0, v5" % (CM + r, CM + 16 + r))
    for r in range(8): a("v_mov_b32 v%d, 0" % (S1 + 8 + r))
    for r in range(4): a("v_mov_b32 v%d, 0" % (VB + 12 + r))
    a("s_waitcnt lgkmcnt(0)")
    qk(S0, 0, 0)
    a("s_mov_b32 s63, 0\ns_nop 7\ns_nop 3")
    a("L_mha_loop:")
    body(loop=True)
    a("s_cbranch_scc1 L_mha_loop")
    pv(1, 1, S1, 1)
    a("v_mov_b32 v%d, v%d" % (OA + 9, CM))
    a("ds_write_b128 v240, %s\nds_write_b128 v240, %s offset:1024\nds_write_b64 v241, %s offset:2048" % (R(OA, 4), R(OA + 4, 4), R(OA + 8, 2)))
    a("s_nop 7\ns_nop 3\ns_branch L_mha_out")
    lds = XB + 8 * 2560
    return (k, 256, 512, lds), (k2, 256, 512, lds)
```

```python
import sys, math
import numpy as np
from asmlib import Asm
from layouts3 import *

NAME = "interleave_layers__spectral_gfnet__softmax_full_mha__prompt"
KA = dict(x=0, wr=8, wi=16, wqkv=32, wo=40, out=48, dbg=56, ws=64)
SIZE = dict(x=2097152, wr=1052672, wi=1052672, wqkv=1572864, wo=524288, out=2097152, ws=WS_USED)
TOFF = dict(T2=0, M1=0x80000, M2=0x82000)
TSIZE = 0x8A000
LOG2E = 1.4426950408889634
STAMP = False
OPT = {}
def fbits(x): return int(np.float32(x).view(np.uint32))
def R(b, n): return "v[%d:%d]" % (b, b + n - 1)

class K:
    def __init__(self, name, vgpr, sgpr=96):
        self.name = name; self.vgpr = vgpr; self.sgpr = sgpr
        self.a = Asm()
        self.a.raw(".text\n.globl %s\n.p2align 8\n.type %s,@function" % (name, name))
        self.a(name + ":")
        self.nm = 0
        if OPT.get("diag"):
            idx = {"prep": 0, "col1": 1, "mha1": 2, "col2": 3, "mha2": 4}[name.replace("_kernel", "")]
            self.a.raw("    s_memrealtime s[84:85]\n    s_mov_b32 s86, %d" % idx)
        if STAMP:
            self.a.raw("    s_memrealtime s[84:85]\n    s_memtime s[86:87]\n    v_lshrrev_b32 v4, 6, v0\n    s_nop 1\n    v_readfirstlane_b32 s94, v4\n    s_mov_b32 s95, 0")
            self.a.raw("    s_waitcnt lgkmcnt(0)\n" + "\n".join("    s_mov_b32 s%d, s86" % (24 + 2 * i) for i in range(8)))
    def mark(self, i=None):
        if STAMP:
            if i is None: i = self.nm
            self.nm = i + 1
            assert i < 7
            self.a.raw("    s_memtime s[%d:%d]" % (24 + 2 * i, 25 + 2 * i))
    def text(self):
        t = self.a.text()
        if OPT.get("diag") and "s_endpgm" in t:
            t = t.replace("    s_endpgm", "    s_branch %s_diag" % self.name)
            t += """%s_diag:
    s_waitcnt vmcnt(0) lgkmcnt(0)
    s_memrealtime s[88:89]
    s_load_dwordx2 s[80:81], s[0:1], 56
    s_load_dwordx2 s[92:93], s[0:1], 64
    s_mov_b32 s82, 256
    s_mov_b32 s83, 0x00020000
    s_mov_b32 s94, 0x2000000
    s_mov_b32 s95, 0x00020000
    s_waitcnt lgkmcnt(0)
    s_lshl_b32 s87, s86, 3
    s_add_u32 s87, s87, 0x1f00000
    s_mov_b64 exec, 1
    v_mov_b32 v0, 0
    v_mov_b32 v4, s84
    v_mov_b32 v5, s88
    s_cmp_eq_u32 s2, 0
    s_cbranch_scc0 %s_dend
    buffer_store_dwordx2 v[4:5], v0, s[92:95], s87 offen sc1
    s_waitcnt vmcnt(0)
    s_mov_b32 s87, 0x1f00000
    buffer_load_dwordx4 v[8:11], v0, s[92:95], s87 offen sc1
    buffer_load_dwordx4 v[12:15], v0, s[92:95], s87 offen offset:16 sc1
    buffer_load_dwordx4 v[16:19], v0, s[92:95], s87 offen offset:32 sc1
    s_waitcnt vmcnt(0)
    buffer_store_dwordx4 v[8:11], v0, s[80:83], 0 offen
    buffer_store_dwordx4 v[12:15], v0, s[80:83], 0 offen offset:16
    buffer_store_dwordx4 v[16:19], v0, s[80:83], 0 offen offset:32
%s_dend:
    s_endpgm
""" % (self.name, self.name, self.name)
        if STAMP and "s_endpgm" in t:
            t = t.replace("    s_endpgm", "    s_branch %s_stamp" % self.name)
            t += """%s_stamp:
    s_memtime s[38:39]
    s_waitcnt vmcnt(0) lgkmcnt(0)
    s_memrealtime s[88:89]
    s_memtime s[90:91]
    s_load_dwordx2 s[80:81], s[0:1], 64
    s_load_dwordx2 s[92:93], s[0:1], 56
    s_mov_b32 s82, 0x4000000
    s_mov_b32 s83, 0x00020000
    s_waitcnt lgkmcnt(0)
    s_lshr_b32 s92, s92, 9
    s_and_b32 s92, s92, 63
    s_lshl_b32 s92, s92, 20
    s_lshl_b32 s93, s2, 10
    s_add_u32 s92, s92, s93
    s_lshl_b32 s93, s94, 6
    s_add_u32 s92, s92, s93
    s_add_u32 s92, s92, 0x2000000
    s_sub_u32 s90, s90, s86
    s_mov_b64 exec, 1
    v_mov_b32 v0, 0
    v_mov_b32 v4, s84
    v_mov_b32 v5, s88
    v_mov_b32 v6, s90
    v_mov_b32 v7, s95
    buffer_store_dwordx4 v[4:7], v0, s[80:83], s92 offen
""" % self.name
            for i in range(8): t += "    s_sub_u32 s%d, s%d, s86\n    v_mov_b32 v%d, s%d\n" % (24 + 2 * i, 24 + 2 * i, 8 + i, 24 + 2 * i)
            t += "    buffer_store_dwordx4 v[8:11], v0, s[80:83], s92 offen offset:16\n    buffer_store_dwordx4 v[12:15], v0, s[80:83], s92 offen offset:32\n    s_endpgm\n"
        return t
    def desc(self):
        return """.section .rodata,"a"
.p2align 6
.amdhsa_kernel %s
  .amdhsa_next_free_vgpr %d
  .amdhsa_next_free_sgpr %d
  .amdhsa_accum_offset %d
  .amdhsa_group_segment_fixed_size 0
  .amdhsa_kernarg_size 72
  .amdhsa_user_sgpr_count 2
  .amdhsa_user_sgpr_kernarg_segment_ptr 1
  .amdhsa_system_sgpr_workgroup_id_x 1
.end_amdhsa_kernel
""" % (self.name, self.vgpr, self.sgpr, (self.vgpr + 3) // 4 * 4)

def srd_load(a, s, what):
    a("s_load_dwordx2 s[%d:%d], s[0:1], %d" % (s, s + 1, KA[what]))
    a("s_mov_b32 s%d, 0x%x" % (s + 2, SIZE[what]))
    a("s_mov_b32 s%d, 0x00020000" % (s + 3))
def srd_tab(a, s):
    a("s_getpc_b64 s[%d:%d]" % (s, s + 1))
    a.raw("    s_add_u32 s%d, s%d, tables@rel32@lo+4" % (s, s))
    a.raw("    s_addc_u32 s%d, s%d, tables@rel32@hi+12" % (s + 1, s + 1))
    a("s_mov_b32 s%d, 0x%x" % (s + 2, TSIZE))
    a("s_mov_b32 s%d, 0x00020000" % (s + 3))
def lane_setup(a):
    a("""
    v_lshrrev_b32 v4, 6, v0
    v_and_b32 v1, 63, v0
    v_readfirstlane_b32 s3, v4
    v_and_b32 v2, 31, v0
    v_lshrrev_b32 v3, 5, v1
    v_lshlrev_b32 v9, 4, v1
    """)

ACC = 16
def g64_ids(a):
    a("""
    s_and_b32 s40, s2, 7
    s_lshr_b32 s41, s2, 3
    s_and_b32 s42, s40, 1
    s_lshl_b32 s42, s42, 2
    s_and_b32 s47, s41, 3
    s_add_u32 s42, s42, s47         ; cb
    s_lshr_b32 s43, s40, 1
    s_lshl_b32 s43, s43, 3
    s_lshr_b32 s48, s41, 2
    s_add_u32 s43, s43, s48         ; rb
    s_lshl_b32 s47, s47, 1
    s_add_u32 s51, s47, s48         ; rot (mod 8 applied later)
    s_lshr_b32 s40, s3, 1
    s_and_b32 s41, s3, 1
    s_lshl_b32 s44, s42, 1
    s_add_u32 s44, s44, s40
    s_lshl_b32 s46, s43, 1
    s_add_u32 s46, s46, s41
    s_lshl_b32 s52, s3, 15
    s_lshl_b32 s40, s40, 15
    v_add_u32 v10, s40, v9
    s_lshl_b32 s40, s41, 15
    s_add_u32 s49, s40, 0x10000
    s_cmp_lt_u32 s3, 2
    s_cselect_b32 s45, s42, s43
    s_lshl_b32 s45, s45, 1
    s_add_u32 s45, s45, s41
    s_cmp_lt_u32 s3, 2
    """)
def g64_issue(a, ch, general, base="s50"):
    a("s_add_u32 s53, s51, %d\ns_and_b32 s53, s53, 7" % ch)
    if general:
        a("s_lshl_b32 s53, s53, s54\ns_add_u32 s53, s53, %s\ns_add_u32 s56, s53, s55" % base)
        for i in range(4):
            a("s_add_u32 m0, s52, %d" % (ch * 4096 + i * 1024))
            a("buffer_load_dwordx4 v%d, s[20:23], s%d offen lds" % (12 + (i >> 1), 53 if i % 2 == 0 else 56))
    else:
        a("s_lshl_b32 s53, s53, 12\ns_add_u32 m0, s52, %d\ns_add_u32 s53, s53, %s" % (ch * 4096, base))
        for i in range(4):
            a("buffer_load_dwordx4 v9, s[20:23], s53 offen offset:%d lds" % (i * 1024))
def g64_compute(a, ch, rowB, first, hook=None):
    for t in range(4):
        a("ds_read_b128 %s, v10 offset:%d" % (R(32 + 8 * t, 4), ch * 4096 + t * 1024))
        if rowB: a("ds_read_b128 %s, v%d offset:%d" % (R(36 + 8 * t, 4), 14 + (t & 1), ch * 4096 + (t >> 1) * 1024))
        else:    a("ds_read_b128 %s, v11 offset:%d" % (R(36 + 8 * t, 4), ch * 4096 + t * 1024))
    for t in range(4):
        a("s_waitcnt lgkmcnt(%d)" % (6 - 2 * t))
        a("v_mfma_f32_32x32x16_bf16 %s, %s, %s, %s" % (R(ACC, 16), R(32 + 8 * t, 4), R(36 + 8 * t, 4), "0" if (first and t == 0) else R(ACC, 16)))
        if hook: hook(36 + 8 * t)
PRE = 4
def g64_run(k, general, rowB, marks, hook=None, first=True):
    a = k.a
    for ch in range(8):
        a.wait_vm(marks[ch]); a("s_barrier")
        if ch == 0: k.mark()
        if ch + PRE < 8:
            g64_issue(a, ch + PRE, general); marks.append(a.vm - 1)
        g64_compute(a, ch, rowB, first and ch == 0, hook)
    k.mark()

def uc_store(a):
    for p in range(8): a("v_cvt_pk_bf16_f32 v%d, v%d, v%d" % (32 + p, ACC + 2 * p, ACC + 2 * p + 1))
    for p in range(8): a("buffer_store_dword v%d, v5, s[8:11], s%d offen" % (32 + p, 64 + p))
def uc_addr(a):
    a("s_lshl_b32 s40, s44, 17\ns_lshl_b32 s41, s46, 7\ns_add_u32 s40, s40, s41\ns_add_u32 s64, s40, 0x%x" % OFF["UC"])
    for p in range(1, 8): a("s_add_u32 s%d, s64, %d" % (64 + p, (8 * (p >> 2) + (p & 3)) * 8192))
    a("v_lshlrev_b32 v5, 15, v3\nv_lshl_add_u32 v5, v2, 2, v5")
def ssq_addr(a, dst):
    a("s_lshl_b32 %s, s46, 7\nv_lshlrev_b32 v6, 2, v2" % dst)

def rowmajor_addrs(a, rowstride_shift, rh_stride, bbase):
    a("""
    v_lshrrev_b32 v4, 2, v1
    v_lshrrev_b32 v7, 4, v1
    v_xor_b32 v7, v7, v1
    v_and_b32 v7, 3, v7
    v_lshlrev_b32 v7, 4, v7
    v_lshl_add_u32 v12, v4, %d, v7
    v_add_u32 v13, 0x%x, v12
    v_bfe_u32 v4, v1, 2, 2
    v_xor_b32 v4, v4, v3            ; h ^ x
    v_and_b32 v7, 15, v1
    v_lshlrev_b32 v7, 6, v7
    v_bfe_u32 v8, v1, 4, 1
    v_lshl_add_u32 v7, v8, 11, v7
    v_add_u32 v7, %s, v7
    v_lshl_add_u32 v14, v4, 4, v7
    v_xor_b32 v15, 32, v14
    """ % (rowstride_shift, rh_stride, bbase))

def k_col():
    k2 = K("col2_kernel", 208); a = k2.a
    a("s_mov_b32 s47, 0x%x\ns_movk_i32 s61, 256\ns_mov_b32 s62, 0\ns_branch L_col" % OFF["SSQ2"])
    k = K("col1_kernel", 208); a = k.a
    a("s_mov_b32 s47, 0x%x\ns_movk_i32 s61, 256\ns_mov_b32 s62, 1" % OFF["SSQ0"])
    a("L_col:")
    X1, X2, X3 = 0, 8704, 17408
    RAW, SQ, UO, M1, M2, TWF, TWI, WW, WU, BUF = 16, 24, 32, 48, 80, 112, 128, 144, 176, 144
    WW = 16
    WW = 184
    WU = 176
    a("s_cmp_ge_u32 s2, s61\ns_cbranch_scc1 L_col_end")
    srd_load(a, 8, "ws"); srd_tab(a, 16)
    lane_setup(a)
    a("s_mov_b32 s48, %d\ns_mov_b32 s49, %d" % (TOFF["M1"], TOFF["M1"] + 4096))
    a("s_lshl_b32 s50, s3, 13\ns_add_u32 s50, s50, %d\ns_add_u32 s51, s50, 4096" % TOFF["M2"])
    for f in range(8): a("buffer_load_dwordx4 %s, v9, s[16:19], s%d offen offset:%d" % (R(M1 + 4 * f, 4), 48 + (f >> 2), 1024 * (f & 3)))
    def m2(lo, hi):
        for f in range(lo, hi): a("buffer_load_dwordx4 %s, v9, s[16:19], s%d offen offset:%d" % (R(M2 + 4 * f, 4), 50 + (f >> 2), 1024 * (f & 3)))
    a("""
    s_and_b32 s42, s2, 7
    s_lshr_b32 s43, s2, 3
    s_lshl_b32 s42, s42, 5
    s_add_u32 s42, s42, s43         ; slot k
    v_and_b32 v5, 15, v1            ; b_l
    v_lshrrev_b32 v6, 4, v1         ; q
    v_lshlrev_b32 v7, 2, v1
    s_lshl_b32 s44, s3, 11          ; w*2048
    s_lshl_b32 s45, s42, 13
    s_add_u32 s45, s45, s44         ; k*8192 + w*2048
    s_add_u32 s54, s45, 0x%x
    s_add_u32 s45, s45, 0x%x
    s_add_u32 s47, s47, s44
    v_lshlrev_b32 v15, 8, v3
    v_lshl_add_u32 v15, v2, 2, v15
    ; forward twiddles: b = 16w+b_l, j1 = 8q+v
    s_lshl_b32 s56, s3, 4
    v_add_u32 v10, s56, v5
    v_cvt_f32_u32 v10, v10
    v_mul_f32 v10, 0x3a000000, v10      ; b/2048
    v_lshlrev_b32 v11, 3, v6
    v_cvt_f32_u32 v11, v11
    v_mul_f32 v11, v10, v11
    """ % (OFF["WT"], OFF["UC"]))
    M2A = 0
    for i in range(8):
        if i == OPT.get("twa", 4):
            a("s_waitcnt lgkmcnt(0)")
            k.mark()
            for v in range(8): a("buffer_load_dword v%d, v7, s[8:11], s47 offen offset:%d" % (SQ + v, 256 * v))
            for v in range(8): a("buffer_load_dword v%d, v7, s[8:11], s45 offen offset:%d" % (RAW + v, 256 * v))
            m_in = a.vm - 1
            k.mark()
        a("v_fmamk_f32 v12, v10, 0x%x, v11" % fbits(i))
        a("v_cos_f32 v%d, v12\nv_sin_f32 v%d, v12" % (TWF + 2 * i, TWF + 2 * i + 1))
    a("""
    v_cvt_f32_u32 v10, v2
    v_mul_f32 v10, 0x3a000000, v10
    v_lshlrev_b32 v11, 1, v3
    v_add_u32 v11, s56, v11
    v_cvt_f32_u32 v11, v11
    v_mul_f32 v11, v10, v11
    s_mov_b32 s58, 0x3a000000
    s_mov_b32 s59, 0x3a000000
    """)
    for g in range(4):
        for e in range(2):
            i = 2 * g + e
            a("v_fmamk_f32 v12, v10, 0x%x, v11" % fbits(4 * g + e))
            a("v_cos_f32 v%d, v12\nv_sin_f32 v%d, v12" % (TWI + 2 * i, TWI + 2 * i + 1))
    for i in range(8): a("v_pk_mul_f32 %s, %s, s[58:59]" % (R(TWI + 2 * i, 2), R(TWI + 2 * i, 2)))
    a("""
    s_movk_i32 s57, 2176
    v_mul_lo_u32 v10, v6, s57           ; 8q*272
    v_lshl_add_u32 v10, v5, 2, v10
    s_lshl_b32 s58, s3, 6
    v_add_u32 v10, s58, v10             ; X1 write
    s_movk_i32 s57, 272
    v_mul_lo_u32 v11, v2, s57
    v_lshl_add_u32 v12, v3, 3, v11
    v_add_u32 v12, s58, v12             ; X2 write
    v_lshl_add_u32 v11, v3, 4, v11      ; X1/X2 read
    s_mul_i32 s58, s3, 2304
    s_movk_i32 s57, 288
    v_mul_lo_u32 v13, v3, s57
    v_lshl_add_u32 v13, v2, 2, v13
    v_add_u32 v13, s58, v13             ; X3 write
    s_movk_i32 s57, 144
    v_mul_lo_u32 v14, v5, s57
    v_add_u32 v14, s58, v14
    v_lshl_add_u32 v14, v6, 5, v14      ; X3 read: (16w+b_l)*144 + q*32
    s_lshr_b32 s40, s42, 2
    s_lshl_b32 s40, s40, 9
    s_and_b32 s41, s42, 3
    s_lshl_b32 s41, s41, 2
    s_add_u32 s40, s40, s41
    s_lshl_b32 s41, s3, 19
    s_add_u32 s40, s40, s41
    s_add_u32 s40, s40, 0x%x
    v_lshlrev_b32 v8, 15, v3
    v_lshl_add_u32 v8, v2, 4, v8        ; UB: (lane>>5)*32768 + m*16
    s_mov_b32 s60, 0x%x
    v_mov_b32 v4, 0x%x
    """ % (OFF["UB"], fbits(1.0 / 512), fbits(1e-5)))
    a("""
    PFA
    v_lshlrev_b32 v180, 6, v1
    """.replace("PFA", """s_lshl_b32 s63, s43, 2
    s_add_u32 s63, s63, s3
    s_mul_i32 s63, s63, 12288
    s_add_u32 s63, s63, 0x%x
    s_add_u32 s64, s63, 4096
    s_add_u32 s65, s63, 8192""" if OPT.get("map", 0) else """s_and_b32 s63, s2, 1
    s_lshl_b32 s63, s63, 5
    s_add_u32 s63, s63, s43
    s_lshl_b32 s63, s63, 2
    s_add_u32 s63, s63, s3
    s_mul_i32 s63, s63, 6144
    s_add_u32 s63, s63, 0x%x
    s_add_u32 s64, s63, 4096""") % OFF["WP"])
    def side():
        a("buffer_load_dword v181, v180, s[8:11], s63 offen")
        if OPT.get("map", 0):
            a("buffer_load_dword v182, v180, s[8:11], s64 offen\nbuffer_load_dword v183, v180, s[8:11], s65 offen")
        else:
            a("s_mov_b32 exec_hi, 0\nbuffer_load_dword v182, v180, s[8:11], s64 offen\ns_mov_b32 exec_hi, -1")
    def late():
        m2(M2A, 8)
        for i in range(8): a("buffer_load_dword v%d, v15, s[8:11], s54 offen offset:%d" % (WW + i, 128 * (4 * (i >> 1) + (i & 1))))
        return a.vm - 1
    if OPT.get("late", 0) == 0: m_w = late()
    k.mark()
    a.wait_vm(m_in - 8)
    for i in range(8): a("v_fma_f32 v%d, v%d, s60, v4" % (SQ + i, SQ + i))
    for i in range(8): a("v_rsq_f32 v%d, v%d" % (SQ + i, SQ + i))
    a.wait_vm(m_in)
    k.mark()
    T0 = BUF
    for v in range(8):
        a("v_and_b32 v%d, 0xffff0000, v%d\nv_lshlrev_b32 v%d, 16, v%d" % (UO + 2 * v, RAW + v, UO + 2 * v + 1, RAW + v))
        s = v & 1
        a("v_pk_mul_f32 %s, %s, %s op_sel:[0,%d] op_sel_hi:[1,%d]" % (R(T0 + 2 * v, 2), R(UO + 2 * v, 2), R(SQ + v - s, 2), s, s))
    a("s_cmp_eq_u32 s42, 0\ns_cbranch_scc1 L_col_z0")
    a("L_col_n0:")
    for v in range(8): a("v_cvt_pk_bf16_f32 v%d, v%d, v%d" % (SQ + v, T0 + 2 * v + 1, T0 + 2 * v))
    for t in range(2):
        for tau in range(4):
            d = R(T0 + 4 * tau, 4)
            a("v_mfma_f32_16x16x32_bf16 %s, %s, %s, %s" % (d, R(M1 + 4 * (2 * tau + t), 4), R(SQ + 4 * t, 4), "0" if t == 0 else d))
    if OPT.get("sd", 0) == 2: side()
    T1_ = BUF + 16
    for i in range(8):
        y, tw, t = R(T0 + 2 * i, 2), R(TWF + 2 * i, 2), R(T1_ + 2 * i, 2)
        a("v_pk_mul_f32 %s, %s, %s op_sel:[0,0] op_sel_hi:[1,0]" % (t, y, tw))
        a("v_pk_fma_f32 %s, %s, %s, %s op_sel:[1,1,0] op_sel_hi:[0,1,1] neg_hi:[1,0,0]" % (t, y, tw, t))
        a("v_cvt_pk_bf16_f32 v%d, v%d, v%d" % (SQ + i, T1_ + 2 * i, T1_ + 2 * i + 1))
        a("ds_write_b32 v10, v%d offset:%d" % (SQ + i, X1 + i * 272))
    a("s_waitcnt lgkmcnt(0)\ns_barrier")
    k.mark()
    for t in range(8): a("ds_read_b128 %s, v11 offset:%d" % (R(BUF + 4 * t, 4), X1 + 32 * t))
    a.wait_vm(m_w)
    AC = TWF
    for t in range(8):
        a("s_waitcnt lgkmcnt(%d)" % (7 - t))
        a("v_mfma_f32_32x32x16_bf16 %s, %s, %s, %s" % (R(AC, 16), R(M2 + 4 * t, 4), R(BUF + 4 * t, 4), "0" if t == 0 else R(AC, 16)))
        a("v_lshlrev_b32 v%d, 16, v%d\nv_and_b32 v%d, 0xffff0000, v%d" % (192 + 2 * t, WW + t, 193 + 2 * t, WW + t))
        if t == 7 and OPT.get("sd", 0) == 0: side()
    for i in range(8):
        y, w, t = R(AC + 2 * i, 2), R(192 + 2 * i, 2), R(T1_ + 2 * i, 2)
        a("v_pk_mul_f32 %s, %s, %s op_sel:[0,0] op_sel_hi:[1,0] neg_hi:[1,0]" % (t, y, w))
        a("v_pk_fma_f32 %s, %s, %s, %s op_sel:[1,1,0] op_sel_hi:[0,1,1] neg_lo:[1,0,0] neg_hi:[1,0,0]" % (t, y, w, t))
        a("v_cvt_pk_bf16_f32 v%d, v%d, v%d" % (SQ + i, T1_ + 2 * i, T1_ + 2 * i + 1))
        if i & 1: a("ds_write_b64 v12, %s offset:%d" % (R(SQ + i - 1, 2), X2 + 16 * (i >> 1)))
    a("s_waitcnt lgkmcnt(0)\ns_barrier")
    k.mark()
    for t in range(8): a("ds_read_b128 %s, v11 offset:%d" % (R(BUF + 4 * t, 4), X2 + 32 * t))
    for t in range(8):
        a("s_waitcnt lgkmcnt(%d)" % (7 - t))
        a("v_mfma_f32_32x32x16_bf16 %s, %s, %s, %s" % (R(AC, 16), R(M2 + 4 * t, 4), R(BUF + 4 * t, 4), "0" if t == 0 else R(AC, 16)))
        if t == 1 and OPT.get("sd", 0) == 1: side()
    for i in range(8):
        y, tw, t = R(AC + 2 * i, 2), R(TWI + 2 * i, 2), R(T0 + 2 * i, 2)
        a("v_pk_mul_f32 %s, %s, %s op_sel:[0,1] op_sel_hi:[0,0]" % (t, y, tw))
        a("v_pk_fma_f32 %s, %s, %s, %s op_sel:[1,0,0] op_sel_hi:[1,1,1] neg_lo:[1,0,0]" % (t, y, tw, t))
        a("v_cvt_pk_bf16_f32 v%d, v%d, v%d" % (SQ + i, T0 + 2 * i, T0 + 2 * i + 1))
        a("ds_write_b32 v13, v%d offset:%d" % (SQ + i, X3 + (4 * (i >> 1) + (i & 1)) * 144))
    a("s_waitcnt lgkmcnt(0)")
    for t in range(2): a("ds_read_b128 %s, v14 offset:%d" % (R(BUF + 4 * t, 4), X3 + 16 * t))
    a("s_waitcnt lgkmcnt(0)")
    k.mark()
    for t in range(2):
        for tau in range(4):
            d = R(UO + 4 * tau, 4)
            a("v_mfma_f32_16x16x32_bf16 %s, %s, %s, %s" % (d, R(M1 + 4 * (2 * tau + t), 4), R(BUF + 4 * t, 4), d))
    a("s_cmp_eq_u32 s42, 0\ns_cbranch_scc1 L_col_z1")
    a("L_col_n1:")
    for v in range(8):
        a("v_cvt_pk_bf16_f32 v%d, v%d, v%d" % (SQ + v, UO + 2 * v + 1, UO + 2 * v))
        a("buffer_store_dword v%d, v8, s[8:11], s40 offen" % (SQ + v))
        if v < 7: a("s_add_u32 s40, s40, 0x10000")
    a("L_col_end:")
    a("s_endpgm")
    a("L_col_z0:")
    for v in range(8): a("v_mov_b32 v%d, 0" % (T0 + 2 * v))
    a("s_branch L_col_n0")
    a("L_col_z1:")
    for v in range(8): a("v_and_b32 v%d, 0xffff0000, v%d" % (UO + 2 * v, RAW + v))
    a("s_branch L_col_n1")
    return (k, 256, 256, 32768), (k2, 256, 256, 32768)

from prep4 import k_prep
from mha8 import k_mha


def hexdump(arr):
    u = np.ascontiguousarray(arr).reshape(-1).view(np.uint64)
    return "\n".join(".quad " + ",".join("0x%x" % v for v in u[i:i + 8]) for i in range(0, len(u), 8)) + "\n"

def tables():
    s = '.section .rodata,"a"\n.p2align 12\n'
    c = cos512()
    for i in range(512): s += ".set C%d, 0x%04x\n" % (i, c[i])
    s += r""".altmacro
.macro E8 a,b,c,d,e,f,g,h
.short C\a,C\b,C\c,C\d,C\e,C\f,C\g,C\h
.endm
.macro G8 i0,i1,p,d
E8 %((\i0)&511),%((\i1)&511),%((\p+\d)&511),%((\p+\d+128)&511),%((\p+2*\d)&511),%((\p+2*\d+128)&511),%((\p+3*\d)&511),%((\p+3*\d+128)&511)
.endm
.type tables,@object
tables:
.set n, 0
.rept 32768
.set dd, ((n>>11)<<5) + (((n>>2)&1)<<4) + (((n>>3)&3)<<2) + (n&3)
.set kk, (((n>>6)&31)<<3) + (((n>>5)&1)<<2)
.set z, ((kk-1)>>63)&1
.set pp, kk*dd
.set i0, z*(256*dd+64) + (1-z)*pp
.set i1, z*64 + (1-z)*(pp+128)
G8 i0, i1, pp, dd
.set n, n+1
.endr
.noaltmacro
"""
    s += hexdump(tab_M1()) + hexdump(tab_M2())
    return s

DOC = '''; ---------------------------------------------------------------------------------------------------
; ---------------------------------------------------------------------------------------------------
'''
def build(order=None):
    c1, c2 = k_col()
    me = sys.modules[__name__]
    m1, m2 = k_mha(me)
    ks = dict(prep=k_prep(me), col2=c2, col1=c1, mha2=m2, mha1=m1)
    order = order or ["prep", "col1", "mha1", "col2", "mha2"]
    ref = open("cdna_kernels/%s.s.ref" % NAME).read().split("\n")
    head = "\n".join(l for l in ref[:10]) + "\n"
    for o in order:
        k, g, b, lds = ks[o]
        head += "; @launch kernel=%s grid=(%d,1,1) block=(%d,1,1) lds=%d\n" % (k.name, g, b, lds)
    s = head + DOC + '.amdgcn_target "amdgcn-amd-amdhsa--gfx950"\n'
    for i, (k, *_) in enumerate(ks.values()):
        if i == 1: s += ".text\n.p2align 8\ncode_begin:\n"
        s += k.text()
    s += "code_end:\n"
    for k, *_ in ks.values(): s += k.desc()
    s += tables()
    return s

if __name__ == "__main__":
    out = sys.argv[1] if len(sys.argv) > 1 else "cdna_kernels/%s.s" % NAME
    STAMP = len(sys.argv) > 2 and "stamp" in sys.argv[2]
    for kv in sys.argv[3:]:
        key, val = kv.split("="); OPT[key] = int(val)
    open(out, "w").write(build())
    print("wrote", out)
```

```python
def k_mha(G):
    K, R, OFF, TOFF, srd_load, srd_tab, lane_setup, OPT, fbits, LAYER = G.K, G.R, G.OFF, G.TOFF, G.srd_load, G.srd_tab, G.lane_setup, G.OPT, G.fbits, G.LAYER
    NV = 248
    k2 = K("mha2_kernel", NV)
    k2.a("s_mov_b32 s65, 0x%x\ns_mov_b32 s66, 1\ns_branch L_mha" % LAYER)
    k = K("mha1_kernel", NV); a = k.a
    a("s_mov_b32 s65, 0\ns_mov_b32 s66, 0")
    a("L_mha:")
    MAP = """    s_and_b32 s42, s40, 1
    s_lshl_b32 s42, s42, 4
    s_and_b32 s47, s41, 15
    s_add_u32 s42, s42, s47         ; head
    s_lshr_b32 s43, s40, 1
    s_lshl_b32 s43, s43, 1
    s_lshr_b32 s48, s41, 4
    s_add_u32 s43, s43, s48         ; qb
    s_lshl_b32 s48, s48, 2
    s_add_u32 s51, s47, s48
""" if not OPT.get("map", 0) else """    s_mov_b32 s42, s41              ; head
    s_mov_b32 s43, s40              ; qb
    s_mov_b32 s51, s41              ; rot
"""
    IDX = 12; KA0 = 13; VA0 = 14; VINC = 15
    Q = 16; KB = 24; VB = 32; S0, S1, CM, OA = 48, 64, 80, 112
    RS = 144; AL = 148; LN = 149; AW = 152; A3 = 216
    CB = 0x20000; BN = 0x21000; XB = 0x22400; WL = 0x2000
    a("s_cmp_ge_u32 s2, 256\ns_cbranch_scc1 L_mha_end")
    srd_load(a, 8, "ws"); srd_load(a, 12, "out"); srd_tab(a, 20)
    lane_setup(a)
    a("""
    s_and_b32 s40, s2, 7
    s_lshr_b32 s41, s2, 3
MAPPING    s_lshl_b32 s44, s43, 3
    s_add_u32 s44, s44, s3          ; projection row tile
    s_lshl_b32 s45, s44, 15
    s_add_u32 s45, s45, 0x%x        ; UB tile
    s_mul_i32 s46, s42, 49152
    s_add_u32 s46, s46, 0x%x        ; W' of the head
    s_add_u32 s47, s51, s3
    s_and_b32 s47, s47, 7
    s_lshl_b32 s48, s47, 12
    s_add_u32 s48, s48, s46
    s_lshl_b32 s49, s47, 11
    s_add_u32 s49, s49, s46
    s_add_u32 s49, s49, 32768
    s_lshl_b32 s52, s3, 12
    s_lshl_b32 s53, s3, 11
    s_add_u32 m0, s52, 0x%x
    v_lshlrev_b32 v5, 4, v2
    s_waitcnt lgkmcnt(0)
    """.replace("MAPPING", MAP) % (OFF["UB"], OFF["WP"], WL))
    k.mark()
    UF = AW; AQK = 80; AV = 96; WB = 16; RING = 16
    def ureg(t):
        i = t % RING
        return UF + 4 * i
    um = []
    def uload(t):
        if t % 4 == 0:
            a("s_add_u32 s54, s51, %d\ns_and_b32 s54, s54, 7\ns_lshl_b32 s54, s54, 12\ns_add_u32 s54, s54, s45" % (t >> 2))
        a("buffer_load_dwordx4 %s, v9, s[8:11], s54 offen offset:%d" % (R(ureg(t), 4), 1024 * (t & 3)))
        um.append(a.vm - 1)
    for t in range(OPT.get("ub", 0)): uload(t)
    for i in range(4): a("buffer_load_dwordx4 v9, s[8:11], s48 offen offset:%d lds" % (1024 * i))
    a("s_add_u32 m0, s53, 0x%x" % (WL + 32768))
    for i in range(2): a("buffer_load_dwordx4 v9, s[8:11], s49 offen offset:%d lds" % (1024 * i))
    m_w = a.vm - 1
    UPRE = OPT.get("upre", 8)
    while len(um) < OPT.get("u0", 3): uload(len(um))
    a("""
    v_mov_b32 v%(LN)d, v1
    v_lshlrev_b32 v150, 2, v2               ; partial-sum store offset m*4
    v_lshl_add_u32 v151, v3, 9, v150        ; partial-sum load offset h*512 + m*4
    s_lshl_b32 s58, s44, 10
    s_lshl_b32 s59, s66, 16
    s_add_u32 s58, s58, s59
    s_add_u32 s58, s58, 0x%(psq)x
    s_and_b32 s59, s51, 7
    s_lshl_b32 s59, s59, 7
    s_add_u32 s59, s59, s58
    v_mov_b32 v148, v5
    v_and_b32 v5, 15, v1
    v_lshlrev_b32 v5, 4, v5
    v_lshl_add_u32 v5, v3, 8, v5            ; h*256 + (m&15)*16
    v_add_u32 v6, 0x%(wl)x, v9              ; W'qk read address
    s_lshr_b32 s41, s3, 2                   ; kh
    s_lshl_b32 s55, s41, 12
    v_add_u32 v%(KA0)d, s55, v9
    s_add_u32 s55, s55, 0x10000
    v_add_u32 v4, s55, v5
    v_and_b32 v10, 27, v2
    v_cmp_eq_u32 vcc, 16, v10
    v_mov_b32 v10, 0x%(cb1)x
    v_mov_b32 v11, 0x%(cb0)x
    v_cndmask_b32 v10, v10, v11, vcc
    v_cmp_gt_u32 s[60:61], 16, v2
    v_mov_b32 v11, 0
    v_mov_b32 v%(IDX)d, 8192
    v_cndmask_b32 v%(VA0)d, v10, v4, s[60:61]
    v_cndmask_b32 v%(VINC)d, v11, v%(IDX)d, s[60:61]
    v_mov_b32 v%(IDX)d, 0xdddddddd
    v_lshrrev_b32 v4, 1, v1
    v_and_b32 v10, 7, v4
    v_lshrrev_b32 v4, 3, v4
    v_lshlrev_b32 v10, 9, v10
    v_lshl_add_u32 v4, v4, 13, v10
    v_and_b32 v10, 1, v1
    v_lshl_add_u32 v4, v10, 4, v4
    v_add_u32 v4, 0x%(cb0)x, v4
    v_add_u32 v10, -1, v10
    v_and_b32 v16, 0x3f803f80, v10
    v_mov_b32 v17, v16
    v_mov_b32 v18, v16
    v_mov_b32 v19, v16
    s_mov_b64 exec, 0xfffff
    ds_write_b128 v4, v[16:19]
    s_mov_b64 exec, -1
    v_mov_b32 v10, 0
    v_mov_b32 v11, 0
    """ % dict(KA0=KA0, VA0=VA0, VINC=VINC, IDX=IDX, cb0=CB, cb1=CB + 16, wl=WL, wv=WL + 32768, LN=LN, psq=OFF["PSQ"]))
    for r in range(16): a("v_mov_b32 v%d, 0" % (A3 + r))
    for r in range(32): a("v_mov_b32 v%d, 0" % (OA + r))
    for r in range(8): a("v_mov_b32 v%d, 0" % (S1 + 8 + r))
    a("""
    s_lshl_b32 s48, s3, 8
    s_add_u32 s48, s48, 0x%x
    v_lshl_add_u32 v64, v1, 2, s48  ; rinv write
    v_and_b32 v65, 48, v1
    v_add_u32 v65, s48, v65         ; rinv read: rows 4*(lane>>4)..
    v_bfe_u32 v4, v1, 4, 1
    v_lshl_add_u32 v66, v4, 9, v5   ; V offset f*512 + h*256 + dim*16
    s_lshl_b32 s48, s42, 16
    s_add_u32 s48, s48, s65
    s_add_u32 s48, s48, 0x%x        ; K base of the head
    s_lshl_b32 s62, s44, 10
    s_add_u32 s62, s62, s48
    s_add_u32 s63, s62, 0x%x
    s_lshl_b32 s52, s3, 10
    v_add_u32 v68, s52, v9
    s_add_u32 s53, s52, 0x10000
    v_add_u32 v69, s53, v66
    s_add_u32 s53, s52, 0x%x
    v_add_u32 v70, s53, v9
    s_and_b32 s40, s3, 3
    s_lshl_b32 s40, s40, 1
    s_add_u32 s40, s40, s41         ; local q tile
    s_lshl_b32 s44, s43, 3
    s_add_u32 s44, s44, s40         ; output row tile
    s_lshl_b32 s40, s40, 10
    v_add_u32 v5, s40, v9
    v_xor_b32 v71, 1024, v5
    v_add_u32 v71, 0x%x, v71
    v_add_u32 v5, 0x%x, v5
    s_add_u32 s48, s48, s52         ; K base + w*1024
    s_add_u32 s49, s52, 8192        ; LDS offset of the next group
    s_add_u32 s50, s43, 1           ; next block
    s_lshl_b32 s56, s42, 8
    s_lshl_b32 s57, s3, 5
    s_add_u32 s56, s56, s57
    s_lshl_b32 s57, s66, 13
    s_add_u32 s56, s56, s57
    s_add_u32 s56, s56, 0x%x        ; flags of (head, w)
    s_lshl_b32 s57, s43, 2
    s_add_u32 s57, s57, s56         ; own flag
    s_mov_b32 s67, 0
    """ % (BN, OFF["KF"], OFF["VF"] - OFF["KF"], XB, XB, XB, OFF["FLK"]))
    a.wait_vm(m_w, "lgkmcnt(0)"); a("s_barrier")
    k.mark()
    def wset(p): return WB + 12 * (p % 3)
    def wrd(p):
        b = wset(p)
        a("ds_read_b128 %s, v6 offset:%d" % (R(b, 4), 2 * p * 1024))
        a("ds_read_b128 %s, v6 offset:%d" % (R(b + 4, 4), (2 * p + 1) * 1024))
        a("ds_read_b128 %s, v6 offset:%d" % (R(b + 8, 4), 32768 + p * 1024))
    wrd(0); wrd(1)
    while len(um) < OPT.get("u1", 6): uload(len(um))
    def sq(r):
        a("v_and_b32 v4, 0xffff0000, v%d\nv_lshlrev_b32 v0, 16, v%d\nv_fmac_f32 v10, v4, v4\nv_fmac_f32 v11, v0, v0" % (r, r))
    def vm(p, f):
        a("v_mfma_f32_16x16x32_bf16 %s, %s, %s, %s" % (R(AV + 4 * f, 4), R(ureg(2 * p + f), 4), R(wset(p) + 8, 4), "0" if p == 0 else R(AV + 4 * f, 4)))
    PSC = OPT.get("psc", 14)
    for p in range(16):
        t = 2 * p; b = wset(p)
        nl = (3 if p < 15 else 0) + (3 if p > PSC else 0)
        a.wait_vm(um[t], "lgkmcnt(%d)" % nl)
        a("v_mfma_f32_32x32x16_bf16 %s, %s, %s, %s" % (R(AQK, 16), R(b, 4), R(ureg(t), 4), "0" if p == 0 else R(AQK, 16)))
        if p: vm(p - 1, 0)
        if len(um) < min(32, t + UPRE): uload(len(um))
        a.wait_vm(um[t + 1])
        a("v_mfma_f32_32x32x16_bf16 %s, %s, %s, %s" % (R(AQK, 16), R(b + 4, 4), R(ureg(t + 1), 4), R(AQK, 16)))
        if p: vm(p - 1, 1)
        if p + 2 < 16: wrd(p + 2)
        if p < 2: a("s_cmp_lt_u32 s42, 8\ns_cbranch_scc1 L_mha_sq%d\nL_mha_sb%d:" % (p, p))
        for r in range(4): a("v_permlane16_swap_b32 v%d, v%d" % (ureg(t) + r, ureg(t + 1) + r))
        while len(um) < min(32, t + 2 + UPRE - 1): uload(len(um))
        if OPT.get("p1pr", 1) and p in (0, 4, 8, 12): a("s_setprio %d" % (3 - p // 4))
        if p == OPT.get("pst", 10):
            a("buffer_load_dword v8, v148, s[8:11], s45 offen")
            for i in range(4): a("buffer_load_dword v%d, v151, s[8:11], s58 offen offset:%d sc1" % (RS + i, 128 * i))
            m_ps = a.vm - 1
        if p == PSC:
            a.wait_vm(m_ps)
            a("""
            v_or3_b32 v4, v144, v145, v146
            v_or_b32 v4, v4, v147
            v_cmp_gt_i32 vcc, 0, v4
            v_and_b32 v8, 0xffff0000, v8
            s_nop 0
            s_cbranch_vccnz L_mha_ps
L_mha_ps1:
            v_add_f32 v10, v144, v145
            v_add_f32 v11, v146, v147
            v_add_f32 v10, v10, v11
            v_mov_b32 v11, v10
            v_permlane32_swap_b32 v10, v11
            v_add_f32 v10, v10, v11
            v_fma_f32 v10, -v8, v8, v10
            v_mov_b32 v11, 0x%x
            v_fmac_f32 v11, 0x%x, v10
            v_rsq_f32 v10, v11
            s_nop 0
            ds_write_b32 v64, v10
            ds_read_b128 v[104:107], v65
            ds_read_b128 v[108:111], v65 offset:64
            """ % (fbits(1e-5), fbits(1.0 / 512)))
    vm(15, 0); vm(15, 1)
    assert UPRE <= 13
    k.mark()
    a("v_and_b32 v8, 7, v1\nv_lshlrev_b32 v8, 2, v8\nv_mov_b32 v0, 0\nv_mov_b32 v1, 1\nv_mov_b32 v6, v%d\nv_mov_b32 v7, v%d" % (KA0, VA0))
    for r in range(4): a("v_mov_b32 v%d, 0" % (VB + 12 + r))
    for r in range(8, 16): a("v_mul_f32 v%d, v10, v%d" % (AQK + r, AQK + r))
    for r in range(4): a("v_cvt_pk_bf16_f32 v%d, v%d, v%d" % (56 + r, AQK + 8 + 2 * r, AQK + 9 + 2 * r))
    a("buffer_store_dwordx4 v[56:59], v9, s[8:11], s62 offen sc1")
    a("ds_write_b128 v68, v[56:59]")
    a("s_waitcnt lgkmcnt(1)")
    for r in range(8): a("v_mul_f32 v%d, v%d, v%d" % (AV + r, AV + r, 104 + r))
    for r in range(4): a("v_cvt_pk_bf16_f32 v%d, v%d, v%d" % (60 + r, AV + 2 * r, AV + 1 + 2 * r))
    a("v_permlane16_swap_b32 v60, v62\nv_permlane16_swap_b32 v61, v63")
    a("buffer_store_dwordx4 v[60:63], v66, s[8:11], s63 offen sc1")
    a("ds_write_b128 v69, v[60:63]")
    for r in range(8): a("v_mul_f32 v%d, v10, v%d" % (AQK + r, AQK + r))
    for r in range(4): a("v_cvt_pk_bf16_f32 v%d, v%d, v%d" % (48 + r, AQK + 2 * r, AQK + 1 + 2 * r))
    a("ds_write_b128 v70, v[48:51]")
    a("v_mov_b32 v52, 0")
    for r in range(4): a("v_dot2c_f32_bf16 v52, v%d, v%d" % (48 + r, 56 + r))
    a("s_nop 2\nv_mov_b32 v53, v52\nv_permlane32_swap_b32 v52, v53")
    a("v_sub_f32_e64 v54, -v52, v53\nv_sub_f32_e64 v55, -v52, v53\nv_mov_b32 v52, v54\nv_mov_b32 v53, v54")
    a("ds_write_b128 v70, v[52:55] offset:8192")
    a("v_mov_b32 v4, v71\ns_mov_b32 s62, 0")
    if OPT.get("prio", 1): a("s_cmp_lt_u32 s3, 4\ns_cbranch_scc1 L_mha_np\ns_setprio 1\nL_mha_np:")
    a("s_waitcnt lgkmcnt(0)\ns_barrier")
    k.mark()
    def group():
        a("""
        s_and_b32 s51, s50, 7
        s_lshl_b32 s51, s51, 13
        s_mov_b32 m0, s49
        s_add_u32 s51, s51, s48
        buffer_load_dwordx4 v9, s[8:11], s51 offen sc1 lds
        s_add_u32 m0, s49, 0x10000
        s_add_u32 s51, s51, 0x%x
        buffer_load_dwordx4 v9, s[8:11], s51 offen sc1 lds
        s_add_u32 s49, s49, 8192
        s_add_u32 s50, s50, 1
        """ % (OFF["VF"] - OFF["KF"]))
    def off(t): return (t >> 2) * 8192 + (t & 3) * 1024
    def rdk(i, o): a("ds_read_b128 %s, v6 offset:%d" % (R(KB + 4 * i, 4), o))
    def rdv(i, f, o): a("ds_read_b128 %s, v7 offset:%d" % (R(VB + 8 * i + 4 * f, 4), o))
    def qk(S, i, q): a("v_mfma_f32_32x32x16_bf16 %s, %s, %s, %s" % (R(S, 16), R(KB + 4 * i, 4), R(Q + 4 * q, 4), "0" if OPT.get("c0") else R(CM + 16 * q, 16)))
    def pv(i, f, S, q):
        if OPT.get("pv16"): a("v_smfmac_f32_16x16x64_bf16 %s, %s, %s, v%d" % (R(OA + 16 * q, 4), R(VB + 8 * i + 4 * f, 4), R(S + 8 * f, 8), IDX)); return
        a("v_smfmac_f32_32x32x32_bf16 %s, %s, %s, v%d" % (R(OA + 16 * q, 16), R(VB + 8 * i + 4 * f, 4), R(S + 8 * f, 8), IDX))
    def ex(S, lo, hi):
        for r in range(lo, hi): a("v_exp_f32 v%d, v%d" % (S + r, S + r))
    a("ds_read_b128 %s, v4" % R(Q, 4))
    for g in range(4): a("ds_read_b128 %s, v4 offset:8192" % R(CM + 4 * g, 4))
    rdk(0, 0)
    a("ds_read_b128 %s, v5" % R(Q + 4, 4))
    for g in range(4): a("ds_read_b128 %s, v5 offset:8192" % R(CM + 16 + 4 * g, 4))
    rdv(0, 0, 0); rdv(0, 1, 512); rdk(1, 1024)
    a("s_waitcnt lgkmcnt(8)")
    qk(S0, 0, 0)
    a("s_waitcnt lgkmcnt(3)")
    k.mark()
    def body(x=False, hooks={}, loop=False, last=False, send=False):
        for u in range(8):
            t, q = u >> 1, u & 1
            Sc, Sn = (S0, S1) if q == 0 else (S1, S0)
            ex(Sc, 0, 2)
            pv((t - 1 + q) & 1, 1, Sn, 1 - q)
            if u in hooks: hooks[u]()
            nv = not (last and t == 3); nk = not (last and t >= 2)
            if q == 0 and nv:
                rdv((t + 1) & 1, 0, off(t + 1)); rdv((t + 1) & 1, 1, off(t + 1) + 512)
            ex(Sc, 2, 5)
            if not (last and u == 7): qk(Sn, (t + q) & 1, 1 - q)
            if q == 0 and nk: rdk(t & 1, off(t + 2))
            ex(Sc, 5, 10)
            if q == 0: a("s_waitcnt lgkmcnt(%d)" % (2 * nv + nk))
            pv(t & 1, 0, Sc, q)
            if u == 7 and not last:
                a("v_add_u32 v6, 8192, v6\nv_add_u32 v7, v%d, v7" % VINC)
            if u == 7 and loop:
                a("s_add_u32 s63, s63, 1\ns_cmp_lt_u32 s63, 8")
            if x:
                ex(Sc, 10, 14 if x == 2 else 10)
                if x == 2:
                    a("s_waitcnt vmcnt(14)")
                    a("v_mfma_f32_32x32x16_bf16 %s, %s, %s, %s" % (R(A3, 16), R(AW + 4 * u, 4), R(AW + 32 + 4 * u, 4), R(A3, 16)))
                a("buffer_load_dwordx4 %s, v%d, s[20:23], s%d offen offset:%d" % (R(AW + 4 * u, 4), AL, 76 + (u >> 2), 1024 * (u & 3)))
                a("buffer_load_dwordx4 %s, v150, s[8:11], s%d offen offset:%d" % (R(AW + 32 + 4 * u, 4), 78 + (u >> 2), 1024 * (u & 3)))
                ex(Sc, 14 if x == 2 else 10, 16)
            elif send and u == 7:
                ex(Sc, 10, 13)
                a("v_mov_b32 v%d, v%d" % (OA + 9, CM))
                a("ds_write_b128 v240, %s\nds_write_b128 v240, %s offset:1024\nds_write_b64 v241, %s offset:2048" % (R(OA, 4), R(OA + 4, 4), R(OA + 8, 2)))
                a("v_cmp_nlt_f32 s[68:69], v%d, v244" % (OA + 8))
                ex(Sc, 13, 16)
            else:
                ex(Sc, 10, 16)
    def h_flag(): a("s_waitcnt vmcnt(0)\nbuffer_store_dword v1, v0, s[8:11], s57 offen sc1")
    def h_poll(): a("buffer_load_dword v2, v8, s[8:11], s56 offen sc1")
    def h_chk(i, first, again):
        def f():
            if not first: a("s_cmp_eq_u32 s67, 1\ns_cbranch_scc1 L_mha_nr%d" % i)
            a("s_waitcnt vmcnt(0)\nv_cmp_ne_u32 vcc, 1, v2\ns_nop 1\ns_cbranch_vccnz L_mha_re%d" % i)
            group()
            if G1 == 2: group()
            a("s_mov_b32 s67, 1")
            if again:
                a("L_mha_nr%d:" % i)
                late.append(i)
            else:
                a("L_mha_re%d:\nL_mha_nr%d:" % (i, i))
        return f
    late = []
    G1 = 1 if OPT.get("kv2", 1) == 3 else 2
    def h_sync(n, g):
        def f():
            a("s_waitcnt vmcnt(%d)\ns_barrier" % n)
            for _ in range(g): group()
        return f
    def h_ids():
        a("""
        s_lshl_b32 s72, s43, 3
        s_lshr_b32 s73, s42, 2
        s_add_u32 s72, s72, s73         ; row tile of the output projection
        s_and_b32 s73, s42, 3
        s_lshl_b32 s73, s73, 2
        s_and_b32 s74, s3, 3
        s_add_u32 s73, s73, s74         ; column tile
        s_lshl_b32 s74, s73, 15
        s_lshl_b32 s75, s41, 14
        s_add_u32 s74, s74, s75         ; weight offset: tile*32K + kh*16K
        s_lshl_b32 s71, s72, 15
        s_add_u32 s71, s71, 0x%x        ; UB row tile
        s_add_u32 s78, s71, s75
        s_add_u32 s76, s74, 0x%x
        s_add_u32 s77, s76, 4096
        s_add_u32 s79, s78, 4096
        s_lshl_b32 s75, s41, 8
        v_xor_b32 v%d, s75, v9
        v_mov_b32 v150, v9
        s_lshl_b32 s75, s73, 11
        s_add_u32 s71, s71, s75
        s_lshl_b32 s75, s41, 10
        s_add_u32 s71, s71, s75
        buffer_load_dwordx4 %s, v9, s[8:11], s71 offen
        s_mul_i32 s75, s3, 2560
        s_add_u32 s75, s75, 0x%x
        v_add_u32 v240, s75, v9
        v_lshrrev_b32 v243, 1, v9
        v_add_u32 v241, s75, v243
        s_xor_b32 s75, s3, 4
        s_mul_i32 s75, s75, 2560
        s_add_u32 s75, s75, 0x%x
        v_add_u32 v242, s75, v9
        v_add_u32 v243, s75, v243
        v_mov_b32 v244, 0x4e800000
        s_lshl_b32 s58, s44, 15
        s_lshl_b32 s59, s42, 10
        s_add_u32 s58, s58, s59
        s_add_u32 s58, s58, s65
        s_add_u32 s58, s58, 0x%x
        """.replace("DELTA", "0x%x" % (OFF["OL"] - OFF["OF"])).replace("OFBASE", "0x%x" % OFF["OF"]) % (OFF["UB"], TOFF["T2"], AL, R(RS, 4), XB, XB, OFF["OF"]))
    def h_x2():
        for r in (76, 77, 78, 79): a("s_add_u32 s%d, s%d, 8192" % (r, r))
    def h_w():
        a("""
        s_setprio 0
        s_lshl_b32 s75, s66, 19
        s_add_u32 s76, s74, s75
        s_add_u32 s76, s76, 0x%x
        s_add_u32 s78, s76, 8192
        s_mov_b64 s[20:21], s[8:9]
        s_mov_b32 s22, s10
        v_mov_b32 v150, v%d
        s_add_u32 s77, s76, 4096
        s_add_u32 s79, s78, 4096
        """ % (OFF["WOP"], AL))
    assert OFF["WOF"] - OFF["WOP"] == 1 << 19
    hk = {OPT.get("hf", 0): h_flag, OPT.get("hp", 3): h_poll}
    cs = [OPT.get("hc", 5)] + ([OPT.get("hc2", 7)] if OPT.get("hc2", 7) else [])
    for i, c in enumerate(cs): hk[c] = h_chk(i, i == 0, i + 1 < len(cs))
    body(hooks=hk, last=True)
    a("v_add_u32 v6, 8192, v6\nv_add_u32 v7, v%d, v7" % VINC)
    a("s_cmp_eq_u32 s67, 1\ns_cbranch_scc0 L_mha_spin0")
    a("L_mha_rdy:")
    if OPT.get("mk") == 1: k.mark(0)
    a("s_waitcnt vmcnt(%d)\ns_barrier" % (0 if OPT.get("kv2", 1) in (2, 3) else 2))
    if OPT.get("mk") == 1: k.mark(1)
    rdk(0, 0); rdv(0, 0, 0); rdv(0, 1, 512); rdk(1, 1024)
    group()
    a("s_waitcnt lgkmcnt(3)")
    qk(S0, 0, 0)
    if OPT.get("kv2", 1) == 3:
        body(hooks={2: group, 4: h_sync(2, 0), 5: group})
        body(hooks={0: group, 4: h_sync(2, 0), 5: group})
        body(hooks={0: group, 2: h_ids})
        H4 = {4: h_sync(0, 0)}
    elif OPT.get("kv2", 1) == 2:
        body(hooks={2: group, 4: group, 6: group})
        body(hooks={0: group, 4: h_sync(0, 0)})
        body(hooks={0: h_ids})
    elif OPT.get("kv2", 1):
        body(hooks={2: group, 4: h_sync(4, 1), 6: group})
        if OPT.get("mk") == 1: k.mark(2)
        body(hooks={0: group, 4: h_sync(0, 0)})
        body(hooks={0: h_ids})
    else:
        body(hooks={4: h_sync(2, 1)})
        body(hooks={0: group, 2: group, 4: h_sync(4, 1)})
        body(hooks={0: h_ids, 4: h_sync(0, 0)})
    if OPT.get("kv2", 1) != 3: H4 = {}
    a("s_cmp_eq_u32 s66, 0\ns_cbranch_scc0 L_mha_x45")
    def h_sent():
        a("""
        v_mov_b32 v232, -1
        v_mov_b32 v233, -1
        v_mov_b32 v234, -1
        v_mov_b32 v235, -1
        s_lshl_b32 s75, s2, 13
        s_add_u32 s75, s75, s52
        s_add_u32 s75, s75, 0x%x
        buffer_store_dwordx4 v[232:235], v9, s[8:11], s75 offen sc1
        """ % (OFF["OF"] + LAYER))
    def h_pf():
        a("""
        s_mul_i32 s75, s3, 6144
        s_add_u32 s75, s75, s46
        v_lshlrev_b32 v236, 2, v9
        buffer_load_dword v237, v236, s[8:11], s75 offen
        s_add_u32 s75, s75, 2048
        buffer_load_dword v238, v236, s[8:11], s75 offen
        """)
    body(hooks=dict(H4, **{6: h_sent}) if False else {**H4, 6: h_sent}); body(hooks={6: h_pf} if OPT.get("mpf", 1) else {})
    body(x=1, hooks={0: h_w})
    a("L_mha_i7:")
    if OPT.get("mk") == 1: k.mark(3)
    body(last=True, send=True)
    k.nm = 5
    pv(1, 1, S1, 1)
    k.mark()
    O1 = OA + 16
    a("v_cmp_nlt_f32 vcc, v%d, v244" % (O1 + 8))
    a("s_or_b64 vcc, vcc, s[68:69]")
    a("s_cbranch_vccnz L_mha_slow")
    a("L_mha_out:")
    a("""
    s_waitcnt lgkmcnt(0)
    s_barrier
    ds_read_b64 v[56:57], v243 offset:2048
    ds_read_b128 v[48:51], v242
    ds_read_b128 v[52:55], v242 offset:1024
    s_waitcnt lgkmcnt(2)
    v_min_f32 v4, v%d, v57
    v_sub_f32 v5, v4, v%d
    v_sub_f32 v4, v4, v57
    v_exp_f32 v10, v5
    v_exp_f32 v4, v4
    v_mul_f32 v5, v10, v%d
    v_fmac_f32 v5, v4, v56
    v_rcp_f32 v5, v5
    v_mul_f32 v10, v10, v5
    v_mul_f32 v4, v4, v5
    s_waitcnt lgkmcnt(0)
    """ % (CM + 16, CM + 16, O1 + 8))
    for r in range(8):
        a("v_mul_f32 v%d, v10, v%d" % (O1 + r, O1 + r))
        a("v_fmac_f32 v%d, v4, v%d" % (O1 + r, 48 + r))
    for r in range(4): a("v_cvt_pk_bf16_f32 v%d, v%d, v%d" % (O1 + r, O1 + 2 * r, O1 + 2 * r + 1))
    if OPT.get("dual"): a("buffer_store_dwordx4 %s, v9, s[8:11], s59 offen" % R(O1, 4))
    else: a("buffer_store_dwordx4 %s, v9, s[8:11], s58 offen sc1" % R(O1, 4))
    if OPT.get("mk") == 2: k.mark(0)
    a("""
    s_lshl_b32 s46, s72, 15
    s_lshl_b32 s52, s3, 12
    s_add_u32 s46, s46, s52
    s_add_u32 s46, s46, s65
    s_add_u32 s46, s46, 0x%x
    v_add_u32 v6, s52, v9
    s_lshl_b32 s53, s41, 14
    v_add_u32 v7, s53, v9
    v_and_b32 v5, 3, v%d
    v_lshlrev_b32 v5, 10, v5
    s_lshl_b32 s52, s3, 11
    s_add_u32 s52, s52, 0x8000
    v_add_u32 v10, s52, v9
    v_xor_b32 v11, 0x2000, v10
    v_and_b32 v2, 31, v%d
    s_mov_b32 s70, 0
    s_cmp_eq_u32 s66, 0
    s_cbranch_scc0 L_mha_f2
    """ % (OFF["OF"], LN, LN))
    tails = []
    def gather(L):
        if OPT.get("dual"):
            a("s_waitcnt vmcnt(%d)\nL_mha_ol%s:\ns_and_b32 s46, s70, 7\ns_cmp_eq_u32 s46, 7\ns_cselect_b32 s46, s60, s61" % (OPT.get("dw", 1), L))
        else:
            a("""
            s_waitcnt vmcnt(0)
L_mha_op%(L)s:
            buffer_load_dword v4, v5, s[8:11], s46 offen offset:1020 sc1
            s_add_u32 s70, s70, 1
            s_waitcnt vmcnt(0)
            v_cmp_eq_u32 vcc, -1, v4
            s_cmp_gt_u32 s70, 0x40000
            s_cbranch_scc1 L_mha_ol%(L)s
            s_cbranch_vccnz L_mha_op%(L)s
L_mha_ol%(L)s:
            """ % dict(L=L))
        for i in range(4): a("buffer_load_dwordx4 %s, v9, s[8:11], s46 offen offset:%d sc1" % (R(48 + 4 * i, 4), 1024 * i))
        a("s_add_u32 s70, s70, 1")
        for i in range(4):
            a("s_waitcnt vmcnt(%d)" % (3 - i))
            a("ds_write_b128 v6, %s offset:%d" % (R(48 + 4 * i, 4), 1024 * i))
            b = 48 + 4 * i
            if i == 0: a("v_max_u32 v4, v48, v49")
            else: a("v_max3_u32 v4, v4, v%d, v%d" % (b, b + 1))
            a("v_max3_u32 v4, v4, v%d, v%d" % (b + 2, b + 3))
        a("v_cmp_eq_u32 vcc, -1, v4")
        if OPT.get("dual"):
            a("s_cmp_eq_u32 s70, 4\ns_cbranch_scc1 L_mha_ws%s\nL_mha_ns%s:" % (L, L))
            tails.append("L_mha_ws%s:\nbuffer_store_dwordx4 %s, v9, s[8:11], s58 offen sc1\ns_branch L_mha_ns%s" % (L, R(O1, 4), L))
        a("s_cmp_gt_u32 s70, 0x40000\ns_waitcnt lgkmcnt(0)\ns_cbranch_scc1 L_mha_ok%s\ns_cbranch_vccnz L_mha_ol%s" % (L, L))
        a("L_mha_ok%s:" % L)
        if G.STAMP: a("s_mov_b32 s95, s70")
        if OPT.get("dual"): a("buffer_store_dwordx4 %s, v9, s[8:11], s58 offen sc1" % R(O1, 4))
        a("s_barrier")
        k.mark(6)
        for t in range(16):
            if t == 15: a("s_waitcnt lgkmcnt(14)")
            a("ds_read_b128 %s, v7 offset:%d" % (R(48 + 4 * t, 4), 1024 * t))
        for t in range(16):
            a("s_waitcnt lgkmcnt(%d)" % min(14, 15 - t))
            a("v_mfma_f32_32x32x16_bf16 %s, %s, %s, %s" % (R(A3, 16), R(AW + 4 * t, 4), R(48 + 4 * t, 4), R(A3, 16)))
        a("""
        ds_write_b128 v10, %s
        ds_write_b128 v10, %s offset:1024
        s_waitcnt lgkmcnt(0)
        s_barrier
        ds_read_b128 v[48:51], v11
        ds_read_b128 v[52:55], v11 offset:1024
        """ % (R(A3 + 8, 4), R(A3 + 12, 4)))
        for hf in range(2):
            a("s_waitcnt lgkmcnt(%d)" % (1 - hf))
            for r in range(4 * hf, 4 * hf + 4): a("v_add_f32 v%d, v%d, v%d" % (A3 + r, A3 + r, 48 + r))
    a("""
    s_lshl_b32 s40, s73, 17
    s_lshl_b32 s47, s41, 16
    s_add_u32 s40, s40, s47
    s_lshl_b32 s47, s72, 7
    s_add_u32 s40, s40, s47
    s_add_u32 s52, s40, 0x%x
    s_add_u32 s53, s52, 8192
    s_add_u32 s54, s52, 16384
    s_add_u32 s55, s52, 24576
    s_add_u32 s47, s47, 0x%x
    v_lshlrev_b32 v16, 15, v3
    v_lshl_add_u32 v16, v2, 2, v16
    v_lshlrev_b32 v17, 2, v2
    s_add_u32 s40, s73, s41
    v_add_u32 v18, s40, v3
    v_cmp_eq_u32 s[68:69], 0, v18
    s_waitcnt vmcnt(%d)
    """ % (OFF["UC"], OFF["SSQ2"], 1))
    for p in range(4):
        a("v_lshlrev_b32 v%d, 16, v%d\nv_and_b32 v%d, 0xffff0000, v%d" % (A3 + 2 * p, RS + p, A3 + 2 * p + 1, RS + p))
    gather("a")
    for p in range(4):
        a("v_cvt_pk_bf16_f32 v%d, v%d, v%d" % (56 + p, A3 + 2 * p, A3 + 2 * p + 1))
        a("buffer_store_dword v%d, v16, s[8:11], s%d offen" % (56 + p, 52 + p))
    a("v_cndmask_b32 v7, v%d, v18, s[68:69]\nv_mul_f32 v7, v7, v7\nv_mul_f32 v8, v%d, v%d" % (A3 + 1, A3, A3))
    for r in range(2, 8): a("v_fmac_f32 v%d, v%d, v%d" % (7 + (r & 1), A3 + r, A3 + r))
    a("""
    v_add_f32 v7, v7, v8
    v_mov_b32 v8, v7
    v_permlane32_swap_b32 v7, v8
    v_add_f32 v7, v7, v8
    s_mov_b32 exec_hi, 0
    buffer_atomic_add_f32 v7, v17, s[8:11], s47 offen
    s_endpgm
L_mha_f2:
    ; layer 2: transpose through LDS to 256-byte row segments
    s_and_b32 s40, s3, 3
    s_lshl_b32 s40, s40, 6
    s_lshl_b32 s47, s41, 4
    s_add_u32 s40, s40, s47
    s_add_u32 s40, s40, 0xC000
    s_movk_i32 s47, 272
    v_mul_lo_u32 v16, v2, s47
    v_lshl_add_u32 v16, v3, 5, v16
    v_add_u32 v16, s40, v16
    v_lshrrev_b32 v4, 4, v%(LN)d
    s_lshl_b32 s40, s3, 2
    v_add_u32 v4, s40, v4               ; row m of the tile
    v_and_b32 v8, 15, v%(LN)d
    v_lshlrev_b32 v8, 4, v8
    v_mad_u32_u24 v17, v4, s47, v8
    v_add_u32 v17, 0xC000, v17
    v_and_b32 v18, 15, v4
    v_lshl_add_u32 v18, v18, 10, v8
    v_lshrrev_b32 v4, 4, v4
    v_lshl_add_u32 v18, v4, 19, v18
    s_and_b32 s40, s72, 1
    s_lshl_b32 s40, s40, 20
    s_bfe_u32 s47, s72, 0x30001
    s_lshl_b32 s47, s47, 16
    s_add_u32 s40, s40, s47
    s_lshr_b32 s47, s72, 4
    s_lshl_b32 s47, s47, 14
    s_add_u32 s40, s40, s47
    s_and_b32 s47, s42, 3
    s_lshl_b32 s47, s47, 8
    s_add_u32 s40, s40, s47
    """ % dict(LN=LN))
    gather("b")
    for p in range(4): a("v_cvt_pk_bf16_f32 v%d, v%d, v%d" % (56 + p, A3 + 2 * p, A3 + 2 * p + 1))
    a("""
    ds_write_b128 v16, v[56:59]
    s_waitcnt lgkmcnt(0)
    s_barrier
    ds_read_b128 v[60:63], v17
    s_waitcnt lgkmcnt(0)
    buffer_store_dwordx4 v[60:63], v18, s[12:15], s40 offen %s
    """ % {0: "", 1: "sc1", 2: "nt", 3: "sc0 sc1"}[OPT.get("outf", 0)])
    a("L_mha_end:")
    a("s_endpgm")
    for t_ in tails: a(t_)
    a("L_mha_sq0:")
    for r in range(8): sq(UF + r)
    a("s_branch L_mha_sb0")
    a("L_mha_sq1:")
    for r in range(8, 16): sq(UF + r)
    a("v_add_f32 v10, v10, v11\nv_mov_b32 v11, v10\nv_permlane32_swap_b32 v10, v11\nv_add_f32 v10, v10, v11\nv_and_b32 v10, 0x7fffffff, v10\ns_mov_b32 exec_hi, 0")
    a("buffer_store_dword v10, v150, s[8:11], s59 offen sc1\ns_mov_b64 exec, -1\ns_branch L_mha_sb1")
    a("""
L_mha_ps:
    s_mov_b32 s70, 0
L_mha_ps2:
    buffer_load_dword v144, v151, s[8:11], s58 offen sc1
    buffer_load_dword v145, v151, s[8:11], s58 offen offset:128 sc1
    buffer_load_dword v146, v151, s[8:11], s58 offen offset:256 sc1
    buffer_load_dword v147, v151, s[8:11], s58 offen offset:384 sc1
    s_add_u32 s70, s70, 1
    s_waitcnt vmcnt(0)
    v_or3_b32 v4, v144, v145, v146
    v_or_b32 v4, v4, v147
    v_cmp_gt_i32 vcc, 0, v4
    s_cmp_gt_u32 s70, 0x40000
    s_cbranch_scc1 L_mha_ps1
    s_cbranch_vccnz L_mha_ps2
    s_branch L_mha_ps1
    """)
    for i in late:
        a("L_mha_re%d:\nbuffer_load_dword v2, v8, s[8:11], s56 offen sc1\ns_branch L_mha_nr%d" % (i, i))
    a("L_mha_spin0:")
    a("s_mov_b32 s70, 0")
    a("L_mha_spin:")
    a("buffer_load_dword v2, v8, s[8:11], s56 offen sc1\ns_add_u32 s70, s70, 1\ns_waitcnt vmcnt(0)\nv_cmp_ne_u32 vcc, 1, v2")
    a("s_cmp_gt_u32 s70, 0x40000\ns_cbranch_scc1 L_mha_go\ns_cbranch_vccnz L_mha_spin")
    a("L_mha_go:")
    group()
    if G1 == 2: group()
    a("s_branch L_mha_rdy")
    a("L_mha_x45:")
    body(x=1, hooks={4: h_sync(8, 0)} if H4 else {})
    body(x=2, hooks={0: h_x2})
    body(x=2, hooks={0: h_w})
    a("s_branch L_mha_i7")
    a("L_mha_slow:")
    a("s_waitcnt lgkmcnt(0)\ns_mov_b32 s63, 0\nv_mov_b32 v6, v%d\nv_mov_b32 v4, 0xff800000\nv_mov_b32 v5, 0xff800000" % KA0)
    for r in range(32): a("v_mov_b32 v%d, 0" % (OA + r))
    a("L_mha_maxloop:")
    for i in range(4):
        a("ds_read_b128 %s, v6 offset:%d" % (R(KB, 4), 1024 * i))
        a("s_waitcnt lgkmcnt(0)")
        a("v_mfma_f32_32x32x16_bf16 %s, %s, %s, 0" % (R(S0, 16), R(KB, 4), R(Q, 4)))
        a("v_mfma_f32_32x32x16_bf16 %s, %s, %s, 0" % (R(S1, 16), R(KB, 4), R(Q + 4, 4)))
        for x, S in ((4, S0), (5, S1)):
            for r in range(0, 16, 2): a("v_max3_f32 v%d, v%d, v%d, v%d" % (x, x, S + r, S + r + 1))
    a("v_add_u32 v6, 8192, v6")
    a("s_add_u32 s63, s63, 1\ns_cmp_lt_u32 s63, 8\ns_cbranch_scc1 L_mha_maxloop")
    a("v_mov_b32 v6, v%d\nv_mov_b32 v7, v%d" % (KA0, VA0))
    rdk(0, 0); rdv(0, 0, 0); rdv(0, 1, 512); rdk(1, 1024)
    a("v_mov_b32 v10, v4\nv_mov_b32 v11, v5\nv_permlane32_swap_b32 v4, v10\nv_permlane32_swap_b32 v5, v11")
    a("v_max_f32 v4, v4, v10\nv_max_f32 v5, v5, v11")
    for r in range(16): a("v_sub_f32 v%d, 0, v4\nv_sub_f32 v%d, 0, v5" % (CM + r, CM + 16 + r))
    for r in range(8): a("v_mov_b32 v%d, 0" % (S1 + 8 + r))
    for r in range(4): a("v_mov_b32 v%d, 0" % (VB + 12 + r))
    a("s_waitcnt lgkmcnt(0)")
    qk(S0, 0, 0)
    a("s_mov_b32 s63, 0\ns_nop 7\ns_nop 3")
    a("L_mha_loop:")
    body(loop=True)
    a("s_cbranch_scc1 L_mha_loop")
    pv(1, 1, S1, 1)
    a("v_mov_b32 v%d, v%d" % (OA + 9, CM))
    a("ds_write_b128 v240, %s\nds_write_b128 v240, %s offset:1024\nds_write_b64 v241, %s offset:2048" % (R(OA, 4), R(OA + 4, 4), R(OA + 8, 2)))
    a("s_nop 7\ns_nop 3\ns_branch L_mha_out")
    lds = XB + 8 * 2560
    return (k, 256, 512, lds), (k2, 256, 512, lds)
```

```python
import gen3
def ins_at(s, kname, code):
    key = kname + ":\n"; i = s.index(key) + len(key)
    return s[:i] + code + s[i:]
st = """    s_memrealtime s[84:85]
    s_load_dwordx2 s[92:93], s[0:1], 64
    s_mov_b32 s94, 0x2000000
    s_mov_b32 s95, 0x00020000
    s_waitcnt lgkmcnt(0)
    s_cmp_eq_u32 s2, 0
    s_cbranch_scc0 L_st0
    s_mov_b32 s87, 0x1f00000
    v_mov_b32 v4, s84
    v_mov_b32 v5, 0
    buffer_store_dword v4, v5, s[92:95], s87 offen
L_st0:
"""
def wait(x):
    return """    s_load_dwordx2 s[92:93], s[0:1], 64
    s_mov_b32 s94, 0x2000000
    s_mov_b32 s95, 0x00020000
    s_waitcnt lgkmcnt(0) vmcnt(0)
    s_mov_b32 s87, 0x1f00000
    s_mov_b64 exec, -1
    v_mov_b32 v5, 0
    buffer_load_dword v4, v5, s[92:95], s87 offen
    s_waitcnt vmcnt(0)
    v_readfirstlane_b32 s86, v4
    s_mov_b32 s91, 0
L_wt:
    s_memrealtime s[84:85]
    s_add_u32 s91, s91, 1
    s_waitcnt lgkmcnt(0)
    s_sub_u32 s84, s84, s86
    s_cmp_gt_u32 s91, 100000
    s_cbranch_scc1 L_wt1
    s_cmp_lt_u32 s84, %d
    s_cbranch_scc1 L_wt
L_wt1:
""" % (x * 100)
def add_empty(s, positions, body=""):
    lines = s.split("\n")
    idx = [i for i, l in enumerate(lines) if l.startswith("; @launch")]
    for p in sorted(positions, reverse=True):
        at = idx[p] if p < len(idx) else idx[-1] + 1
        lines.insert(at, "; @launch kernel=empty_kernel grid=(1,1,1) block=(64,1,1) lds=0")
    s = "\n".join(lines)
    k = gen3.K("empty_kernel", 8); k.a.raw(body); k.a("s_endpgm")
    i = s.index(".text\n")
    return s[:i] + k.text() + k.desc() + s[i:]
base = gen3.build()
b = ins_at(base, "prep_kernel", st)
i = b.index("L_mha_end:\n")
A = b[:i] + wait(100) + b[i:]
open("d1.s", "w").write(A)
open("d2.s", "w").write(add_empty(A, [1, 2, 3, 4]))
open("d3.s", "w").write(add_empty(A, [0]))
i = base.index("L_mha_end:\n")
B = base[:i] + wait(100) + base[i:]
open("d4.s", "w").write(add_empty(B, [0], st))
open("d5.s", "w").write(add_empty(A, [5]))
```

```python
from layouts3 import *
OFF = dict(OFF); OFF["UP"] = 0x1700000; OFF["FLU"] = OFF["FLK"] + 0x4000
WS_USED = 0x1900000
def s_of_r(p):
    b = ((p >> 9) << 4) | ((p >> 3) & 15)
    a = (((p >> 7) & 3) << 3) | (p & 7)
    return 64 * a + b
```

```python
def k_mha(G):
    K, R, OFF, TOFF, srd_load, srd_tab, lane_setup, OPT, fbits, LAYER = G.K, G.R, G.OFF, G.TOFF, G.srd_load, G.srd_tab, G.lane_setup, G.OPT, G.fbits, G.LAYER
    NV = 248
    k2 = K("mha2_kernel", NV)
    k2.a("s_mov_b32 s65, 0x%x\ns_mov_b32 s66, 1\ns_branch L_mha" % LAYER)
    k = K("mha1_kernel", NV); a = k.a
    a("s_mov_b32 s65, 0\ns_mov_b32 s66, 0")
    a("L_mha:")
    MAP = """    s_and_b32 s42, s40, 1
    s_lshl_b32 s42, s42, 4
    s_and_b32 s47, s41, 15
    s_add_u32 s42, s42, s47         ; head
    s_lshr_b32 s43, s40, 1
    s_lshl_b32 s43, s43, 1
    s_lshr_b32 s48, s41, 4
    s_add_u32 s43, s43, s48         ; qb
    s_lshl_b32 s48, s48, 2
    s_add_u32 s51, s47, s48
""" if not OPT.get("map", 0) else """    s_mov_b32 s42, s41              ; head
    s_mov_b32 s43, s40              ; qb
    s_mov_b32 s51, s41              ; rot
"""
    IDX = 12; KA0 = 13; VA0 = 14; VINC = 15
    Q = 16; KB = 24; VB = 32; S0, S1, CM, OA = 48, 64, 80, 112
    RS = 144; AL = 148; LN = 149; AW = 152; A3 = 216
    CB = 0x20000; BN = 0x21000; XB = 0x22400; WL = 0x2000
    a("s_cmp_ge_u32 s2, 256\ns_cbranch_scc1 L_mha_end")
    srd_load(a, 8, "ws"); srd_load(a, 12, "out"); srd_tab(a, 20)
    lane_setup(a)
    a("""
    s_and_b32 s40, s2, 7
    s_lshr_b32 s41, s2, 3
MAPPING    s_lshl_b32 s44, s43, 3
    s_add_u32 s44, s44, s3          ; projection row tile
    s_lshl_b32 s45, s44, 15
    s_add_u32 s45, s45, 0x%x        ; UB tile
    s_mul_i32 s46, s42, 49152
    s_add_u32 s46, s46, 0x%x        ; W' of the head
    s_add_u32 s47, s51, s3
    s_and_b32 s47, s47, 7
    s_lshl_b32 s48, s47, 12
    s_add_u32 s48, s48, s46
    s_lshl_b32 s49, s47, 11
    s_add_u32 s49, s49, s46
    s_add_u32 s49, s49, 32768
    s_lshl_b32 s52, s3, 12
    s_lshl_b32 s53, s3, 11
    s_add_u32 m0, s52, 0x%x
    s_lshl_b32 s64, s3, 13
    s_add_u32 s64, s64, 0x12000
    s_cmp_eq_u32 s3, 7
    s_cselect_b32 s64, 0xe000, s64  ; LDS ring of this wave
    s_waitcnt lgkmcnt(0)
    """.replace("MAPPING", MAP) % (OFF["UP"], OFF["WP"], WL))
    k.mark()
    UF = AW; AQK = 80; AV = 96; WB = 16; RING = 16
    def ureg(t): return UF + 4 * (t % 6)
    um = []
    def uload(t):
        if t % 4 == 0:
            a("s_add_u32 s54, s51, %d\ns_and_b32 s54, s54, 7\ns_lshl_b32 s54, s54, 12\ns_add_u32 m0, s64, %d\ns_add_u32 s54, s54, s45" % (t >> 2, 4096 * ((t >> 2) & 1)))
        a("buffer_load_dwordx4 v9, s[8:11], s54 offen offset:%d lds" % (1024 * (t & 3)))
        um.append(a.vm - 1)
    for i in range(4): a("buffer_load_dwordx4 v9, s[8:11], s48 offen offset:%d lds" % (1024 * i))
    a("s_add_u32 m0, s53, 0x%x" % (WL + 32768))
    for i in range(2): a("buffer_load_dwordx4 v9, s[8:11], s49 offen offset:%d lds" % (1024 * i))
    m_w = a.vm - 1
    UPRE = OPT.get("upre", 8)
    while len(um) < OPT.get("u0", 3): uload(len(um))
    a("""
    v_mov_b32 v%(LN)d, v1
    v_lshlrev_b32 v150, 2, v2               ; partial-sum store offset m*4
    v_lshl_add_u32 v151, v3, 9, v150        ; partial-sum load offset h*512 + m*4
    s_lshl_b32 s58, s44, 10
    s_lshl_b32 s59, s66, 16
    s_add_u32 s58, s58, s59
    s_add_u32 s58, s58, 0x%(psq)x
    s_and_b32 s59, s51, 7
    s_lshl_b32 s59, s59, 7
    s_add_u32 s59, s59, s58
    v_bfe_u32 v4, v1, 2, 2
    v_lshl_add_u32 v4, v3, 3, v4
    v_lshlrev_b32 v4, 6, v4
    v_bfe_u32 v5, v1, 4, 1
    v_lshl_add_u32 v4, v5, 5, v4
    v_and_b32 v5, 3, v1
    v_lshl_add_u32 v4, v5, 3, v4
    v_add_u32 v7, s64, v4                   ; transposing read address
    s_and_b32 s40, s51, 7
    v_add_u32 v4, s40, v3
    v_cmp_eq_u32 vcc, 0, v4
    v_mov_b32 v8, 0xffff0000
    v_cndmask_b32 v8, v8, v4, vcc           ; drops the DC column from the sum of squares
    s_lshl_b32 s40, s40, 12
    s_lshr_b32 s68, s42, 3
    s_lshl_b32 s69, s68, 10
    s_add_u32 s69, s69, s40
    s_lshl_b32 s40, s44, 15
    s_add_u32 s69, s69, s40
    s_add_u32 s69, s69, UBOFF               ; fragment this wave republishes
    s_lshl_b32 s71, s44, 7
    s_lshl_b32 s40, s42, 2
    s_add_u32 s71, s71, s40
    s_lshl_b32 s40, s66, 13
    s_add_u32 s71, s71, s40
    s_add_u32 s71, s71, FLUOFF              ; its flag
    v_and_b32 v5, 15, v1
    v_lshlrev_b32 v5, 4, v5
    v_lshl_add_u32 v5, v3, 8, v5            ; h*256 + (m&15)*16
    v_add_u32 v6, 0x%(wl)x, v9              ; W'qk read address
    s_lshr_b32 s41, s3, 2                   ; kh
    s_lshl_b32 s55, s41, 12
    v_add_u32 v%(KA0)d, s55, v9
    s_add_u32 s55, s55, 0x10000
    v_add_u32 v4, s55, v5
    v_and_b32 v10, 27, v2
    v_cmp_eq_u32 vcc, 16, v10
    v_mov_b32 v10, 0x%(cb1)x
    v_mov_b32 v11, 0x%(cb0)x
    v_cndmask_b32 v10, v10, v11, vcc
    v_cmp_gt_u32 s[60:61], 16, v2
    v_mov_b32 v11, 0
    v_mov_b32 v%(IDX)d, 8192
    v_cndmask_b32 v%(VA0)d, v10, v4, s[60:61]
    v_cndmask_b32 v%(VINC)d, v11, v%(IDX)d, s[60:61]
    v_mov_b32 v%(IDX)d, 0xdddddddd
    v_lshrrev_b32 v4, 1, v1
    v_and_b32 v10, 7, v4
    v_lshrrev_b32 v4, 3, v4
    v_lshlrev_b32 v10, 9, v10
    v_lshl_add_u32 v4, v4, 13, v10
    v_and_b32 v10, 1, v1
    v_lshl_add_u32 v4, v10, 4, v4
    v_add_u32 v4, 0x%(cb0)x, v4
    v_add_u32 v10, -1, v10
    v_and_b32 v16, 0x3f803f80, v10
    v_mov_b32 v17, v16
    v_mov_b32 v18, v16
    v_mov_b32 v19, v16
    s_mov_b64 exec, 0xfffff
    ds_write_b128 v4, v[16:19]
    s_mov_b64 exec, -1
    v_mov_b32 v10, 0
    v_mov_b32 v11, 0
    """.replace("UBOFF", "0x%x" % OFF["UB"]).replace("FLUOFF", "0x%x" % OFF["FLU"]) % dict(KA0=KA0, VA0=VA0, VINC=VINC, IDX=IDX, cb0=CB, cb1=CB + 16, wl=WL, wv=WL + 32768, LN=LN, psq=OFF["PSQ"]))
    for r in range(16): a("v_mov_b32 v%d, 0" % (A3 + r))
    for r in range(32): a("v_mov_b32 v%d, 0" % (OA + r))
    for r in range(8): a("v_mov_b32 v%d, 0" % (S1 + 8 + r))
    a("""
    s_lshl_b32 s48, s3, 8
    s_add_u32 s48, s48, 0x%x
    v_lshl_add_u32 v64, v1, 2, s48  ; rinv write
    v_and_b32 v65, 48, v1
    v_add_u32 v65, s48, v65         ; rinv read: rows 4*(lane>>4)..
    v_bfe_u32 v4, v1, 4, 1
    v_lshl_add_u32 v66, v4, 9, v5   ; V offset f*512 + h*256 + dim*16
    s_lshl_b32 s48, s42, 16
    s_add_u32 s48, s48, s65
    s_add_u32 s48, s48, 0x%x        ; K base of the head
    s_lshl_b32 s62, s44, 10
    s_add_u32 s62, s62, s48
    s_add_u32 s63, s62, 0x%x
    s_lshl_b32 s52, s3, 10
    v_add_u32 v68, s52, v9
    s_add_u32 s53, s52, 0x10000
    v_add_u32 v69, s53, v66
    s_add_u32 s53, s52, 0x%x
    v_add_u32 v70, s53, v9
    s_and_b32 s40, s3, 3
    s_lshl_b32 s40, s40, 1
    s_add_u32 s40, s40, s41         ; local q tile
    s_lshl_b32 s44, s43, 3
    s_add_u32 s44, s44, s40         ; output row tile
    s_lshl_b32 s40, s40, 10
    v_add_u32 v5, s40, v9
    v_xor_b32 v71, 1024, v5
    v_add_u32 v71, 0x%x, v71
    v_add_u32 v5, 0x%x, v5
    s_add_u32 s48, s48, s52         ; K base + w*1024
    s_add_u32 s49, s52, 8192        ; LDS offset of the next group
    s_add_u32 s50, s43, 1           ; next block
    s_lshl_b32 s56, s42, 8
    s_lshl_b32 s57, s3, 5
    s_add_u32 s56, s56, s57
    s_lshl_b32 s57, s66, 13
    s_add_u32 s56, s56, s57
    s_add_u32 s56, s56, 0x%x        ; flags of (head, w)
    s_lshl_b32 s57, s43, 2
    s_add_u32 s57, s57, s56         ; own flag
    s_mov_b32 s67, 0
    """ % (BN, OFF["KF"], OFF["VF"] - OFF["KF"], XB, XB, XB, OFF["FLK"]))
    a.wait_vm(m_w, "lgkmcnt(0)"); a("s_barrier")
    k.mark()
    def wset(p): return WB + 12 * (p % 3)
    def wrd(p):
        b = wset(p)
        a("ds_read_b128 %s, v6 offset:%d" % (R(b, 4), 2 * p * 1024))
        a("ds_read_b128 %s, v6 offset:%d" % (R(b + 4, 4), (2 * p + 1) * 1024))
        a("ds_read_b128 %s, v6 offset:%d" % (R(b + 8, 4), 32768 + p * 1024))
    def urd(p):
        for t in (2 * p, 2 * p + 1):
            a("ds_read_b64_tr_b16 %s, v7 offset:%d" % (R(ureg(t), 2), 1024 * (t & 7)))
            a("ds_read_b64_tr_b16 %s, v7 offset:%d" % (R(ureg(t) + 2, 2), 1024 * (t & 7) + 256))
    wrd(0)
    while len(um) < 8: uload(len(um))
    a.wait_vm(um[1]); urd(0); wrd(1)
    def sq(r, mask="0xffff0000"):
        a("v_and_b32 v4, %s, v%d\nv_lshlrev_b32 v0, 16, v%d\nv_fmac_f32 v10, v4, v4\nv_fmac_f32 v11, v0, v0" % (mask, r, r))
    def vm(p, f):
        a("v_mfma_f32_16x16x32_bf16 %s, %s, %s, %s" % (R(AV + 4 * f, 4), R(ureg(2 * p + f), 4), R(wset(p) + 8, 4), "0" if p == 0 else R(AV + 4 * f, 4)))
    PSC = OPT.get("psc", 14)
    for p in range(16):
        t = 2 * p; b = wset(p)
        nl = (3 if p < 15 else 0) + (3 if p > PSC else 0)
        a("s_waitcnt lgkmcnt(%d)" % nl)
        a("v_mfma_f32_32x32x16_bf16 %s, %s, %s, %s" % (R(AQK, 16), R(b, 4), R(ureg(t), 4), "0" if p == 0 else R(AQK, 16)))
        while len(um) < min(32, t + 10): uload(len(um))
        if p: vm(p - 1, 0)
        a("v_mfma_f32_32x32x16_bf16 %s, %s, %s, %s" % (R(AQK, 16), R(b + 4, 4), R(ureg(t + 1), 4), R(AQK, 16)))
        if p: vm(p - 1, 1)
        if p + 1 < 16:
            a.wait_vm(um[t + 3]); urd(p + 1)
        if p + 2 < 16: wrd(p + 2)
        if p < 2: a("s_branch L_mha_sq%d\nL_mha_sb%d:" % (p, p))
        for r in range(4): a("v_permlane16_swap_b32 v%d, v%d" % (ureg(t) + r, ureg(t + 1) + r))
        if OPT.get("p1pr", 1) and p in (0, 4, 8, 12): a("s_setprio %d" % (3 - p // 4))
        if p == OPT.get("pst", 10):
            for i in range(4): a("buffer_load_dword v%d, v151, s[8:11], s58 offen offset:%d sc1" % (RS + i, 128 * i))
            m_ps = a.vm - 1
        if p == PSC:
            a.wait_vm(m_ps)
            a("""
            v_or3_b32 v4, v144, v145, v146
            v_or_b32 v4, v4, v147
            v_cmp_gt_i32 vcc, 0, v4
            s_nop 1
            s_cbranch_vccnz L_mha_ps
L_mha_ps1:
            v_add_f32 v10, v144, v145
            v_add_f32 v11, v146, v147
            v_add_f32 v10, v10, v11
            v_mov_b32 v11, v10
            v_permlane32_swap_b32 v10, v11
            v_add_f32 v10, v10, v11
            v_mov_b32 v11, 0x%x
            v_fmac_f32 v11, 0x%x, v10
            v_rsq_f32 v10, v11
            s_nop 0
            ds_write_b32 v64, v10
            ds_read_b128 v[104:107], v65
            ds_read_b128 v[108:111], v65 offset:64
            """ % (fbits(1e-5), fbits(1.0 / 512)))
    vm(15, 0); vm(15, 1)
    k.mark()
    a("v_and_b32 v8, 7, v1\nv_lshlrev_b32 v8, 2, v8\nv_mov_b32 v0, 0\nv_mov_b32 v1, 1\nv_mov_b32 v6, v%d\nv_mov_b32 v7, v%d" % (KA0, VA0))
    for r in range(4): a("v_mov_b32 v%d, 0" % (VB + 12 + r))
    for r in range(8, 16): a("v_mul_f32 v%d, v10, v%d" % (AQK + r, AQK + r))
    for r in range(4): a("v_cvt_pk_bf16_f32 v%d, v%d, v%d" % (56 + r, AQK + 8 + 2 * r, AQK + 9 + 2 * r))
    a("buffer_store_dwordx4 v[56:59], v9, s[8:11], s62 offen sc1")
    a("ds_write_b128 v68, v[56:59]")
    a("s_waitcnt lgkmcnt(1)")
    for r in range(8): a("v_mul_f32 v%d, v%d, v%d" % (AV + r, AV + r, 104 + r))
    for r in range(4): a("v_cvt_pk_bf16_f32 v%d, v%d, v%d" % (60 + r, AV + 2 * r, AV + 1 + 2 * r))
    a("v_permlane16_swap_b32 v60, v62\nv_permlane16_swap_b32 v61, v63")
    a("buffer_store_dwordx4 v[60:63], v66, s[8:11], s63 offen sc1")
    a("ds_write_b128 v69, v[60:63]")
    a("buffer_store_dwordx4 v[232:235], v9, s[8:11], s69 offen sc1")
    for r in range(8): a("v_mul_f32 v%d, v10, v%d" % (AQK + r, AQK + r))
    for r in range(4): a("v_cvt_pk_bf16_f32 v%d, v%d, v%d" % (48 + r, AQK + 2 * r, AQK + 1 + 2 * r))
    a("ds_write_b128 v70, v[48:51]")
    a("v_mov_b32 v52, 0")
    for r in range(4): a("v_dot2c_f32_bf16 v52, v%d, v%d" % (48 + r, 56 + r))
    a("s_nop 2\nv_mov_b32 v53, v52\nv_permlane32_swap_b32 v52, v53")
    a("v_sub_f32_e64 v54, -v52, v53\nv_sub_f32_e64 v55, -v52, v53\nv_mov_b32 v52, v54\nv_mov_b32 v53, v54")
    a("ds_write_b128 v70, v[52:55] offset:8192")
    a("v_mov_b32 v4, v71\nv_mov_b32 v151, v150")
    if OPT.get("prio", 1): a("s_cmp_lt_u32 s3, 4\ns_cbranch_scc1 L_mha_np\ns_setprio 1\nL_mha_np:")
    a("s_waitcnt lgkmcnt(0)\ns_barrier")
    k.mark()
    def group():
        a("""
        s_and_b32 s51, s50, 7
        s_lshl_b32 s51, s51, 13
        s_mov_b32 m0, s49
        s_add_u32 s51, s51, s48
        buffer_load_dwordx4 v9, s[8:11], s51 offen sc1 lds
        s_add_u32 m0, s49, 0x10000
        s_add_u32 s51, s51, 0x%x
        buffer_load_dwordx4 v9, s[8:11], s51 offen sc1 lds
        s_add_u32 s49, s49, 8192
        s_add_u32 s50, s50, 1
        """ % (OFF["VF"] - OFF["KF"]))
    def off(t): return (t >> 2) * 8192 + (t & 3) * 1024
    def rdk(i, o): a("ds_read_b128 %s, v6 offset:%d" % (R(KB + 4 * i, 4), o))
    def rdv(i, f, o): a("ds_read_b128 %s, v7 offset:%d" % (R(VB + 8 * i + 4 * f, 4), o))
    def qk(S, i, q): a("v_mfma_f32_32x32x16_bf16 %s, %s, %s, %s" % (R(S, 16), R(KB + 4 * i, 4), R(Q + 4 * q, 4), "0" if OPT.get("c0") else R(CM + 16 * q, 16)))
    def pv(i, f, S, q):
        if OPT.get("pv16"): a("v_smfmac_f32_16x16x64_bf16 %s, %s, %s, v%d" % (R(OA + 16 * q, 4), R(VB + 8 * i + 4 * f, 4), R(S + 8 * f, 8), IDX)); return
        a("v_smfmac_f32_32x32x32_bf16 %s, %s, %s, v%d" % (R(OA + 16 * q, 16), R(VB + 8 * i + 4 * f, 4), R(S + 8 * f, 8), IDX))
    def ex(S, lo, hi):
        for r in range(lo, hi): a("v_exp_f32 v%d, v%d" % (S + r, S + r))
    a("ds_read_b128 %s, v4" % R(Q, 4))
    for g in range(4): a("ds_read_b128 %s, v4 offset:8192" % R(CM + 4 * g, 4))
    rdk(0, 0)
    a("ds_read_b128 %s, v5" % R(Q + 4, 4))
    for g in range(4): a("ds_read_b128 %s, v5 offset:8192" % R(CM + 16 + 4 * g, 4))
    rdv(0, 0, 0); rdv(0, 1, 512); rdk(1, 1024)
    a("s_waitcnt lgkmcnt(8)")
    qk(S0, 0, 0)
    a("s_waitcnt lgkmcnt(3)")
    k.mark()
    def body(x=False, hooks={}, loop=False, last=False, send=False):
        for u in range(8):
            t, q = u >> 1, u & 1
            Sc, Sn = (S0, S1) if q == 0 else (S1, S0)
            ex(Sc, 0, 2)
            pv((t - 1 + q) & 1, 1, Sn, 1 - q)
            if u in hooks: hooks[u]()
            nv = not (last and t == 3); nk = not (last and t >= 2)
            if q == 0 and nv:
                rdv((t + 1) & 1, 0, off(t + 1)); rdv((t + 1) & 1, 1, off(t + 1) + 512)
            ex(Sc, 2, 5)
            if not (last and u == 7): qk(Sn, (t + q) & 1, 1 - q)
            if q == 0 and nk: rdk(t & 1, off(t + 2))
            ex(Sc, 5, 10)
            if q == 0: a("s_waitcnt lgkmcnt(%d)" % (2 * nv + nk))
            pv(t & 1, 0, Sc, q)
            if u == 7 and not last:
                a("v_add_u32 v6, 8192, v6\nv_add_u32 v7, v%d, v7" % VINC)
            if u == 7 and loop:
                a("s_add_u32 s63, s63, 1\ns_cmp_lt_u32 s63, 8")
            if x:
                ex(Sc, 10, 14 if x == 2 else 10)
                if x == 2:
                    a("s_waitcnt vmcnt(14)")
                    a("v_mfma_f32_32x32x16_bf16 %s, %s, %s, %s" % (R(A3, 16), R(AW + 4 * u, 4), R(AW + 32 + 4 * u, 4), R(A3, 16)))
                a("buffer_load_dwordx4 %s, v%d, s[20:23], s%d offen offset:%d" % (R(AW + 4 * u, 4), AL, 76 + (u >> 2), 1024 * (u & 3)))
                a("buffer_load_dwordx4 %s, v150, s[8:11], s%d offen offset:%d sc1" % (R(AW + 32 + 4 * u, 4), 78 + (u >> 2), 1024 * (u & 3)))
                ex(Sc, 14 if x == 2 else 10, 16)
            elif send and u == 7:
                ex(Sc, 10, 13)
                a("v_mov_b32 v%d, v%d" % (OA + 9, CM))
                a("ds_write_b128 v240, %s\nds_write_b128 v240, %s offset:1024\nds_write_b64 v241, %s offset:2048" % (R(OA, 4), R(OA + 4, 4), R(OA + 8, 2)))
                a("v_cmp_nlt_f32 s[68:69], v%d, v244" % (OA + 8))
                ex(Sc, 13, 16)
            else:
                ex(Sc, 10, 16)
    def h_flag(): a("s_waitcnt vmcnt(0)\nbuffer_store_dword v1, v0, s[8:11], s57 offen sc1\nbuffer_store_dword v1, v0, s[8:11], s71 offen sc1")
    def h_upoll():
        a("""
        s_lshl_b32 s72, s43, 3
        s_lshr_b32 s73, s42, 2
        s_add_u32 s72, s72, s73         ; row tile of the output projection
        s_lshl_b32 s69, s72, 7
        s_lshl_b32 s73, s66, 13
        s_add_u32 s69, s69, s73
        s_add_u32 s69, s69, 0x%x
        buffer_load_dword v2, v151, s[8:11], s69 offen sc1
        """ % OFF["FLU"])
    def h_poll(): a("buffer_load_dword v2, v8, s[8:11], s56 offen sc1")
    def h_chk(i, first, again):
        def f():
            if not first: a("s_cmp_eq_u32 s67, 1\ns_cbranch_scc1 L_mha_nr%d" % i)
            a("s_waitcnt vmcnt(0)\nv_cmp_ne_u32 vcc, 1, v2\ns_nop 1\ns_cbranch_vccnz L_mha_re%d" % i)
            group()
            if G1 == 2: group()
            a("s_mov_b32 s67, 1")
            if again:
                a("L_mha_nr%d:" % i)
                late.append(i)
            else:
                a("L_mha_re%d:\nL_mha_nr%d:" % (i, i))
        return f
    late = []
    G1 = 1 if OPT.get("kv2", 1) == 3 else 2
    def h_sync(n, g):
        def f():
            a("s_waitcnt vmcnt(%d)\ns_barrier" % n)
            for _ in range(g): group()
        return f
    def h_ids():
        a("""
        s_waitcnt vmcnt(0)
        v_cmp_ne_u32 vcc, 1, v2
        s_nop 1
        s_cbranch_vccnz L_mha_us
L_mha_ub:
        s_and_b32 s73, s42, 3
        s_lshl_b32 s73, s73, 2
        s_and_b32 s74, s3, 3
        s_add_u32 s73, s73, s74         ; column tile
        s_lshl_b32 s74, s73, 15
        s_lshl_b32 s75, s41, 14
        s_add_u32 s74, s74, s75         ; weight offset: tile*32K + kh*16K
        s_lshl_b32 s71, s72, 15
        s_add_u32 s71, s71, 0x%x        ; UB row tile
        s_add_u32 s78, s71, s75
        s_add_u32 s76, s74, 0x%x
        s_add_u32 s77, s76, 4096
        s_add_u32 s79, s78, 4096
        s_lshl_b32 s75, s41, 8
        v_xor_b32 v%d, s75, v9
        v_mov_b32 v150, v9
        s_lshl_b32 s75, s73, 11
        s_add_u32 s71, s71, s75
        s_lshl_b32 s75, s41, 10
        s_add_u32 s71, s71, s75
        buffer_load_dwordx4 %s, v9, s[8:11], s71 offen sc1
        s_mul_i32 s75, s3, 2560
        s_add_u32 s75, s75, 0x%x
        v_add_u32 v240, s75, v9
        v_lshrrev_b32 v243, 1, v9
        v_add_u32 v241, s75, v243
        s_xor_b32 s75, s3, 4
        s_mul_i32 s75, s75, 2560
        s_add_u32 s75, s75, 0x%x
        v_add_u32 v242, s75, v9
        v_add_u32 v243, s75, v243
        v_mov_b32 v244, 0x4e800000
        s_lshl_b32 s58, s44, 15
        s_lshl_b32 s59, s42, 10
        s_add_u32 s58, s58, s59
        s_add_u32 s58, s58, s65
        s_add_u32 s58, s58, 0x%x
        """.replace("DELTA", "0x%x" % (OFF["OL"] - OFF["OF"])).replace("OFBASE", "0x%x" % OFF["OF"]) % (OFF["UB"], TOFF["T2"], AL, R(RS, 4), XB, XB, OFF["OF"]))
    def h_x2():
        for r in (76, 77, 78, 79): a("s_add_u32 s%d, s%d, 8192" % (r, r))
    def h_w():
        a("""
        s_setprio 0
        s_lshl_b32 s75, s66, 19
        s_add_u32 s76, s74, s75
        s_add_u32 s76, s76, 0x%x
        s_add_u32 s78, s76, 8192
        s_mov_b64 s[20:21], s[8:9]
        s_mov_b32 s22, s10
        v_mov_b32 v150, v%d
        s_add_u32 s77, s76, 4096
        s_add_u32 s79, s78, 4096
        """ % (OFF["WOP"], AL))
    assert OFF["WOF"] - OFF["WOP"] == 1 << 19
    hk = {OPT.get("hf", 0): h_flag, OPT.get("hp", 3): h_poll}
    cs = [OPT.get("hc", 5)] + ([OPT.get("hc2", 7)] if OPT.get("hc2", 7) else [])
    for i, c in enumerate(cs): hk[c] = h_chk(i, i == 0, i + 1 < len(cs))
    body(hooks=hk, last=True)
    a("v_add_u32 v6, 8192, v6\nv_add_u32 v7, v%d, v7" % VINC)
    a("s_cmp_eq_u32 s67, 1\ns_cbranch_scc0 L_mha_spin0")
    a("L_mha_rdy:")
    if OPT.get("mk") == 1: k.mark(0)
    a("s_waitcnt vmcnt(%d)\ns_barrier" % (0 if OPT.get("kv2", 1) in (2, 3) else 2))
    if OPT.get("mk") == 1: k.mark(1)
    rdk(0, 0); rdv(0, 0, 0); rdv(0, 1, 512); rdk(1, 1024)
    group()
    a("s_waitcnt lgkmcnt(3)")
    qk(S0, 0, 0)
    if OPT.get("kv2", 1) == 3:
        body(hooks={2: group, 4: h_sync(2, 0), 5: group})
        body(hooks={0: group, 4: h_sync(2, 0), 5: group})
        body(hooks={0: group, 2: h_ids})
        H4 = {4: h_sync(0, 0)}
    elif OPT.get("kv2", 1) == 2:
        body(hooks={2: group, 4: group, 6: group})
        body(hooks={0: group, 4: h_sync(0, 0)})
        body(hooks={0: h_ids})
    elif OPT.get("kv2", 1):
        body(hooks={2: group, 4: h_sync(4, 1), 6: group})
        if OPT.get("mk") == 1: k.mark(2)
        body(hooks={0: group, 4: h_sync(0, 0), 5: h_upoll})
        body(hooks={0: h_ids})
    else:
        body(hooks={4: h_sync(2, 1)})
        body(hooks={0: group, 2: group, 4: h_sync(4, 1)})
        body(hooks={0: h_ids, 4: h_sync(0, 0)})
    if OPT.get("kv2", 1) != 3: H4 = {}
    a("s_cmp_eq_u32 s66, 0\ns_cbranch_scc0 L_mha_x45")
    def h_sent():
        a("""
        v_mov_b32 v232, -1
        v_mov_b32 v233, -1
        v_mov_b32 v234, -1
        v_mov_b32 v235, -1
        s_lshl_b32 s75, s2, 13
        s_add_u32 s75, s75, s52
        s_add_u32 s75, s75, 0x%x
        buffer_store_dwordx4 v[232:235], v9, s[8:11], s75 offen sc1
        """ % (OFF["OF"] + LAYER))
    def h_pf():
        a("""
        s_mul_i32 s75, s3, 6144
        s_add_u32 s75, s75, s46
        v_lshlrev_b32 v236, 2, v9
        buffer_load_dword v237, v236, s[8:11], s75 offen
        s_add_u32 s75, s75, 2048
        buffer_load_dword v238, v236, s[8:11], s75 offen
        """)
    body(hooks=dict(H4, **{6: h_sent}) if False else {**H4, 6: h_sent}); body(hooks={6: h_pf} if OPT.get("mpf", 1) else {})
    body(x=1, hooks={0: h_w})
    a("L_mha_i7:")
    if OPT.get("mk") == 1: k.mark(3)
    body(last=True, send=True)
    k.nm = 5
    pv(1, 1, S1, 1)
    k.mark()
    O1 = OA + 16
    a("v_cmp_nlt_f32 vcc, v%d, v244" % (O1 + 8))
    a("s_or_b64 vcc, vcc, s[68:69]")
    a("s_cbranch_vccnz L_mha_slow")
    a("L_mha_out:")
    a("""
    s_waitcnt lgkmcnt(0)
    s_barrier
    ds_read_b64 v[56:57], v243 offset:2048
    ds_read_b128 v[48:51], v242
    ds_read_b128 v[52:55], v242 offset:1024
    s_waitcnt lgkmcnt(2)
    v_min_f32 v4, v%d, v57
    v_sub_f32 v5, v4, v%d
    v_sub_f32 v4, v4, v57
    v_exp_f32 v10, v5
    v_exp_f32 v4, v4
    v_mul_f32 v5, v10, v%d
    v_fmac_f32 v5, v4, v56
    v_rcp_f32 v5, v5
    v_mul_f32 v10, v10, v5
    v_mul_f32 v4, v4, v5
    s_waitcnt lgkmcnt(0)
    """ % (CM + 16, CM + 16, O1 + 8))
    for r in range(8):
        a("v_mul_f32 v%d, v10, v%d" % (O1 + r, O1 + r))
        a("v_fmac_f32 v%d, v4, v%d" % (O1 + r, 48 + r))
    for r in range(4): a("v_cvt_pk_bf16_f32 v%d, v%d, v%d" % (O1 + r, O1 + 2 * r, O1 + 2 * r + 1))
    if OPT.get("dual"): a("buffer_store_dwordx4 %s, v9, s[8:11], s59 offen" % R(O1, 4))
    else: a("buffer_store_dwordx4 %s, v9, s[8:11], s58 offen sc1" % R(O1, 4))
    if OPT.get("mk") == 2: k.mark(0)
    a("""
    s_lshl_b32 s46, s72, 15
    s_lshl_b32 s52, s3, 12
    s_add_u32 s46, s46, s52
    s_add_u32 s46, s46, s65
    s_add_u32 s46, s46, 0x%x
    v_add_u32 v6, s52, v9
    s_lshl_b32 s53, s41, 14
    v_add_u32 v7, s53, v9
    v_and_b32 v5, 3, v%d
    v_lshlrev_b32 v5, 10, v5
    s_lshl_b32 s52, s3, 11
    s_add_u32 s52, s52, 0x8000
    v_add_u32 v10, s52, v9
    v_xor_b32 v11, 0x2000, v10
    v_and_b32 v2, 31, v%d
    s_mov_b32 s70, 0
    s_cmp_eq_u32 s66, 0
    s_cbranch_scc0 L_mha_f2
    """ % (OFF["OF"], LN, LN))
    tails = []
    def gather(L):
        if OPT.get("dual"):
            a("s_waitcnt vmcnt(%d)\nL_mha_ol%s:\ns_and_b32 s46, s70, 7\ns_cmp_eq_u32 s46, 7\ns_cselect_b32 s46, s60, s61" % (OPT.get("dw", 1), L))
        else:
            a("""
            s_waitcnt vmcnt(0)
L_mha_op%(L)s:
            buffer_load_dword v4, v5, s[8:11], s46 offen offset:1020 sc1
            s_add_u32 s70, s70, 1
            s_waitcnt vmcnt(0)
            v_cmp_eq_u32 vcc, -1, v4
            s_cmp_gt_u32 s70, 0x40000
            s_cbranch_scc1 L_mha_ol%(L)s
            s_cbranch_vccnz L_mha_op%(L)s
L_mha_ol%(L)s:
            """ % dict(L=L))
        for i in range(4): a("buffer_load_dwordx4 %s, v9, s[8:11], s46 offen offset:%d sc1" % (R(48 + 4 * i, 4), 1024 * i))
        a("s_add_u32 s70, s70, 1")
        for i in range(4):
            a("s_waitcnt vmcnt(%d)" % (3 - i))
            a("ds_write_b128 v6, %s offset:%d" % (R(48 + 4 * i, 4), 1024 * i))
            b = 48 + 4 * i
            if i == 0: a("v_max_u32 v4, v48, v49")
            else: a("v_max3_u32 v4, v4, v%d, v%d" % (b, b + 1))
            a("v_max3_u32 v4, v4, v%d, v%d" % (b + 2, b + 3))
        a("v_cmp_eq_u32 vcc, -1, v4")
        if OPT.get("dual"):
            a("s_cmp_eq_u32 s70, 4\ns_cbranch_scc1 L_mha_ws%s\nL_mha_ns%s:" % (L, L))
            tails.append("L_mha_ws%s:\nbuffer_store_dwordx4 %s, v9, s[8:11], s58 offen sc1\ns_branch L_mha_ns%s" % (L, R(O1, 4), L))
        a("s_cmp_gt_u32 s70, 0x40000\ns_waitcnt lgkmcnt(0)\ns_cbranch_scc1 L_mha_ok%s\ns_cbranch_vccnz L_mha_ol%s" % (L, L))
        a("L_mha_ok%s:" % L)
        if G.STAMP: a("s_mov_b32 s95, s70")
        if OPT.get("dual"): a("buffer_store_dwordx4 %s, v9, s[8:11], s58 offen sc1" % R(O1, 4))
        a("s_barrier")
        k.mark(6)
        for t in range(16):
            if t == 15: a("s_waitcnt lgkmcnt(14)")
            a("ds_read_b128 %s, v7 offset:%d" % (R(48 + 4 * t, 4), 1024 * t))
        for t in range(16):
            a("s_waitcnt lgkmcnt(%d)" % min(14, 15 - t))
            a("v_mfma_f32_32x32x16_bf16 %s, %s, %s, %s" % (R(A3, 16), R(AW + 4 * t, 4), R(48 + 4 * t, 4), R(A3, 16)))
        a("""
        ds_write_b128 v10, %s
        ds_write_b128 v10, %s offset:1024
        s_waitcnt lgkmcnt(0)
        s_barrier
        ds_read_b128 v[48:51], v11
        ds_read_b128 v[52:55], v11 offset:1024
        """ % (R(A3 + 8, 4), R(A3 + 12, 4)))
        for hf in range(2):
            a("s_waitcnt lgkmcnt(%d)" % (1 - hf))
            for r in range(4 * hf, 4 * hf + 4): a("v_add_f32 v%d, v%d, v%d" % (A3 + r, A3 + r, 48 + r))
    a("""
    s_lshl_b32 s40, s73, 17
    s_lshl_b32 s47, s41, 16
    s_add_u32 s40, s40, s47
    s_lshl_b32 s47, s72, 7
    s_add_u32 s40, s40, s47
    s_add_u32 s52, s40, 0x%x
    s_add_u32 s53, s52, 8192
    s_add_u32 s54, s52, 16384
    s_add_u32 s55, s52, 24576
    s_add_u32 s47, s47, 0x%x
    v_lshlrev_b32 v16, 15, v3
    v_lshl_add_u32 v16, v2, 2, v16
    v_lshlrev_b32 v17, 2, v2
    s_add_u32 s40, s73, s41
    v_add_u32 v18, s40, v3
    v_cmp_eq_u32 s[68:69], 0, v18
    s_waitcnt vmcnt(%d)
    """ % (OFF["UC"], OFF["SSQ2"], 1))
    for p in range(4):
        a("v_lshlrev_b32 v%d, 16, v%d\nv_and_b32 v%d, 0xffff0000, v%d" % (A3 + 2 * p, RS + p, A3 + 2 * p + 1, RS + p))
    gather("a")
    for p in range(4):
        a("v_cvt_pk_bf16_f32 v%d, v%d, v%d" % (56 + p, A3 + 2 * p, A3 + 2 * p + 1))
        a("buffer_store_dword v%d, v16, s[8:11], s%d offen%s" % (56 + p, 52 + p, " sc1" if OPT.get("ucf", 3) & 2 else ""))
    a("v_cndmask_b32 v7, v%d, v18, s[68:69]\nv_mul_f32 v7, v7, v7\nv_mul_f32 v8, v%d, v%d" % (A3 + 1, A3, A3))
    for r in range(2, 8): a("v_fmac_f32 v%d, v%d, v%d" % (7 + (r & 1), A3 + r, A3 + r))
    a("""
    v_add_f32 v7, v7, v8
    v_mov_b32 v8, v7
    v_permlane32_swap_b32 v7, v8
    v_add_f32 v7, v7, v8
    s_mov_b32 exec_hi, 0
    buffer_atomic_add_f32 v7, v17, s[8:11], s47 offen
    s_endpgm
L_mha_f2:
    ; layer 2: transpose through LDS to 256-byte row segments
    s_and_b32 s40, s3, 3
    s_lshl_b32 s40, s40, 6
    s_lshl_b32 s47, s41, 4
    s_add_u32 s40, s40, s47
    s_add_u32 s40, s40, 0xC000
    s_movk_i32 s47, 272
    v_mul_lo_u32 v16, v2, s47
    v_lshl_add_u32 v16, v3, 5, v16
    v_add_u32 v16, s40, v16
    v_lshrrev_b32 v4, 4, v%(LN)d
    s_lshl_b32 s40, s3, 2
    v_add_u32 v4, s40, v4               ; row m of the tile
    v_and_b32 v8, 15, v%(LN)d
    v_lshlrev_b32 v8, 4, v8
    v_mad_u32_u24 v17, v4, s47, v8
    v_add_u32 v17, 0xC000, v17
    v_and_b32 v18, 7, v4
    v_lshl_add_u32 v18, v18, 16, v8
    v_lshrrev_b32 v4, 3, v4
    v_lshl_add_u32 v18, v4, 10, v18
    s_bfe_u32 s40, s72, 0x20002
    s_lshl_b32 s40, s40, 19
    s_lshr_b32 s47, s72, 4
    s_lshl_b32 s47, s47, 14
    s_add_u32 s40, s40, s47
    s_and_b32 s47, s72, 3
    s_lshl_b32 s47, s47, 12
    s_add_u32 s40, s40, s47
    s_and_b32 s47, s42, 3
    s_lshl_b32 s47, s47, 8
    s_add_u32 s40, s40, s47
    """ % dict(LN=LN))
    gather("b")
    for p in range(4): a("v_cvt_pk_bf16_f32 v%d, v%d, v%d" % (56 + p, A3 + 2 * p, A3 + 2 * p + 1))
    a("""
    ds_write_b128 v16, v[56:59]
    s_waitcnt lgkmcnt(0)
    s_barrier
    ds_read_b128 v[60:63], v17
    s_waitcnt lgkmcnt(0)
    buffer_store_dwordx4 v[60:63], v18, s[12:15], s40 offen %s
    """ % {0: "", 1: "sc1", 2: "nt", 3: "sc0 sc1"}[OPT.get("outf", 0)])
    a("L_mha_end:")
    a("s_endpgm")
    for t_ in tails: a(t_)
    for p in range(2):
        a("L_mha_sq%d:" % p)
        for f in range(2):
            a("s_cmp_eq_u32 s68, %d\ns_cbranch_scc0 L_mha_kp%d" % (2 * p + f, 2 * p + f))
            for r in range(4): a("v_mov_b32 v%d, v%d" % (232 + r, ureg(2 * p + f) + r))
            a("L_mha_kp%d:" % (2 * p + f))
        a("s_cmp_lt_u32 s42, 8\ns_cbranch_scc0 L_mha_sb%d" % p)
        for r in range(8): sq(ureg(2 * p) + r, "v8" if p == 0 and r == 0 else "0xffff0000")
        if p == 1:
            a("v_add_f32 v10, v10, v11\nv_mov_b32 v11, v10\nv_permlane32_swap_b32 v10, v11\nv_add_f32 v10, v10, v11\nv_and_b32 v10, 0x7fffffff, v10\ns_mov_b32 exec_hi, 0")
            a("buffer_store_dword v10, v150, s[8:11], s59 offen sc1\ns_mov_b64 exec, -1")
        a("s_branch L_mha_sb%d" % p)
    a("""
L_mha_ps:
    s_mov_b32 s70, 0
L_mha_ps2:
    buffer_load_dword v144, v151, s[8:11], s58 offen sc1
    buffer_load_dword v145, v151, s[8:11], s58 offen offset:128 sc1
    buffer_load_dword v146, v151, s[8:11], s58 offen offset:256 sc1
    buffer_load_dword v147, v151, s[8:11], s58 offen offset:384 sc1
    s_add_u32 s70, s70, 1
    s_waitcnt vmcnt(0)
    v_or3_b32 v4, v144, v145, v146
    v_or_b32 v4, v4, v147
    v_cmp_gt_i32 vcc, 0, v4
    s_cmp_gt_u32 s70, 0x40000
    s_cbranch_scc1 L_mha_ps1
    s_cbranch_vccnz L_mha_ps2
    s_branch L_mha_ps1
    """)
    for i in late:
        a("L_mha_re%d:\nbuffer_load_dword v2, v8, s[8:11], s56 offen sc1\ns_branch L_mha_nr%d" % (i, i))
    a("""
L_mha_us:
    s_mov_b32 s70, 0
L_mha_us2:
    buffer_load_dword v2, v151, s[8:11], s69 offen sc1
    s_add_u32 s70, s70, 1
    s_waitcnt vmcnt(0)
    v_cmp_ne_u32 vcc, 1, v2
    s_cmp_gt_u32 s70, 0x40000
    s_cbranch_scc1 L_mha_ub
    s_cbranch_vccnz L_mha_us2
    s_branch L_mha_ub
    """)
    a("L_mha_spin0:")
    a("s_mov_b32 s70, 0")
    a("L_mha_spin:")
    a("buffer_load_dword v2, v8, s[8:11], s56 offen sc1\ns_add_u32 s70, s70, 1\ns_waitcnt vmcnt(0)\nv_cmp_ne_u32 vcc, 1, v2")
    a("s_cmp_gt_u32 s70, 0x40000\ns_cbranch_scc1 L_mha_go\ns_cbranch_vccnz L_mha_spin")
    a("L_mha_go:")
    group()
    if G1 == 2: group()
    a("s_branch L_mha_rdy")
    a("L_mha_x45:")
    body(x=1, hooks={4: h_sync(8, 0)} if H4 else {})
    body(x=2, hooks={0: h_x2})
    body(x=2, hooks={0: h_w})
    a("s_branch L_mha_i7")
    a("L_mha_slow:")
    a("s_waitcnt lgkmcnt(0)\ns_mov_b32 s63, 0\nv_mov_b32 v6, v%d\nv_mov_b32 v4, 0xff800000\nv_mov_b32 v5, 0xff800000" % KA0)
    for r in range(32): a("v_mov_b32 v%d, 0" % (OA + r))
    a("L_mha_maxloop:")
    for i in range(4):
        a("ds_read_b128 %s, v6 offset:%d" % (R(KB, 4), 1024 * i))
        a("s_waitcnt lgkmcnt(0)")
        a("v_mfma_f32_32x32x16_bf16 %s, %s, %s, 0" % (R(S0, 16), R(KB, 4), R(Q, 4)))
        a("v_mfma_f32_32x32x16_bf16 %s, %s, %s, 0" % (R(S1, 16), R(KB, 4), R(Q + 4, 4)))
        for x, S in ((4, S0), (5, S1)):
            for r in range(0, 16, 2): a("v_max3_f32 v%d, v%d, v%d, v%d" % (x, x, S + r, S + r + 1))
    a("v_add_u32 v6, 8192, v6")
    a("s_add_u32 s63, s63, 1\ns_cmp_lt_u32 s63, 8\ns_cbranch_scc1 L_mha_maxloop")
    a("v_mov_b32 v6, v%d\nv_mov_b32 v7, v%d" % (KA0, VA0))
    rdk(0, 0); rdv(0, 0, 0); rdv(0, 1, 512); rdk(1, 1024)
    a("v_mov_b32 v10, v4\nv_mov_b32 v11, v5\nv_permlane32_swap_b32 v4, v10\nv_permlane32_swap_b32 v5, v11")
    a("v_max_f32 v4, v4, v10\nv_max_f32 v5, v5, v11")
    for r in range(16): a("v_sub_f32 v%d, 0, v4\nv_sub_f32 v%d, 0, v5" % (CM + r, CM + 16 + r))
    for r in range(8): a("v_mov_b32 v%d, 0" % (S1 + 8 + r))
    for r in range(4): a("v_mov_b32 v%d, 0" % (VB + 12 + r))
    a("s_waitcnt lgkmcnt(0)")
    qk(S0, 0, 0)
    a("s_mov_b32 s63, 0\ns_nop 7\ns_nop 3")
    a("L_mha_loop:")
    body(loop=True)
    a("s_cbranch_scc1 L_mha_loop")
    pv(1, 1, S1, 1)
    a("v_mov_b32 v%d, v%d" % (OA + 9, CM))
    a("ds_write_b128 v240, %s\nds_write_b128 v240, %s offset:1024\nds_write_b64 v241, %s offset:2048" % (R(OA, 4), R(OA + 4, 4), R(OA + 8, 2)))
    a("s_nop 7\ns_nop 3\ns_branch L_mha_out")
    lds = XB + 8 * 2560
    return (k, 256, 512, lds), (k2, 256, 512, lds)
```

```python
def k_prep(G):
    K, R, OFF, TOFF, SIZE, srd_load, srd_tab, lane_setup, OPT, fbits, LOG2E = G.K, G.R, G.OFF, G.TOFF, G.SIZE, G.srd_load, G.srd_tab, G.lane_setup, G.OPT, G.fbits, G.LOG2E
    ACC = 16; ACW = 32; TF = 112; BX = 48; BW = 80
    HL = 0x20000; AS = 9216
    NT = 'nt ' if OPT.get('nt', 3) & 1 else ''
    NTW = 'nt ' if OPT.get('nt', 3) & 2 else ''
    k = K("prep_kernel", 240); a = k.a
    a("s_cmp_ge_u32 s2, 256\ns_cbranch_scc1 L_prep_end")
    a("s_load_dwordx4 s[72:75], s[0:1], 0\ns_load_dwordx2 s[76:77], s[0:1], 16\ns_load_dwordx4 s[12:15], s[0:1], 32")
    srd_load(a, 8, "ws")
    lane_setup(a)
    a("""
    s_and_b32 s40, s2, 7
    s_lshr_b32 s41, s2, 3
    s_and_b32 s42, s41, 7           ; cb
    s_lshl_b32 s43, s40, 2
    s_lshr_b32 s48, s41, 3
    s_add_u32 s43, s43, s48         ; rb
    s_lshl_b32 s48, s48, 1
    s_add_u32 s51, s42, s48         ; rot
    s_mov_b32 s23, 0x00020000
    s_cmp_ge_u32 s3, 4
    s_cbranch_scc1 L_prep_help
    s_lshr_b32 s57, s3, 1           ; wm
    s_and_b32 s58, s3, 1            ; wn
    s_lshl_b32 s44, s42, 1
    s_add_u32 s44, s44, s57         ; c tile
    s_lshl_b32 s46, s43, 1
    s_add_u32 s46, s46, s58
    s_lshl_b32 s50, s44, 15
    """)
    a("""
    v_and_b32 v4, 0x13, v1
    v_and_b32 v5, 4, v1
    v_lshl_or_b32 v4, v5, 1, v4
    v_bfe_u32 v5, v1, 3, 1
    v_lshl_or_b32 v4, v5, 2, v4
    s_lshl_b32 s40, s44, 5
    v_add_u32 v4, s40, v4           ; c
    v_lshrrev_b32 v5, 1, v4         ; kk
    v_and_b32 v6, 1, v4
    v_lshlrev_b32 v6, 7, v6         ; ph
    v_mov_b32 v7, 256
    v_cmp_eq_u32 vcc, 0, v4
    v_cndmask_b32 v5, v5, v7, vcc
    v_mov_b32 v7, 64
    v_cmp_gt_u32 vcc, 2, v4
    v_cndmask_b32 v6, v6, v7, vcc
    v_lshlrev_b32 v7, 3, v3
    v_mad_u32_u24 v6, v5, v7, v6
    v_cvt_f32_u32 v7, v5
    v_mul_f32 v7, 0x3b000000, v7
    v_lshlrev_b32 v11, 31, v5
    v_ashrrev_i32 v11, 31, v11
    v_and_b32 v12, v5, v4
    v_lshrrev_b32 v13, 1, v5
    v_xor_b32 v12, v12, v13
    v_lshlrev_b32 v12, 31, v12
    v_ashrrev_i32 v12, 31, v12
    v_and_b32 v11, 0x80008000, v11
    v_and_b32 v12, 0x80008000, v12
    v_xor_b32 v13, v11, v12
    """)
    for c in range(2):
        a("s_add_u32 s53, s51, %d\ns_lshl_b32 s53, s53, 6" % c)
        for t in range(4):
            if t: a("s_add_u32 s53, s53, 16")
            a("v_mad_u32_u24 v10, v5, s53, v6\nv_and_b32 v10, 511, v10\nv_cvt_f32_u32 v10, v10\nv_mul_f32 v48, 0x3b000000, v10")
            for j in range(1, 8): a("v_fmamk_f32 v%d, v7, 0x%x, v48" % (48 + j, fbits(j)))
            for j in range(8): a("v_cos_f32 v%d, v%d" % (48 + j, 48 + j))
            d = TF + 16 * c + 4 * t
            for j in range(4): a("v_cvt_pk_bf16_f32 v%d, v%d, v%d" % (d + j, 48 + 2 * j, 49 + 2 * j))
            for j in range(4): a("v_xor_b32 v%d, v11, v%d" % (d + 64 + j, d + j))
            for j in range(4): a("v_xor_b32_dpp v%d, v%d, v12 quad_perm:[0,1,3,2] row_mask:0xf bank_mask:0xf" % (d + 32 + j, d + j))
            for j in range(4): a("v_xor_b32_dpp v%d, v%d, v13 quad_perm:[0,1,3,2] row_mask:0xf bank_mask:0xf" % (d + 96 + j, d + j))
    k.mark(0)
    a("""
    s_lshl_b32 s49, s58, 12
    v_bfe_u32 v5, v1, 1, 3
    v_xor_b32 v5, v5, v3
    v_lshlrev_b32 v7, 7, v2
    v_add_u32 v7, s49, v7
    v_lshl_add_u32 v10, v5, 4, v7
    v_xor_b32 v11, 32, v10
    v_xor_b32 v12, 64, v10
    v_xor_b32 v13, 96, v10
    v_bfe_u32 v4, v1, 2, 2
    v_lshl_add_u32 v4, v3, 3, v4
    v_lshlrev_b32 v4, 7, v4         ; (8h + r)*128
    v_bfe_u32 v5, v1, 3, 1
    v_xor_b32 v5, s58, v5
    v_lshl_add_u32 v4, v5, 6, v4
    v_bfe_u32 v6, v1, 4, 1
    v_lshl_add_u32 v4, v6, 5, v4
    v_and_b32 v5, 3, v1
    v_lshl_add_u32 v14, v5, 3, v4
    s_waitcnt lgkmcnt(0)
    """)
    G.uc_addr(a)
    k.mark(5)
    a("s_cmp_ge_u32 s43, 24\ns_cbranch_scc1 L_prep_o")
    def mainloop(tr):
        n = 12 if tr else 8
        def reads(ch, t):
            so = (ch & 3) * 16384; s = 16 * (ch & 1)
            a("ds_read_b128 %s, v%d offset:%d" % (R(BX + s + 4 * t, 4), 10 + t, so))
            if tr:
                a("ds_read_b64_tr_b16 %s, v14 offset:%d" % (R(BW + s + 4 * t, 2), so + 8192 + t * 2048))
                a("ds_read_b64_tr_b16 %s, v14 offset:%d" % (R(BW + s + 4 * t + 2, 2), so + 8192 + t * 2048 + 512))
            else:
                a("ds_read_b128 %s, v%d offset:%d" % (R(BW + s + 4 * t, 4), 10 + t, so + 8192))
        def mf(ch, t, half):
            s = 16 * (ch & 1)
            z = ch == 0 and t == 0
            T = R(TF + 16 * ch + 4 * t, 4)
            W = R(BW + s + 4 * t, 4)
            if half == 0: a("v_mfma_f32_32x32x16_bf16 %s, %s, %s, %s" % (R(ACC, 16), T, R(BX + s + 4 * t, 4), "0" if z else R(ACC, 16)))
            else: a("v_mfma_f32_32x32x16_bf16 %s, %s, %s, %s" % (R(ACW, 16), T if tr else W, W if tr else T, "0" if z else R(ACW, 16)))
        for ch in range(8):
            if ch == 4:
                for v in range(10, 15): a("v_add_u32 v%d, 0x10000, v%d" % (v, v))
            a("s_waitcnt lgkmcnt(0)")
            if ch: mf(ch - 1, 0, 0); mf(ch - 1, 0, 1)
            a("s_barrier")
            if ch == 0: k.mark(1)
            if ch == 4: k.mark(2)
            for i in range(6):
                if i < 4: reads(ch, i)
                if ch: mf(ch - 1, 1 + i // 2, i & 1)
        k.mark(3)
        for t in range(4):
            a("s_waitcnt lgkmcnt(%d)" % ((n // 4) * (3 - t)))
            mf(7, t, 0); mf(7, t, 1)
    AC_ = ACW
    mainloop(True)
    a("""
    s_lshr_b32 s47, s46, 4          ; part
    s_and_b32 s41, s46, 15
    s_mul_i32 s41, s41, 98304
    s_add_u32 s41, s41, 0x%x
    s_cmp_eq_u32 s47, 0
    s_mov_b32 s50, 0x3d800000
    s_cselect_b32 s50, 0x%x, s50
    s_lshl_b32 s40, s44, 11
    s_lshl_b32 s48, s47, 8
    s_add_u32 s40, s40, s48         ; Q/K: ct*2048 + part*256
    s_lshl_b32 s48, s44, 10
    s_add_u32 s48, s48, 32768       ; V: 32768 + ct*1024
    s_cmp_eq_u32 s47, 2
    s_cselect_b32 s40, s48, s40
    s_cselect_b32 s48, 8, 10
    s_mov_b32 s47, 9
    s_add_u32 s40, s40, s41
    s_lshl_b32 s48, 1, s48
    s_add_u32 s41, s40, s48
    v_and_b32 v7, 15, v1
    v_lshlrev_b32 v9, 4, v7
    v_lshlrev_b32 v7, s47, v3
    v_add_u32 v9, v9, v7
    s_mov_b32 s48, 49152
    v_mad_u32_u24 v9, v6, s48, v9
    v_add_u32 v4, s44, v3
    v_cmp_eq_u32 vcc, 0, v4
    v_cndmask_b32 v%d, v%d, v4, vcc
    """ % (OFF["WP"], fbits(0.25 * LOG2E / 16), AC_ + 1, AC_ + 1))
    a("L_prep_out:")
    for r in range(16): a("v_mul_f32 v%d, 0x3d800000, v%d" % (ACC + r, ACC + r))
    for p in range(8): a("v_cvt_pk_bf16_f32 v%d, v%d, v%d" % (48 + p, ACC + 2 * p, ACC + 2 * p + 1))
    for p in range(8): a("buffer_store_dword v%d, v5, s[8:11], s%d offen%s" % (48 + p, 64 + p, " sc1" if OPT.get("ucf", 3) & 1 else ""))
    for r in range(16): a("v_mul_f32 v%d, s50, v%d" % (AC_ + r, AC_ + r))
    for r in range(8): a("v_cvt_pk_bf16_f32 v%d, v%d, v%d" % (56 + r, AC_ + 2 * r, AC_ + 2 * r + 1))
    fl = " sc1" if OPT.get("wpf2", 1) else ""
    a("buffer_store_dwordx4 v[56:59], v9, s[8:11], s40 offen%s\nbuffer_store_dwordx4 v[60:63], v9, s[8:11], s41 offen%s" % (fl, fl))
    a("s_endpgm")
    a("L_prep_o:")
    mainloop(False)
    a("s_sub_u32 s46, s46, 48\ns_lshl_b32 s40, s44, 15\ns_lshl_b32 s41, s46, 11\ns_add_u32 s40, s40, s41\ns_add_u32 s40, s40, 0x%x\ns_add_u32 s41, s40, 1024" % OFF["WOP"])
    a("s_mov_b32 s50, 0x3d800000\ns_nop 7\ns_branch L_prep_out")
    a("L_prep_help:")
    a("s_cmp_ge_u32 s3, 6\ns_cbranch_scc1 L_prep_h67")
    a("""
    v_lshrrev_b32 v4, 3, v1
    v_lshrrev_b32 v7, 4, v1
    v_xor_b32 v7, v7, v1
    v_and_b32 v7, 7, v7
    v_lshlrev_b32 v7, 4, v7
    v_lshl_add_u32 v12, v4, 10, v7
    v_xor_b32 v13, 64, v12
    v_add_u32 v13, 8192, v13
    s_movk_i32 s54, 128
    s_mov_b32 s52, 0
    s_cmp_eq_u32 s3, 5
    s_cbranch_scc1 L_prep_w
    v_lshl_add_u32 v12, v4, 16, v7
    v_xor_b32 v13, 64, v12
    v_add_u32 v13, 1024, v13
    s_bfe_u32 s40, s43, 0x20001
    s_lshl_b32 s40, s40, 19
    s_lshr_b32 s41, s43, 3
    s_lshl_b32 s41, s41, 14
    s_add_u32 s50, s40, s41
    s_and_b32 s41, s43, 1
    s_lshl_b32 s41, s41, 13
    s_add_u32 s50, s50, s41
    s_movk_i32 s55, 2048
    s_movk_i32 s59, 4096
    s_mov_b32 s22, 0x%x
    s_waitcnt lgkmcnt(0)
    s_mov_b64 s[20:21], s[72:73]
    s_branch L_prep_go
L_prep_w:
    s_movk_i32 s52, 8192
    s_cmp_lt_u32 s43, 24
    s_cbranch_scc1 L_prep_q
    s_sub_u32 s50, s43, 24
    s_lshl_b32 s50, s50, 16
    s_movk_i32 s55, 16384
    s_mov_b32 s59, 32768
    s_mov_b32 s22, 0x%x
    s_waitcnt lgkmcnt(0)
    s_mov_b64 s[20:21], s[14:15]
    s_branch L_prep_go
L_prep_q:
    s_movk_i32 s40, 3072
    v_mul_lo_u32 v12, v4, s40
    v_lshrrev_b32 v7, 2, v1
    v_and_b32 v7, 4, v7
    v_xor_b32 v7, v7, v1
    v_and_b32 v7, 7, v7
    v_lshl_add_u32 v12, v7, 4, v12
    v_add_u32 v13, %d, v12
    s_lshl_b32 s50, s43, 7
    s_mov_b32 s54, %d
    s_mov_b32 s55, %d
    s_mov_b32 s59, %d
    s_mov_b32 s22, 0x%x
    s_waitcnt lgkmcnt(0)
    s_mov_b64 s[20:21], s[12:13]
L_prep_go:
    s_setprio 3
    """ % (SIZE["x"], SIZE["wo"], 8 * 3072, 64 * 3072, 16 * 3072, 32 * 3072, SIZE["wqkv"]))
    k.mark(0)
    LP = OPT.get("lpre", 4)
    lm = []
    def issue(ch):
        a("s_add_u32 s53, s51, %d\ns_and_b32 s53, s53, 7\ns_mul_i32 s53, s53, s54\ns_add_u32 s60, s53, s50" % ch)
        a("s_add_u32 s61, s60, s55\ns_add_u32 s62, s60, s59\ns_add_u32 s63, s61, s59")
        for i in range(8):
            a("s_add_u32 m0, s52, %d" % (ch * 16384 + i * 1024))
            a("buffer_load_dwordx4 v%d, s[20:23], s%d offen %slds" % (12 + (i & 1), 60 + (i >> 1), NT if ch < OPT.get("ntch", 1) else ""))
        lm.append(a.vm - 1)
    L0 = OPT.get("l0", 2)
    for ch in range(L0): issue(ch)
    k.mark(1)
    for ch in range(8):
        a.wait_vm(lm[ch])
        if ch == 0: k.mark(2)
        if ch == 0 and len(lm) < 2: issue(1)
        a("s_barrier")
        while len(lm) < min(8, ch + 1 + LP): issue(len(lm))
        if ch == 4 and OPT.get("warm", 0):
            a("s_lshr_b32 s41, s2, 3")
            if OPT["warm"] & 1:
                a("s_getpc_b64 s[16:17]")
                a.raw("    s_add_u32 s16, s16, code_begin@rel32@lo+4\n    s_addc_u32 s17, s17, code_begin@rel32@hi+12")
                a.raw("    s_mov_b32 s18, code_end-code_begin")
                a("s_mov_b32 s19, 0x00020000\nv_lshlrev_b32 v20, 5, v1\ns_lshl_b32 s40, s41, 11\nbuffer_load_dword v21, v20, s[16:19], s40 offen")
            if OPT["warm"] & 2:
                a("v_lshlrev_b32 v20, 14, v1\ns_lshl_b32 s40, s41, 20\nbuffer_load_dword v21, v20, s[8:11], s40 offen")
    a("s_endpgm")
    a("L_prep_h67:")
    if OPT.get("nohelp"): a("s_endpgm")
    a("s_cmp_eq_u32 s3, 7\ns_cbranch_scc1 L_prep_stat")
    a("""
    s_lshl_b32 s44, s40, 5
    s_add_u32 s44, s44, s41
    s_and_b32 s47, s44, 1
    s_lshr_b32 s44, s44, 1
    s_mul_i32 s45, s44, 8224
    s_add_u32 s46, s45, 4096
    s_add_u32 s48, s45, 8192
    s_mov_b32 s18, 0x%x
    s_mov_b32 s19, 0x00020000
    s_mov_b32 s22, 0x%x
    s_waitcnt lgkmcnt(0)
    s_mov_b64 s[16:17], s[74:75]
    s_mov_b64 s[20:21], s[76:77]
    """ % (SIZE["wr"], SIZE["wi"]))
    for arr in range(2):
        srd = "s[16:19]" if arr == 0 else "s[20:23]"
        for hf in range(2):
            a("s_mov_b32 m0, %d" % (HL + AS * arr + 4096 * hf))
            for i in range(4): a("buffer_load_dwordx4 v9, %s, s%d offen offset:%d %slds" % (srd, 45 + hf, 1024 * i, NTW))
        a("s_mov_b32 m0, %d\ns_mov_b64 exec, 3" % (HL + AS * arr + 8192))
        a("buffer_load_dwordx4 v9, %s, s48 offen lds" % srd)
        a("s_mov_b64 exec, -1")
    a("""
    s_mov_b32 s49, %d
    v_lshrrev_b32 v4, 2, v1
    s_lshl_b32 s47, s47, 7
    v_add_u32 v4, s47, v4           ; slot k of group 0
    v_and_b32 v8, 3, v1
    s_movk_i32 s48, 2056
    v_mul_lo_u32 v10, v8, s48
    v_lshlrev_b32 v5, 1, v4
    v_mov_b32 v6, 512
    v_cmp_eq_u32 vcc, 0, v4
    v_cndmask_b32 v6, v5, v6, vcc
    v_add3_u32 v5, v5, v10, s49
    v_add3_u32 v6, v6, v10, s49
    v_lshlrev_b32 v7, 13, v4
    v_lshl_add_u32 v7, v8, 4, v7
    s_lshl_b32 s44, s44, 6
    s_add_u32 s44, s44, 0x%x
    s_setprio 3
    """ % (HL, OFF["WT"]))
    k.mark(1)
    HW = OPT.get("hw", 3)
    for _ in range(HW): a("s_barrier")
    a("s_waitcnt vmcnt(0)")
    k.mark(2)
    nb = HW
    for g in range(8):
        if g and g % 2 == 0 and nb < 8:
            a("s_barrier"); nb += 1
        for o in range(4):
            a("ds_read_u16 v%d, v%d offset:%d" % (64 + o, 6 if g == 0 else 5, g * 32 + o * 514))
            a("ds_read_u16 v%d, v%d offset:%d" % (72 + o, 6 if g == 0 else 5, AS + g * 32 + o * 514))
        a("s_waitcnt lgkmcnt(0)")
        b = 80 + 4 * (g & 3)
        for o in range(4): a("v_lshl_or_b32 v%d, v%d, 16, v%d" % (b + o, 72 + o, 64 + o))
        a("buffer_store_dwordx4 %s, v7, s[8:11], s44 offen %s" % (R(b, 4), "sc1" if OPT.get("wtf", 1) else ""))
        if g < 7: a("s_add_u32 s44, s44, 0x20000")
    a("s_cmp_lt_u32 s43, 24\ns_cbranch_scc1 L_prep_w6e")
    if nb < 8:
        a("s_barrier");
    a("""
    v_bfe_u32 v4, v1, 2, 2          ; r
    v_lshl_add_u32 v5, v3, 2, v4    ; 4h + r
    v_lshlrev_b32 v5, 7, v5
    v_lshrrev_b32 v4, 1, v4
    v_lshl_add_u32 v4, v3, 1, v4    ; 2h + (r>>1)
    v_and_b32 v6, 1, v1
    v_bfe_u32 v7, v1, 4, 1
    v_lshl_add_u32 v6, v6, 1, v7    ; 2(cq&1) + (G&1)
    v_xor_b32 v4, v4, v6
    v_lshl_add_u32 v5, v4, 4, v5
    v_bfe_u32 v4, v1, 1, 1
    v_lshl_add_u32 v5, v4, 3, v5
    s_and_b32 s44, s51, 7
    s_lshl_b32 s44, s44, 16
    s_sub_u32 s45, s43, 24
    s_lshl_b32 s45, s45, 12
    s_add_u32 s44, s44, s45
    s_add_u32 s44, s44, 0x%x
    s_add_u32 s45, s44, 32768
    """ % OFF["WOF"])
    for dl in range(2):
        for hl in range(4):
            for x2 in range(2):
                a("ds_read_b64_tr_b16 %s, v5 offset:%d" % (R(96 + 16 * dl + 4 * hl + 2 * x2, 2), 8192 + (16 * hl + 8 * x2) * 128 + (dl ^ x2) * 64))
        a("s_waitcnt lgkmcnt(0)")
        for hl in range(4):
            a("buffer_store_dwordx4 %s, v9, s[8:11], s%d offen offset:%d sc1" % (R(96 + 16 * dl + 4 * hl, 4), 44 + dl, 1024 * hl))
    if G.STAMP:
        for _ in range(8 - nb - 1): a("s_barrier")
    a("s_endpgm")
    a("L_prep_w6e:")
    if G.STAMP:
        for _ in range(8 - nb): a("s_barrier")
    a("s_endpgm")
    a("L_prep_stat:")
    srd_tab(a, 16)
    a("s_mul_i32 s46, s41, 1280\ns_add_u32 s46, s46, %d\nv_lshlrev_b32 v25, 5, v1\nbuffer_load_dword v26, v25, s[16:19], s46 offen" % TOFF["M1"])
    a("""
    s_lshl_b32 s40, s42, 10
    v_add_u32 v7, s40, v9
    v_mov_b32 v20, 0
    v_lshlrev_b32 v21, 2, v1
    v_lshrrev_b32 v6, 3, v1
    v_lshlrev_b32 v6, 2, v6
    s_lshl_b32 s44, s43, 8
    s_lshl_b32 s45, s42, 5
    s_add_u32 s44, s44, s45
    s_add_u32 s43, s44, 0x%x
    s_add_u32 s44, s44, 0x%x
    s_lshl_b32 s45, s2, 7
    s_add_u32 s45, s45, 0x%x
    s_lshl_b32 s47, s2, 9
    s_add_u32 s47, s47, PSQOFF
    v_mov_b32 v22, -1
    v_mov_b32 v23, -1
    v_lshlrev_b32 v24, 3, v1
    v_mov_b32 v10, 0
    v_mov_b32 v11, 0
    s_waitcnt lgkmcnt(0)
    buffer_store_dword v20, v6, s[8:11], s44 offen
    s_mov_b32 exec_hi, 0
    buffer_store_dword v20, v21, s[8:11], s45 offen
    s_mov_b32 exec_hi, -1
    buffer_store_dwordx2 v[22:23], v24, s[8:11], s47 offen
    v_mov_b32 v28, -1
    v_mov_b32 v29, -1
    v_mov_b32 v30, -1
    v_mov_b32 v31, -1
    s_lshl_b32 s47, s2, 13
    s_add_u32 s47, s47, OFOFF
    s_add_u32 s48, s47, 4096
    s_mov_b32 s46, 0
    s_setprio 2
L_prep_sl:
    s_barrier
    ds_read_b128 v[64:67], v7
    buffer_store_dwordx4 v[28:31], v9, s[8:11], s47 offen SFL
    s_add_u32 s47, s47, 1024
    v_add_u32 v7, 16384, v7
    s_add_u32 s46, s46, 1
    s_waitcnt lgkmcnt(0)
    """.replace("PSQOFF", "0x%x" % OFF["PSQ"]).replace("OLD", "0x%x" % (OFF["OL"] - OFF["OF"])).replace("SFL", "" if OPT.get("sfp") else "sc1").replace("OFOFF", "0x%x" % OFF["OF"]).replace("SENT", "\n".join("    buffer_store_dwordx4 v[28:31], v9, s[8:11], s%d offen offset:%d sc1" % (47 + (i >> 2), 1024 * (i & 3)) for i in range(8))) % (OFF["SSQ0"], OFF["SSQ2"], OFF["FLK"]))
    for r in range(4):
        a("v_and_b32 v4, 0xffff0000, v%d\nv_lshlrev_b32 v5, 16, v%d" % (64 + r, 64 + r))
        a("v_fmac_f32 v10, v4, v4\nv_add_f32 v11, v11, v4\nv_fmac_f32 v10, v5, v5\nv_add_f32 v11, v11, v5")
    a("s_cmp_lt_u32 s46, 8\ns_cbranch_scc1 L_prep_sl")
    for m in ("quad_perm:[1,0,3,2]", "quad_perm:[2,3,0,1]", "row_half_mirror"):
        a("v_add_f32_dpp v10, v10, v10 %s row_mask:0xf bank_mask:0xf" % m)
        a("v_add_f32_dpp v11, v11, v11 %s row_mask:0xf bank_mask:0xf" % m)
    a("v_mul_f32 v12, 0x%x, v11" % fbits(-1.0 / 512))
    a("v_fma_f32 v13, v12, v11, v10")
    a("buffer_store_dword v13, v6, s[8:11], s43 offen")
    a("L_prep_end:")
    a("s_endpgm")
    return k, 256, 512, HL + 18432
```

```python
import sys, math
import numpy as np
from asmlib import Asm
from layouts4 import *

NAME = "interleave_layers__spectral_gfnet__softmax_full_mha__prompt"
KA = dict(x=0, wr=8, wi=16, wqkv=32, wo=40, out=48, dbg=56, ws=64)
SIZE = dict(x=2097152, wr=1052672, wi=1052672, wqkv=1572864, wo=524288, out=2097152, ws=WS_USED)
TOFF = dict(T2=0, M1=0x80000, M2=0x82000)
TSIZE = 0x8A000
LOG2E = 1.4426950408889634
STAMP = False
OPT = {}
def fbits(x): return int(np.float32(x).view(np.uint32))
def R(b, n): return "v[%d:%d]" % (b, b + n - 1)

class K:
    def __init__(self, name, vgpr, sgpr=96):
        self.name = name; self.vgpr = vgpr; self.sgpr = sgpr
        self.a = Asm()
        self.a.raw(".text\n.globl %s\n.p2align 8\n.type %s,@function" % (name, name))
        self.a(name + ":")
        self.nm = 0
        if OPT.get("diag"):
            idx = {"prep": 0, "col1": 1, "mha1": 2, "col2": 3, "mha2": 4}[name.replace("_kernel", "")]
            self.a.raw("    s_memrealtime s[84:85]\n    s_mov_b32 s86, %d" % idx)
        if STAMP:
            self.a.raw("    s_memrealtime s[84:85]\n    s_memtime s[86:87]\n    v_lshrrev_b32 v4, 6, v0\n    s_nop 1\n    v_readfirstlane_b32 s94, v4\n    s_mov_b32 s95, 0")
            self.a.raw("    s_waitcnt lgkmcnt(0)\n" + "\n".join("    s_mov_b32 s%d, s86" % (24 + 2 * i) for i in range(8)))
    def mark(self, i=None):
        if STAMP:
            if i is None: i = self.nm
            self.nm = i + 1
            assert i < 7
            self.a.raw("    s_memtime s[%d:%d]" % (24 + 2 * i, 25 + 2 * i))
    def text(self):
        t = self.a.text()
        if OPT.get("diag") and "s_endpgm" in t:
            t = t.replace("    s_endpgm", "    s_branch %s_diag" % self.name)
            t += """%s_diag:
    s_waitcnt vmcnt(0) lgkmcnt(0)
    s_memrealtime s[88:89]
    s_load_dwordx2 s[80:81], s[0:1], 56
    s_load_dwordx2 s[92:93], s[0:1], 64
    s_mov_b32 s82, 256
    s_mov_b32 s83, 0x00020000
    s_mov_b32 s94, 0x2000000
    s_mov_b32 s95, 0x00020000
    s_waitcnt lgkmcnt(0)
    s_lshl_b32 s87, s86, 3
    s_add_u32 s87, s87, 0x1f00000
    s_mov_b64 exec, 1
    v_mov_b32 v0, 0
    v_mov_b32 v4, s84
    v_mov_b32 v5, s88
    s_cmp_eq_u32 s2, 0
    s_cbranch_scc0 %s_dend
    buffer_store_dwordx2 v[4:5], v0, s[92:95], s87 offen sc1
    s_waitcnt vmcnt(0)
    s_mov_b32 s87, 0x1f00000
    buffer_load_dwordx4 v[8:11], v0, s[92:95], s87 offen sc1
    buffer_load_dwordx4 v[12:15], v0, s[92:95], s87 offen offset:16 sc1
    buffer_load_dwordx4 v[16:19], v0, s[92:95], s87 offen offset:32 sc1
    s_waitcnt vmcnt(0)
    buffer_store_dwordx4 v[8:11], v0, s[80:83], 0 offen
    buffer_store_dwordx4 v[12:15], v0, s[80:83], 0 offen offset:16
    buffer_store_dwordx4 v[16:19], v0, s[80:83], 0 offen offset:32
%s_dend:
    s_endpgm
""" % (self.name, self.name, self.name)
        if STAMP and "s_endpgm" in t:
            t = t.replace("    s_endpgm", "    s_branch %s_stamp" % self.name)
            t += """%s_stamp:
    s_memtime s[38:39]
    s_waitcnt vmcnt(0) lgkmcnt(0)
    s_memrealtime s[88:89]
    s_memtime s[90:91]
    s_load_dwordx2 s[80:81], s[0:1], 64
    s_load_dwordx2 s[92:93], s[0:1], 56
    s_mov_b32 s82, 0x4000000
    s_mov_b32 s83, 0x00020000
    s_waitcnt lgkmcnt(0)
    s_lshr_b32 s92, s92, 9
    s_and_b32 s92, s92, 63
    s_lshl_b32 s92, s92, 20
    s_lshl_b32 s93, s2, 10
    s_add_u32 s92, s92, s93
    s_lshl_b32 s93, s94, 6
    s_add_u32 s92, s92, s93
    s_add_u32 s92, s92, 0x2000000
    s_sub_u32 s90, s90, s86
    s_mov_b64 exec, 1
    v_mov_b32 v0, 0
    v_mov_b32 v4, s84
    v_mov_b32 v5, s88
    v_mov_b32 v6, s90
    v_mov_b32 v7, s95
    buffer_store_dwordx4 v[4:7], v0, s[80:83], s92 offen
""" % self.name
            for i in range(8): t += "    s_sub_u32 s%d, s%d, s86\n    v_mov_b32 v%d, s%d\n" % (24 + 2 * i, 24 + 2 * i, 8 + i, 24 + 2 * i)
            t += "    buffer_store_dwordx4 v[8:11], v0, s[80:83], s92 offen offset:16\n    buffer_store_dwordx4 v[12:15], v0, s[80:83], s92 offen offset:32\n    s_endpgm\n"
        return t
    def desc(self):
        return """.section .rodata,"a"
.p2align 6
.amdhsa_kernel %s
  .amdhsa_next_free_vgpr %d
  .amdhsa_next_free_sgpr %d
  .amdhsa_accum_offset %d
  .amdhsa_group_segment_fixed_size 0
  .amdhsa_kernarg_size 72
  .amdhsa_user_sgpr_count 2
  .amdhsa_user_sgpr_kernarg_segment_ptr 1
  .amdhsa_system_sgpr_workgroup_id_x 1
.end_amdhsa_kernel
""" % (self.name, self.vgpr, self.sgpr, (self.vgpr + 3) // 4 * 4)

def srd_load(a, s, what):
    a("s_load_dwordx2 s[%d:%d], s[0:1], %d" % (s, s + 1, KA[what]))
    a("s_mov_b32 s%d, 0x%x" % (s + 2, SIZE[what]))
    a("s_mov_b32 s%d, 0x00020000" % (s + 3))
def srd_tab(a, s):
    a("s_getpc_b64 s[%d:%d]" % (s, s + 1))
    a.raw("    s_add_u32 s%d, s%d, tables@rel32@lo+4" % (s, s))
    a.raw("    s_addc_u32 s%d, s%d, tables@rel32@hi+12" % (s + 1, s + 1))
    a("s_mov_b32 s%d, 0x%x" % (s + 2, TSIZE))
    a("s_mov_b32 s%d, 0x00020000" % (s + 3))
def lane_setup(a):
    a("""
    v_lshrrev_b32 v4, 6, v0
    v_and_b32 v1, 63, v0
    v_readfirstlane_b32 s3, v4
    v_and_b32 v2, 31, v0
    v_lshrrev_b32 v3, 5, v1
    v_lshlrev_b32 v9, 4, v1
    """)

ACC = 16
def g64_ids(a):
    a("""
    s_and_b32 s40, s2, 7
    s_lshr_b32 s41, s2, 3
    s_and_b32 s42, s40, 1
    s_lshl_b32 s42, s42, 2
    s_and_b32 s47, s41, 3
    s_add_u32 s42, s42, s47         ; cb
    s_lshr_b32 s43, s40, 1
    s_lshl_b32 s43, s43, 3
    s_lshr_b32 s48, s41, 2
    s_add_u32 s43, s43, s48         ; rb
    s_lshl_b32 s47, s47, 1
    s_add_u32 s51, s47, s48         ; rot (mod 8 applied later)
    s_lshr_b32 s40, s3, 1
    s_and_b32 s41, s3, 1
    s_lshl_b32 s44, s42, 1
    s_add_u32 s44, s44, s40
    s_lshl_b32 s46, s43, 1
    s_add_u32 s46, s46, s41
    s_lshl_b32 s52, s3, 15
    s_lshl_b32 s40, s40, 15
    v_add_u32 v10, s40, v9
    s_lshl_b32 s40, s41, 15
    s_add_u32 s49, s40, 0x10000
    s_cmp_lt_u32 s3, 2
    s_cselect_b32 s45, s42, s43
    s_lshl_b32 s45, s45, 1
    s_add_u32 s45, s45, s41
    s_cmp_lt_u32 s3, 2
    """)
def g64_issue(a, ch, general, base="s50"):
    a("s_add_u32 s53, s51, %d\ns_and_b32 s53, s53, 7" % ch)
    if general:
        a("s_lshl_b32 s53, s53, s54\ns_add_u32 s53, s53, %s\ns_add_u32 s56, s53, s55" % base)
        for i in range(4):
            a("s_add_u32 m0, s52, %d" % (ch * 4096 + i * 1024))
            a("buffer_load_dwordx4 v%d, s[20:23], s%d offen lds" % (12 + (i >> 1), 53 if i % 2 == 0 else 56))
    else:
        a("s_lshl_b32 s53, s53, 12\ns_add_u32 m0, s52, %d\ns_add_u32 s53, s53, %s" % (ch * 4096, base))
        for i in range(4):
            a("buffer_load_dwordx4 v9, s[20:23], s53 offen offset:%d lds" % (i * 1024))
def g64_compute(a, ch, rowB, first, hook=None):
    for t in range(4):
        a("ds_read_b128 %s, v10 offset:%d" % (R(32 + 8 * t, 4), ch * 4096 + t * 1024))
        if rowB: a("ds_read_b128 %s, v%d offset:%d" % (R(36 + 8 * t, 4), 14 + (t & 1), ch * 4096 + (t >> 1) * 1024))
        else:    a("ds_read_b128 %s, v11 offset:%d" % (R(36 + 8 * t, 4), ch * 4096 + t * 1024))
    for t in range(4):
        a("s_waitcnt lgkmcnt(%d)" % (6 - 2 * t))
        a("v_mfma_f32_32x32x16_bf16 %s, %s, %s, %s" % (R(ACC, 16), R(32 + 8 * t, 4), R(36 + 8 * t, 4), "0" if (first and t == 0) else R(ACC, 16)))
        if hook: hook(36 + 8 * t)
PRE = 4
def g64_run(k, general, rowB, marks, hook=None, first=True):
    a = k.a
    for ch in range(8):
        a.wait_vm(marks[ch]); a("s_barrier")
        if ch == 0: k.mark()
        if ch + PRE < 8:
            g64_issue(a, ch + PRE, general); marks.append(a.vm - 1)
        g64_compute(a, ch, rowB, first and ch == 0, hook)
    k.mark()

def uc_store(a):
    for p in range(8): a("v_cvt_pk_bf16_f32 v%d, v%d, v%d" % (32 + p, ACC + 2 * p, ACC + 2 * p + 1))
    for p in range(8): a("buffer_store_dword v%d, v5, s[8:11], s%d offen" % (32 + p, 64 + p))
def uc_addr(a):
    a("s_lshl_b32 s40, s44, 17\ns_lshl_b32 s41, s46, 7\ns_add_u32 s40, s40, s41\ns_add_u32 s64, s40, 0x%x" % OFF["UC"])
    for p in range(1, 8): a("s_add_u32 s%d, s64, %d" % (64 + p, (8 * (p >> 2) + (p & 3)) * 8192))
    a("v_lshlrev_b32 v5, 15, v3\nv_lshl_add_u32 v5, v2, 2, v5")
def ssq_addr(a, dst):
    a("s_lshl_b32 %s, s46, 7\nv_lshlrev_b32 v6, 2, v2" % dst)

def rowmajor_addrs(a, rowstride_shift, rh_stride, bbase):
    a("""
    v_lshrrev_b32 v4, 2, v1
    v_lshrrev_b32 v7, 4, v1
    v_xor_b32 v7, v7, v1
    v_and_b32 v7, 3, v7
    v_lshlrev_b32 v7, 4, v7
    v_lshl_add_u32 v12, v4, %d, v7
    v_add_u32 v13, 0x%x, v12
    v_bfe_u32 v4, v1, 2, 2
    v_xor_b32 v4, v4, v3            ; h ^ x
    v_and_b32 v7, 15, v1
    v_lshlrev_b32 v7, 6, v7
    v_bfe_u32 v8, v1, 4, 1
    v_lshl_add_u32 v7, v8, 11, v7
    v_add_u32 v7, %s, v7
    v_lshl_add_u32 v14, v4, 4, v7
    v_xor_b32 v15, 32, v14
    """ % (rowstride_shift, rh_stride, bbase))

def k_col():
    k2 = K("col2_kernel", 208); a = k2.a
    a("s_mov_b32 s47, 0x%x\ns_movk_i32 s61, 256\ns_mov_b32 s62, 0\ns_branch L_col" % OFF["SSQ2"])
    k = K("col1_kernel", 208); a = k.a
    a("s_mov_b32 s47, 0x%x\ns_movk_i32 s61, 256\ns_mov_b32 s62, 1" % OFF["SSQ0"])
    a("L_col:")
    X1, X2, X3 = 0, 8704, 17408
    RAW, SQ, UO, M1, M2, TWF, TWI, WW, WU, BUF = 16, 24, 32, 48, 80, 112, 128, 144, 176, 144
    WW = 16
    WW = 184
    WU = 176
    a("s_cmp_ge_u32 s2, s61\ns_cbranch_scc1 L_col_end")
    srd_load(a, 8, "ws"); srd_tab(a, 16)
    lane_setup(a)
    a("s_mov_b32 s48, %d\ns_mov_b32 s49, %d" % (TOFF["M1"], TOFF["M1"] + 4096))
    a("s_lshl_b32 s50, s3, 13\ns_add_u32 s50, s50, %d\ns_add_u32 s51, s50, 4096" % TOFF["M2"])
    for f in range(8): a("buffer_load_dwordx4 %s, v9, s[16:19], s%d offen offset:%d" % (R(M1 + 4 * f, 4), 48 + (f >> 2), 1024 * (f & 3)))
    def m2(lo, hi):
        for f in range(lo, hi): a("buffer_load_dwordx4 %s, v9, s[16:19], s%d offen offset:%d" % (R(M2 + 4 * f, 4), 50 + (f >> 2), 1024 * (f & 3)))
    a("""
    s_and_b32 s42, s2, 7
    s_lshr_b32 s43, s2, 3
    s_lshl_b32 s42, s42, 5
    s_add_u32 s42, s42, s43         ; slot k
    v_and_b32 v5, 15, v1            ; b_l
    v_lshrrev_b32 v6, 4, v1         ; q
    v_lshlrev_b32 v7, 5, v1
    s_lshl_b32 s44, s3, 11          ; w*2048
    s_lshl_b32 s45, s42, 13
    s_add_u32 s45, s45, s44         ; k*8192 + w*2048
    s_add_u32 s54, s45, 0x%x
    s_add_u32 s45, s45, 0x%x
    s_add_u32 s47, s47, s44
    v_lshlrev_b32 v15, 8, v3
    v_lshl_add_u32 v15, v2, 2, v15
    ; forward twiddles: b = 16w+b_l, j1 = 8q+v
    s_lshl_b32 s56, s3, 4
    v_add_u32 v10, s56, v5
    v_cvt_f32_u32 v10, v10
    v_mul_f32 v10, 0x3a000000, v10      ; b/2048
    v_lshlrev_b32 v11, 3, v6
    v_cvt_f32_u32 v11, v11
    v_mul_f32 v11, v10, v11
    """ % (OFF["WT"], OFF["UC"]))
    M2A = 0
    for i in range(8):
        if i == OPT.get("twa", 4):
            a("s_waitcnt lgkmcnt(0)")
            k.mark()
            for v in range(2): a("buffer_load_dwordx4 %s, v7, s[8:11], s47 offen offset:%d" % (R(SQ + 4 * v, 4), 16 * v))
            for v in range(2): a("buffer_load_dwordx4 %s, v7, s[8:11], s45 offen offset:%d" % (R(RAW + 4 * v, 4), 16 * v))
            m_in = a.vm - 1
            k.mark()
        a("v_fmamk_f32 v12, v10, 0x%x, v11" % fbits(i))
        a("v_cos_f32 v%d, v12\nv_sin_f32 v%d, v12" % (TWF + 2 * i, TWF + 2 * i + 1))
    a("""
    v_cvt_f32_u32 v10, v2
    v_mul_f32 v10, 0x3a000000, v10
    v_lshlrev_b32 v11, 1, v3
    v_add_u32 v11, s56, v11
    v_cvt_f32_u32 v11, v11
    v_mul_f32 v11, v10, v11
    s_mov_b32 s58, 0x3a000000
    s_mov_b32 s59, 0x3a000000
    """)
    for g in range(4):
        for e in range(2):
            i = 2 * g + e
            a("v_fmamk_f32 v12, v10, 0x%x, v11" % fbits(4 * g + e))
            a("v_cos_f32 v%d, v12\nv_sin_f32 v%d, v12" % (TWI + 2 * i, TWI + 2 * i + 1))
    for i in range(8): a("v_pk_mul_f32 %s, %s, s[58:59]" % (R(TWI + 2 * i, 2), R(TWI + 2 * i, 2)))
    a("""
    s_movk_i32 s57, 2176
    v_mul_lo_u32 v10, v6, s57           ; 8q*272
    v_lshl_add_u32 v10, v5, 2, v10
    s_lshl_b32 s58, s3, 6
    v_add_u32 v10, s58, v10             ; X1 write
    s_movk_i32 s57, 272
    v_mul_lo_u32 v11, v2, s57
    v_lshl_add_u32 v12, v3, 3, v11
    v_add_u32 v12, s58, v12             ; X2 write
    v_lshl_add_u32 v11, v3, 4, v11      ; X1/X2 read
    s_mul_i32 s58, s3, 2304
    s_movk_i32 s57, 288
    v_mul_lo_u32 v13, v3, s57
    v_lshl_add_u32 v13, v2, 2, v13
    v_add_u32 v13, s58, v13             ; X3 write
    s_movk_i32 s57, 144
    v_mul_lo_u32 v14, v5, s57
    v_add_u32 v14, s58, v14
    v_lshl_add_u32 v14, v6, 5, v14      ; X3 read: (16w+b_l)*144 + q*32
    s_lshl_b32 s40, s42, 7
    s_lshl_b32 s41, s3, 19
    s_add_u32 s40, s40, s41
    s_add_u32 s40, s40, 0x%x
    v_lshrrev_b32 v8, 2, v1
    v_lshlrev_b32 v8, 15, v8
    v_and_b32 v4, 3, v1
    v_lshl_add_u32 v8, v4, 4, v8        ; UP: (lane>>2)*32768 + (lane&3)*16
    s_mov_b32 s60, 0x%x
    v_mov_b32 v4, 0x%x
    """ % (OFF["UP"], fbits(1.0 / 512), fbits(1e-5)))
    a("""
    PFA
    v_lshlrev_b32 v180, 6, v1
    """.replace("PFA", """s_lshl_b32 s63, s43, 2
    s_add_u32 s63, s63, s3
    s_mul_i32 s63, s63, 12288
    s_add_u32 s63, s63, 0x%x
    s_add_u32 s64, s63, 4096
    s_add_u32 s65, s63, 8192""" if OPT.get("map", 0) else """s_and_b32 s63, s2, 1
    s_lshl_b32 s63, s63, 5
    s_add_u32 s63, s63, s43
    s_lshl_b32 s63, s63, 2
    s_add_u32 s63, s63, s3
    s_mul_i32 s63, s63, 6144
    s_add_u32 s63, s63, 0x%x
    s_add_u32 s64, s63, 4096""") % OFF["WP"])
    def side():
        a("buffer_load_dword v181, v180, s[8:11], s63 offen")
        if OPT.get("map", 0):
            a("buffer_load_dword v182, v180, s[8:11], s64 offen\nbuffer_load_dword v183, v180, s[8:11], s65 offen")
        else:
            a("s_mov_b32 exec_hi, 0\nbuffer_load_dword v182, v180, s[8:11], s64 offen\ns_mov_b32 exec_hi, -1")
    def late():
        m2(M2A, 8)
        for i in range(8): a("buffer_load_dword v%d, v15, s[8:11], s54 offen offset:%d" % (WW + i, 128 * (4 * (i >> 1) + (i & 1))))
        return a.vm - 1
    if OPT.get("late", 0) == 0: m_w = late()
    k.mark()
    a.wait_vm(m_in - 2)
    for i in range(8): a("v_fma_f32 v%d, v%d, s60, v4" % (SQ + i, SQ + i))
    for i in range(8): a("v_rsq_f32 v%d, v%d" % (SQ + i, SQ + i))
    a.wait_vm(m_in)
    k.mark()
    T0 = BUF
    for v in range(8):
        a("v_and_b32 v%d, 0xffff0000, v%d\nv_lshlrev_b32 v%d, 16, v%d" % (UO + 2 * v, RAW + v, UO + 2 * v + 1, RAW + v))
        s = v & 1
        a("v_pk_mul_f32 %s, %s, %s op_sel:[0,%d] op_sel_hi:[1,%d]" % (R(T0 + 2 * v, 2), R(UO + 2 * v, 2), R(SQ + v - s, 2), s, s))
    a("s_cmp_eq_u32 s42, 0\ns_cbranch_scc1 L_col_z0")
    a("L_col_n0:")
    for v in range(8): a("v_cvt_pk_bf16_f32 v%d, v%d, v%d" % (SQ + v, T0 + 2 * v + 1, T0 + 2 * v))
    for t in range(2):
        for tau in range(4):
            d = R(T0 + 4 * tau, 4)
            a("v_mfma_f32_16x16x32_bf16 %s, %s, %s, %s" % (d, R(M1 + 4 * (2 * tau + t), 4), R(SQ + 4 * t, 4), "0" if t == 0 else d))
    if OPT.get("sd", 0) == 2: side()
    T1_ = BUF + 16
    for i in range(8):
        y, tw, t = R(T0 + 2 * i, 2), R(TWF + 2 * i, 2), R(T1_ + 2 * i, 2)
        a("v_pk_mul_f32 %s, %s, %s op_sel:[0,0] op_sel_hi:[1,0]" % (t, y, tw))
        a("v_pk_fma_f32 %s, %s, %s, %s op_sel:[1,1,0] op_sel_hi:[0,1,1] neg_hi:[1,0,0]" % (t, y, tw, t))
        a("v_cvt_pk_bf16_f32 v%d, v%d, v%d" % (SQ + i, T1_ + 2 * i, T1_ + 2 * i + 1))
        a("ds_write_b32 v10, v%d offset:%d" % (SQ + i, X1 + i * 272))
    a("s_waitcnt lgkmcnt(0)\ns_barrier")
    k.mark()
    for t in range(8): a("ds_read_b128 %s, v11 offset:%d" % (R(BUF + 4 * t, 4), X1 + 32 * t))
    a.wait_vm(m_w)
    AC = TWF
    for t in range(8):
        a("s_waitcnt lgkmcnt(%d)" % (7 - t))
        a("v_mfma_f32_32x32x16_bf16 %s, %s, %s, %s" % (R(AC, 16), R(M2 + 4 * t, 4), R(BUF + 4 * t, 4), "0" if t == 0 else R(AC, 16)))
        a("v_lshlrev_b32 v%d, 16, v%d\nv_and_b32 v%d, 0xffff0000, v%d" % (192 + 2 * t, WW + t, 193 + 2 * t, WW + t))
        if t == 7 and OPT.get("sd", 0) == 0: side()
    for i in range(8):
        y, w, t = R(AC + 2 * i, 2), R(192 + 2 * i, 2), R(T1_ + 2 * i, 2)
        a("v_pk_mul_f32 %s, %s, %s op_sel:[0,0] op_sel_hi:[1,0] neg_hi:[1,0]" % (t, y, w))
        a("v_pk_fma_f32 %s, %s, %s, %s op_sel:[1,1,0] op_sel_hi:[0,1,1] neg_lo:[1,0,0] neg_hi:[1,0,0]" % (t, y, w, t))
        a("v_cvt_pk_bf16_f32 v%d, v%d, v%d" % (SQ + i, T1_ + 2 * i, T1_ + 2 * i + 1))
        if i & 1: a("ds_write_b64 v12, %s offset:%d" % (R(SQ + i - 1, 2), X2 + 16 * (i >> 1)))
    a("s_waitcnt lgkmcnt(0)\ns_barrier")
    k.mark()
    for t in range(8): a("ds_read_b128 %s, v11 offset:%d" % (R(BUF + 4 * t, 4), X2 + 32 * t))
    for t in range(8):
        a("s_waitcnt lgkmcnt(%d)" % (7 - t))
        a("v_mfma_f32_32x32x16_bf16 %s, %s, %s, %s" % (R(AC, 16), R(M2 + 4 * t, 4), R(BUF + 4 * t, 4), "0" if t == 0 else R(AC, 16)))
        if t == 1 and OPT.get("sd", 0) == 1: side()
    for i in range(8):
        y, tw, t = R(AC + 2 * i, 2), R(TWI + 2 * i, 2), R(T0 + 2 * i, 2)
        a("v_pk_mul_f32 %s, %s, %s op_sel:[0,1] op_sel_hi:[0,0]" % (t, y, tw))
        a("v_pk_fma_f32 %s, %s, %s, %s op_sel:[1,0,0] op_sel_hi:[1,1,1] neg_lo:[1,0,0]" % (t, y, tw, t))
        a("v_cvt_pk_bf16_f32 v%d, v%d, v%d" % (SQ + i, T0 + 2 * i, T0 + 2 * i + 1))
        a("ds_write_b32 v13, v%d offset:%d" % (SQ + i, X3 + (4 * (i >> 1) + (i & 1)) * 144))
    a("s_waitcnt lgkmcnt(0)")
    for t in range(2): a("ds_read_b128 %s, v14 offset:%d" % (R(BUF + 4 * t, 4), X3 + 16 * t))
    a("s_waitcnt lgkmcnt(0)")
    k.mark()
    for t in range(2):
        for tau in range(4):
            d = R(UO + 4 * tau, 4)
            a("v_mfma_f32_16x16x32_bf16 %s, %s, %s, %s" % (d, R(M1 + 4 * (2 * tau + t), 4), R(BUF + 4 * t, 4), d))
    a("s_cmp_eq_u32 s42, 0\ns_cbranch_scc1 L_col_z1")
    a("L_col_n1:")
    for c in range(2):
        for v in range(4): a("v_cvt_pk_bf16_f32 v%d, v%d, v%d" % (SQ + 4 * c + v, UO + 4 * v + 1 - c, UO + 4 * v + 3 - c))
        a("buffer_store_dwordx4 %s, v8, s[8:11], s40 offen offset:%d %s" % (R(SQ + 4 * c, 4), 64 * c, "" if OPT.get("upf", 1) else "sc1"))
    a("L_col_end:")
    a("s_endpgm")
    a("L_col_z0:")
    for v in range(8): a("v_mov_b32 v%d, 0" % (T0 + 2 * v))
    a("s_branch L_col_n0")
    a("L_col_z1:")
    for v in range(8): a("v_and_b32 v%d, 0xffff0000, v%d" % (UO + 2 * v, RAW + v))
    a("s_branch L_col_n1")
    return (k, 256, 256, 32768), (k2, 256, 256, 32768)

from prep5 import k_prep
from mha9 import k_mha


def hexdump(arr):
    u = np.ascontiguousarray(arr).reshape(-1).view(np.uint64)
    return "\n".join(".quad " + ",".join("0x%x" % v for v in u[i:i + 8]) for i in range(0, len(u), 8)) + "\n"

def tables():
    s = '.section .rodata,"a"\n.p2align 12\n'
    c = cos512()
    for i in range(512): s += ".set C%d, 0x%04x\n" % (i, c[i])
    s += r""".altmacro
.macro E8 a,b,c,d,e,f,g,h
.short C\a,C\b,C\c,C\d,C\e,C\f,C\g,C\h
.endm
.macro G8 i0,i1,p,d
E8 %((\i0)&511),%((\i1)&511),%((\p+\d)&511),%((\p+\d+128)&511),%((\p+2*\d)&511),%((\p+2*\d+128)&511),%((\p+3*\d)&511),%((\p+3*\d+128)&511)
.endm
.type tables,@object
tables:
.set n, 0
.rept 32768
.set dd, ((n>>11)<<5) + (((n>>2)&1)<<4) + (((n>>3)&3)<<2) + (n&3)
.set kk, (((n>>6)&31)<<3) + (((n>>5)&1)<<2)
.set z, ((kk-1)>>63)&1
.set pp, kk*dd
.set i0, z*(256*dd+64) + (1-z)*pp
.set i1, z*64 + (1-z)*(pp+128)
G8 i0, i1, pp, dd
.set n, n+1
.endr
.noaltmacro
"""
    s += hexdump(tab_M1()) + hexdump(tab_M2())
    return s

DOC = '''; ---------------------------------------------------------------------------------------------------
; ---------------------------------------------------------------------------------------------------
'''
def build(order=None):
    c1, c2 = k_col()
    me = sys.modules[__name__]
    m1, m2 = k_mha(me)
    ks = dict(prep=k_prep(me), col2=c2, col1=c1, mha2=m2, mha1=m1)
    order = order or ["prep", "col1", "mha1", "col2", "mha2"]
    ref = open("cdna_kernels/%s.s.ref" % NAME).read().split("\n")
    head = "\n".join(l for l in ref[:10]) + "\n"
    for o in order:
        k, g, b, lds = ks[o]
        head += "; @launch kernel=%s grid=(%d,1,1) block=(%d,1,1) lds=%d\n" % (k.name, g, b, lds)
    s = head + DOC + '.amdgcn_target "amdgcn-amd-amdhsa--gfx950"\n'
    for i, (k, *_) in enumerate(ks.values()):
        if i == 1: s += ".text\n.p2align 8\ncode_begin:\n"
        s += k.text()
    s += "code_end:\n"
    for k, *_ in ks.values(): s += k.desc()
    s += tables()
    return s

if __name__ == "__main__":
    out = sys.argv[1] if len(sys.argv) > 1 else "cdna_kernels/%s.s" % NAME
    STAMP = len(sys.argv) > 2 and "stamp" in sys.argv[2]
    for kv in sys.argv[3:]:
        key, val = kv.split("="); OPT[key] = int(val)
    open(out, "w").write(build())
    print("wrote", out)
```
